```python
import torch

def _softmax(x, axis=-1):
    return torch.softmax(x, dim=axis)
def _gelu(x):
    return torch.nn.functional.gelu(x, approximate="tanh")
def _silu(x):
    return torch.nn.functional.silu(x)
def _sigmoid(x):
    return torch.sigmoid(x)
def _layernorm(x, axis=-1, eps=1e-5):
    m = x.mean(dim=axis, keepdim=True)
    v = x.var(dim=axis, keepdim=True, unbiased=False)
    return (x - m) / torch.sqrt(v + eps)
def _scatter_add(tgt, idx, src, axis=0):
    return tgt.clone().index_add_(axis, idx, src)
def _segment_sum(src, seg, n):
    out = torch.zeros((n,) + src.shape[1:], dtype=src.dtype)
    return out.index_add_(0, seg, src)
def _pad(x, pw):
    flat = tuple(v for pair in reversed(pw) for v in pair)
    return torch.nn.functional.pad(x, flat)

kernel_name = 'parallel_sum__mha_block__glu_gated_glu__prompt'

def setup_inputs():

    _w = (lambda a: (lambda t: t.to(torch.bfloat16) if t.is_floating_point() else t)(torch.as_tensor(a)))
    def _A_setup():
        B, S, D, H = 1, 2048, 640, 32
        return {
            "x": _w((lambda *s: torch.randn(*s, dtype=torch.bfloat16) * 0.05)(B, S, D)),
            "wqkv": _w((lambda *s: torch.randn(*s, dtype=torch.bfloat16) * 0.05)(D, 3 * D)),
            "wo": _w((lambda *s: torch.randn(*s, dtype=torch.bfloat16) * 0.05)(D, D)),
        }
    _A_in = _A_setup()

    def _B_setup():
        B, S, D, F = 1, 2048, 640, 1536
        return {
            "x": _w((lambda *s: torch.randn(*s, dtype=torch.bfloat16) * 0.05)(B, S, D)),
            "w_gate": _w((lambda *s: torch.randn(*s, dtype=torch.bfloat16) * 0.05)(D, F)),
            "w_up": _w((lambda *s: torch.randn(*s, dtype=torch.bfloat16) * 0.05)(D, F)),
            "w_down": _w((lambda *s: torch.randn(*s, dtype=torch.bfloat16) * 0.05)(F, D)),
        }
    _B_in = _B_setup()

    return {
        "A_x": _A_in["x"],
        "A_wqkv": _A_in["wqkv"],
        "A_wo": _A_in["wo"],
        "B_x": _B_in["x"],
        "B_w_gate": _B_in["w_gate"],
        "B_w_up": _B_in["w_up"],
        "B_w_down": _B_in["w_down"],
    }

def reference(A_x, A_wqkv, A_wo, B_x, B_w_gate, B_w_up, B_w_down):
    def _A_ref(x, wqkv, wo):
        B, S, D = x.shape
        H = 32
        Dh = D // H
        qkv = (lambda x, *d: x.permute(*d))((x @ wqkv).reshape(B, S, 3, H, Dh), 2, 0, 3, 1, 4)
        q, k, v = qkv[0], qkv[1], qkv[2]
        scores = torch.einsum("bhqd,bhkd->bhqk", q, k) * (Dh ** -0.5)
        p = _softmax(scores, axis=-1)
        o = torch.einsum("bhqk,bhkd->bhqd", p, v)
        return (lambda x, *d: x.permute(*d))(o, 0, 2, 1, 3).reshape(B, S, D) @ wo

    def _B_ref(x, w_gate, w_up, w_down):
        g = torch.einsum("bsd,df->bsf", x, w_gate)
        u = torch.einsum("bsd,df->bsf", x, w_up)
        h = _sigmoid(g) * u
        return torch.einsum("bsf,fd->bsd", h, w_down)

    x = A_x
    xn = _layernorm(x, axis=-1)
    return x + _A_ref(xn, A_wqkv, A_wo) + _B_ref(xn, B_w_gate, B_w_up, B_w_down)
```

```python
import re

TRANS = ("v_exp_f32","v_log_f32","v_rcp_f32","v_rsq_f32","v_sqrt_f32","v_sin_f32","v_cos_f32","v_exp_f16","v_rcp_f16")

def _regs(tok):
    tok = tok.strip()
    tok = re.sub(r"^-", "", tok)
    m = re.fullmatch(r"abs\((.*)\)", tok) or re.fullmatch(r"\|(.*)\|", tok)
    if m: tok = m.group(1)
    m = re.fullmatch(r"([vas])(\d+)", tok)
    if m: return [(m.group(1), int(m.group(2)))]
    m = re.fullmatch(r"([vas])\[(\d+):(\d+)\]", tok)
    if m: return [(m.group(1), i) for i in range(int(m.group(2)), int(m.group(3))+1)]
    if tok == "vcc": return [("s","vcc")]
    if tok == "exec": return [("s","exec")]
    if tok == "m0": return [("s","m0")]
    return []

class I:
    __slots__ = ("text","op","cls","rd","wr","tag","cond","wvm","wlg","passes","srcc","comment","n_vm","n_lg","keep")
    def __init__(self, text, tag=None, cond=False, comment=None):
        self.text = text; self.tag = tag; self.cond = cond; self.comment = comment
        self.wvm = None; self.wlg = None; self.n_vm = None; self.n_lg = None
        self.passes = 0; self.srcc = []
        t = text.split(";")[0].strip()
        if t.endswith(":"):
            self.op = "label"; self.cls = "label"; self.rd = []; self.wr = []; return
        if t.startswith("."):
            self.op = "dir"; self.cls = "label"; self.rd = []; self.wr = []; return
        parts = t.split(None, 1)
        op = parts[0]; self.op = op
        rest = parts[1] if len(parts) > 1 else ""
        ops = [o.strip() for o in rest.split(",")] if rest else []
        toks = []
        for o in ops:
            toks.append(o.split()[0] if o.split() else o)
        mods = rest
        rd, wr = [], []
        base = re.sub(r"_e32$|_e64$|_sdwa$|_dpp$", "", op)
        if op.startswith("v_mfma"):
            self.cls = "mfma"
            wr = _regs(toks[0]); rd = _regs(toks[1]) + _regs(toks[2]) + _regs(toks[3])
            self.srcc = _regs(toks[3])
            if "32x32x4_2b" in op: self.passes = 16
            elif "32x32" in op: self.passes = 8
            else: self.passes = 4
        elif op.startswith("buffer_load") or op.startswith("global_load"):
            self.cls = "vmem"
            if re.search(r"\blds\b", mods):
                for k in toks: rd += _regs(k)
                rd += [("s","m0")]
            else:
                wr = _regs(toks[0])
                for k in toks[1:]: rd += _regs(k)
        elif op.startswith("buffer_store") or op.startswith("global_store") or op.startswith("buffer_atomic") or op.startswith("global_atomic"):
            self.cls = "vmem"
            for k in toks: rd += _regs(k)
        elif op.startswith("buffer_inv") or op.startswith("buffer_wbl2"):
            self.cls = "vmem"
        elif op.startswith("ds_read") or op.startswith("ds_bpermute") or op.startswith("ds_swizzle"):
            self.cls = "lds"; wr = _regs(toks[0])
            for k in toks[1:]: rd += _regs(k)
        elif op.startswith("ds_"):
            self.cls = "lds"
            for k in toks: rd += _regs(k)
        elif op.startswith("s_load") or op.startswith("s_memtime") or op.startswith("s_memrealtime"):
            self.cls = "smem"; wr = _regs(toks[0])
            for k in toks[1:]: rd += _regs(k)
        elif op == "s_waitcnt": self.cls = "wait"
        elif op == "s_barrier": self.cls = "barrier"
        elif op == "s_nop": self.cls = "nop"
        elif op.startswith("s_cbranch") or op in ("s_branch","s_endpgm","s_setpc_b64"):
            self.cls = "branch"
            if "vcc" in op: rd = [("s","vcc")]
            for k in toks: rd += _regs(k)
        elif op in ("s_sleep","s_setprio"): self.cls = "salu"
        elif op.startswith("s_cmp") or op.startswith("s_bitcmp"):
            self.cls = "salu"
            for k in toks: rd += _regs(k)
        elif op.startswith("s_"):
            self.cls = "salu"; wr = _regs(toks[0])
            for k in toks[1:]: rd += _regs(k)
            if "saveexec" in op: wr += [("s","exec")]
        elif op.startswith("v_"):
            self.cls = "trans" if base in TRANS else "valu"
            if base.startswith("v_cmp"):
                wr = _regs(toks[0])
                for k in toks[1:]: rd += _regs(k)
            elif base in ("v_readfirstlane_b32","v_readlane_b32"):
                wr = _regs(toks[0])
                for k in toks[1:]: rd += _regs(k)
            elif base.startswith("v_permlane") and "swap" in base:
                wr = _regs(toks[0]) + _regs(toks[1]); rd = list(wr)
            elif base in ("v_add_co_u32","v_sub_co_u32","v_addc_co_u32"):
                wr = _regs(toks[0]) + _regs(toks[1])
                for k in toks[2:]: rd += _regs(k)
            else:
                wr = _regs(toks[0])
                for k in toks[1:]: rd += _regs(k)
                if base in ("v_fmac_f32","v_dot2c_f32_bf16"): rd += _regs(toks[0])
                if base == "v_cndmask_b32" and len(toks) == 3: rd += [("s","vcc")]
        else:
            raise ValueError("unknown instr: " + text)
        self.rd = rd; self.wr = wr
    def isdot(self): return self.op.startswith("v_dot2")
    def slots(self):
        if self.cls == "label": return 0
        if self.cls == "nop": return int(self.text.split()[1]) + 1
        return 1
    def cost(self):
        if self.cls == "label": return 0
        if self.cls == "trans": return 8
        if self.cls == "mfma": return 8
        if self.cls == "nop": return 4*self.slots()
        return 4

def W(vm=None, lg=None, comment=None):
    i = I("s_waitcnt 0", comment=comment)
    i.wvm = vm; i.wlg = lg
    return i

def resolve_waits(path):
    vm_idx = {}; lg_idx = {}
    vm_n = 0; lg_n = 0
    smem_pending = False
    for ins in path:
        if ins.cls == "vmem":
            if not ins.cond:
                vm_n += 1
                if ins.tag is not None: vm_idx[ins.tag] = vm_n
        elif ins.cls == "lds":
            assert not ins.cond or True
            if not ins.cond:
                lg_n += 1
                if ins.tag is not None: lg_idx[ins.tag] = lg_n
        elif ins.cls == "smem":
            smem_pending = True
        elif ins.cls == "wait" and (ins.wvm is not None or ins.wlg is not None):
            if ins.wvm is not None:
                if isinstance(ins.wvm, int): n = ins.wvm
                else:
                    tags = ins.wvm if isinstance(ins.wvm, list) else [ins.wvm]
                    n = min(vm_n - vm_idx[t] for t in tags)
                    assert n >= 0
                    n = min(n, 63)
                ins.n_vm = n if ins.n_vm is None else min(ins.n_vm, n)
            if ins.wlg is not None:
                if isinstance(ins.wlg, int): n = ins.wlg
                else:
                    tags = ins.wlg if isinstance(ins.wlg, list) else [ins.wlg]
                    n = min(lg_n - lg_idx[t] for t in tags)
                    n = min(n, 15)
                    assert not smem_pending, "counted lgkm wait with smem pending"
                if n == 0: smem_pending = False
                ins.n_lg = n if ins.n_lg is None else min(ins.n_lg, n)

def finalize_waits(instrs):
    for ins in instrs:
        if ins.cls == "wait" and (ins.wvm is not None or ins.wlg is not None):
            parts = []
            if ins.wvm is not None:
                assert ins.n_vm is not None, ("unresolved", ins.wvm); parts.append(f"vmcnt({ins.n_vm})")
            if ins.wlg is not None:
                assert ins.n_lg is not None, ("unresolved", ins.wlg); parts.append(f"lgkmcnt({ins.n_lg})")
            ins.text = "s_waitcnt " + " ".join(parts)

def _ov(a, b):
    if not a or not b: return False
    return not set(a).isdisjoint(b)

def need_states(p, c):
    n = 0
    pv = p.cls in ("valu","trans"); cv = c.cls in ("valu","trans")
    pw_vec = [r for r in p.wr if r[0] in "va"]
    pw_s = [r for r in p.wr if r[0] == "s"]
    if pv:
        if c.cls == "mfma" and _ov(pw_vec, c.rd): n = max(n, 2)
        if cv and c.op.startswith("v_permlane") and _ov(pw_vec, c.rd): n = max(n, 2)
        if cv and (c.op.startswith("v_readfirstlane") or c.op.startswith("v_readlane")) and _ov(pw_vec, c.rd): n = max(n, 1)
        if cv and "dpp" in c.text and _ov(pw_vec, c.rd): n = max(n, 2)
        if pw_s:
            if cv and (_ov(pw_s, c.rd)): n = max(n, 2)
            if c.cls == "vmem" and _ov(pw_s, c.rd): n = max(n, 5)
            if c.cls == "mfma" and ("s","exec") in pw_s: n = max(n, 4)
            if c.cls in ("salu","branch") and _ov(pw_s, c.rd): n = max(n, 1)
        if p.cls == "trans" and c.cls == "valu" and _ov(pw_vec, c.rd): n = max(n, 1)
        if p.cls == "trans" and c.cls in ("vmem","lds") and _ov(pw_vec, c.rd): n = max(n, 1)
        if p.isdot():
            if c.isdot() and c.op == p.op:
                srcab = c.rd[:]
                toks = [t.strip().split()[0] for t in c.text.split(None,1)[1].split(",")]
                ab = _regs(toks[1]) + _regs(toks[2])
                if _ov(pw_vec, ab): n = max(n, 3)
            elif c.cls in ("valu","trans","mfma","vmem","lds") and (_ov(pw_vec, c.rd) or _ov(pw_vec, c.wr)): n = max(n, 3)
    if p.cls == "salu":
        if ("s","m0") in p.wr and c.cls == "vmem" and ("s","m0") in c.rd: n = max(n, 1)
    if p.cls == "vmem" and re.search(r"store_dwordx[34]", p.op):
        toks = [t.strip().split()[0] for t in p.text.split(None,1)[1].split(",")]
        data = _regs(toks[0]) if p.op.startswith("buffer") else _regs(toks[1])
        if _ov(data, c.wr): n = max(n, 2 if cv else 1)
    if p.cls == "mfma":
        P = p.passes
        tab = {4:(6,8,3), 8:(10,12,7), 16:(18,20,15)}[P]
        if c.cls == "mfma":
            toks = [t.strip().split()[0] for t in c.text.split(None,1)[1].split(",")]
            ab = _regs(toks[1]) + _regs(toks[2])
            if _ov(p.wr, ab): n = max(n, tab[1])
            if _ov(p.wr, c.srcc):
                if not (c.srcc == p.wr and c.passes == p.passes): n = max(n, tab[0])
            elif _ov(p.wr, c.wr):
                n = max(n, tab[0])
        elif cv or c.cls in ("vmem","lds"):
            if _ov(p.wr, c.rd) or _ov(p.wr, c.wr): n = max(n, tab[1])
            if cv and _ov(p.srcc, c.wr): n = max(n, tab[2])
    return n

def fix_hazards(path, window=24, log=None):
    out = []
    total = 0
    for c in path:
        if c.cls != "label":
            dist = 0; need = 0
            for p in reversed(out):
                if p.cls == "label": continue
                r = need_states(p, c)
                if r - dist > need: need = r - dist; why = p
                dist += p.slots()
                if dist >= window: break
            if need > 0:
                total += need
                if log is not None: log.append((need, why.text, c.text))
                k = need
                while k > 0:
                    m = min(k, 16); out.append(I(f"s_nop {m-1}")); k -= m
        out.append(c)
    path[:] = out
    return total

def check_loads(path):
    vmq = []
    lgq = []
    errs = []
    for ins in path:
        if ins.cls == "wait":
            m = re.search(r"vmcnt\((\d+)\)", ins.text)
            if m:
                n = int(m.group(1)); vmq = vmq[len(vmq)-n:] if n < len(vmq) else vmq
                if n == 0: vmq = []
            m = re.search(r"lgkmcnt\((\d+)\)", ins.text)
            if m:
                n = int(m.group(1))
                if n == 0: lgq = []
                elif n < len(lgq): lgq = lgq[len(lgq)-n:]
            continue
        if ins.cls == "label": continue
        touched = set(ins.rd) | set(ins.wr)
        for q in (vmq, lgq):
            for o in q:
                if o.wr and not touched.isdisjoint(o.wr):
                    if ins.cls == o.cls and set(ins.rd).isdisjoint(o.wr): continue
                    errs.append((o.text, ins.text))
        if ins.cls == "vmem" and not ins.cond: vmq.append(ins)
        elif ins.cls in ("lds","smem") and not ins.cond: lgq.append(ins)
    return errs
```

```python
import sys, math, struct
from asmlib import *

NAME = "parallel_sum__mha_block__glu_gated_glu__prompt_kernel"
STAMPS = "--stamps" in sys.argv
STOP = None
for a in sys.argv:
    if a.startswith("--stop="): STOP = a.split("=")[1]

def f2u(x): return struct.unpack("<I", struct.pack("<f", x))[0]

WS_Q = 0x000000; WS_K = 0x280000; WS_V = 0x500000; WS_C = 0x780000
WS_O = 0x800000
WS_H = 0xB00000
WS_W = 0x1100000
WS_F = 0x1400000
WS_T = 0x1410000
WS_SIZE = 0x1480000
F_QKV = WS_F; F_H = WS_F + 0x2000; F_O = WS_F + 0x4000
OOB = 0x40000000
LOG2E = 1.4426950408889634
QSCALE = (20 ** -0.5) * LOG2E

L_RING = 0; NSLOT = 7; L_X = 0x1C000; L_J = 0x24000

sWAVE=3; sXCD=4; sLOC=5; sT0=6; sT1=7
SX="s[8:11]"; SQKV="s[12:15]"; SG="s[16:19]"; SU="s[20:23]"; SWS="s[24:27]"; SOUT="s[28:31]"; SDBG="s[32:35]"; SJ="s[36:39]"
sMB=40; sJ=41; sWB=42; sXO=43
sD=47
sC10=53; sC01=54; sC11=55
sEB=56
sHB=59
sSC=61
sP=64
sNON=84; sTA=85; sTB=86; sTC=87
sHD=88; sQB=89; sKH=90; sJS=91
sK0=64; sK1=65; sV0=66; sV1=67; sQLO=68; sQHI=69; sRB=70; sCB=71; sSAFE=72; sSPIN=73
sWP=74; sHP=75; sOP=76; sOST=77; sFL=78; sMBX=79
sSTAMP=96

vLANE=1; vXLD=2; vXW=3; vXR=4; vDQ=8; vDG=10; vTR=12; vEP=16; vEP1=17; vH=18
vJK=19; vJST=23; vJTR=24; vCST=25; vNM=26; vR=27; vS=28; vSG=29; vSCL=30; vNON=33; vACC=34; vPA=38; vSTMP=39
vLN=40; vR16=48; vTMP=64; vX=96
vK1A=48; vK1B=49; vK2=50; vQ2=51; vVL=52; vLIN=53; vH3=54; vO3=57; vOSA=58; vOSC=59; vRW=60; vRR=61; vFH=62; vFO=63
aA=0; aB=64; aC=96; aWF=160
aO=0; aQ=64; aKV=200

def v(n, k=1): return f"v{n}" if k == 1 else f"v[{n}:{n+k-1}]"
def a(n, k=1): return f"a{n}" if k == 1 else f"a[{n}:{n+k-1}]"
def s(n, k=1): return f"s{n}" if k == 1 else f"s[{n}:{n+k-1}]"

class Seg(list):
    def e(self, text, **kw):
        for t in text.strip().split("\n"):
            t = t.strip()
            if t: self.append(I(t, **kw))
        return self

aSTAMP = 199
def stamp(seg, k):
    if not STAMPS: return
    seg.e(f"s_memtime s[96:97]")
    seg.append(W(lg=0))
    seg.e(f"s_mov_b64 exec, {1<<k}\nv_accvgpr_write_b32 a{aSTAMP}, s96\ns_mov_b64 exec, -1")

def srd(seg, S, ptr, size):
    b = int(S[2:].split(":")[0])
    seg.e(f"s_mov_b32 s{b}, s{ptr}\ns_mov_b32 s{b+1}, s{ptr+1}\ns_mov_b32 s{b+2}, {size}\ns_mov_b32 s{b+3}, 0x00020000")

def dma_stage(sig, cls):
    if sig >= 25: return []
    p = 0 if sig < 10 else (1 if sig < 15 else 2)
    kind = pass_kind(cls, p)
    slot = sig % NSLOT
    out = Seg()
    vd = vDG if kind == 'G' else vDQ
    stride = 3072 if kind == 'G' else 3840
    rows = 64 if p != 1 else 128
    for src in range(2):
        S = (SG if src == 0 else SU) if kind == 'G' else SQKV
        so = sD + 2*p + src
        out.e(f"s_add_u32 m0, s{sWB}, {L_RING + slot*16384 + src*2048}")
        out.append(I(f"s_nop 0")) if False else None
        out.append(I(f"buffer_load_dwordx4 v{vd}, {S}, s{so} offen lds", tag=("dma", sig, src, 0)))
        out.append(I(f"buffer_load_dwordx4 v{vd+1}, {S}, s{so} offen offset:1024 lds", tag=("dma", sig, src, 1)))
        out.e(f"s_add_u32 s{so}, s{so}, {rows*stride}")
    return out
def dma_tag(sig): return ("dma", sig, 1, 1)

def pass_kind(cls, p):
    if p == 2: return 'G'
    if p == 0: return 'G' if cls == 'A' else 'Q'
    return 'Q'

def prologue():
    g = Seg()
    g.e(f"""
    s_cmp_ge_u32 s2, 256
    s_cbranch_scc1 L_end
    s_load_dwordx16 s[64:79], s[0:1], 0
    s_load_dwordx4 s[80:83], s[0:1], 64
    v_and_b32 v{vLANE}, 63, v0
    v_lshrrev_b32 v0, 6, v0
    s_and_b32 s{sXCD}, s2, 7
    v_readfirstlane_b32 s{sWAVE}, v0
    s_lshr_b32 s{sLOC}, s2, 3
    """)
    if STAMPS:
        g.e(f"v_accvgpr_write_b32 a{aSTAMP}, 0")
    g.e(f"""
    s_and_b32 s{sT0}, s{sXCD}, 1
    s_lshl_b32 s{sT0}, s{sT0}, 3
    s_and_b32 s{sT1}, s{sLOC}, 7
    s_add_u32 s{sMB}, s{sT0}, s{sT1}
    s_lshr_b32 s{sT0}, s{sXCD}, 1
    s_lshl_b32 s{sT0}, s{sT0}, 2
    s_lshr_b32 s{sT1}, s{sLOC}, 3
    s_add_u32 s{sJ}, s{sT0}, s{sT1}
    s_lshl_b32 s{sWB}, s{sWAVE}, 12
    s_lshl_b32 s{sT0}, s{sMB}, 2
    s_add_u32 s{sT0}, s{sT0}, s{sWAVE}
    s_mul_i32 s{sXO}, s{sT0}, 40960
    s_add_u32 s{sXO+1}, s{sXO}, 10240
    s_add_u32 s{sXO+2}, s{sXO}, 20480
    s_add_u32 s{sXO+3}, s{sXO}, 30720
    v_lshrrev_b32 v64, 3, v{vLANE}
    v_and_b32 v65, 7, v{vLANE}
    v_mul_u32_u24 v{vXLD}, 1280, v64
    v_lshlrev_b32 v66, 4, v65
    v_add_u32 v{vXLD}, v{vXLD}, v66
    """)
    g.append(W(lg=0))
    srd(g, SX, sP+0, 2621440)
    stamp(g, 0)
    for grp in range(5):
        for cbl in range(2):
            for rg in range(4):
                e = grp*8 + cbl*4 + rg
                g.append(I(f"buffer_load_dwordx4 {a(4*e,4)}, v{vXLD}, {SX}, s{sXO+rg} offen offset:{(2*grp+cbl)*128}", tag=("x", e)))
    srd(g, SQKV, sP+2, 640*3840); srd(g, SG, sP+8, 640*3072); srd(g, SU, sP+10, 640*3072)
    srd(g, SWS, sP+18, WS_SIZE); srd(g, SOUT, sP+14, 2621440); srd(g, SDBG, sP+16, 256)
    g.e(f"""
    v_lshlrev_b32 v67, 1, v64
    v_and_b32 v67, 4, v67
    v_xor_b32 v67, v65, v67
    v_lshlrev_b32 v67, 4, v67
    v_mul_u32_u24 v{vDQ}, 3840, v64
    v_add_u32 v{vDQ}, v{vDQ}, v67
    v_add_u32 v{vDQ+1}, {8*3840-1024}, v{vDQ}
    v_mul_u32_u24 v{vDG}, 3072, v64
    v_add_u32 v{vDG}, v{vDG}, v67
    v_add_u32 v{vDG+1}, {8*3072-1024}, v{vDG}
    """)
    g.e(f"""
    s_cmp_lt_u32 s{sJ}, 4
    s_cbranch_scc1 L_clsV
    s_cmp_lt_u32 s{sJ}, 8
    s_cbranch_scc1 L_clsB
    """)
    return g

def class_setup(cls):
    g = Seg()
    g.e({'A':"L_clsA:", 'B':"L_clsB:", 'V':"L_clsV:"}[cls])
    rowb = sTA
    g.e(f"""
    s_lshl_b32 s{sTA}, s{sMB}, 2
    s_add_u32 s{sTA}, s{sTA}, s{sWAVE}
    """)
    c1 = 0x3F800000; cq = f2u(QSCALE)
    def gunit(p, hb):
        g.e(f"""
        s_lshl_b32 s{sT1}, s{sT0}, 7
        s_mul_i32 s{sTB}, s{sWAVE}, {16*3072}
        s_add_u32 s{sD+2*p}, s{sT1}, s{sTB}
        s_mov_b32 s{sD+2*p+1}, s{sD+2*p}
        s_mul_i32 s{sTB}, s{sTA}, {2*48*1024}
        s_lshl_b32 s{sT1}, s{sT0}, 11
        s_add_u32 s{sTB}, s{sTB}, s{sT1}
        s_add_u32 s{hb}, s{sTB}, {WS_H}
        """)
    def qk_params(idx):
        g.e(f"""
        s_lshl_b32 s{sT1}, s{sT0}, 18
        s_lshl_b32 s{sTB}, s{sTA}, 8
        s_add_u32 s{sEB+idx}, s{sT1}, s{sTB}
        s_cmp_lt_u32 s{sT0}, 10
        s_cselect_b32 s{sSC+idx}, {cq}, 1.0
        """)
    def v_params(idx):
        g.e(f"""
        s_lshl_b32 s{sT1}, s{sT0}, 18
        s_lshl_b32 s{sTB}, s{sTA}, 8
        s_add_u32 s{sTB}, s{sTB}, {WS_V}
        s_add_u32 s{sEB+idx}, s{sT1}, s{sTB}
        """)
    def q4(colbase):
        g.e(f"""
        s_lshl_b32 s{sT1}, s{sT0}, 7
        s_mul_i32 s{sTB}, s{sWAVE}, {16*3840}
        s_add_u32 s{sT1}, s{sT1}, {colbase}
        s_add_u32 s{sD}, s{sT1}, s{sTB}
        s_add_u32 s{sD+1}, s{sD}, 128
        """)
    def q2(colbase):
        g.e(f"""
        s_lshl_b32 s{sT1}, s{sT0}, 7
        s_mul_i32 s{sTB}, s{sWAVE}, {32*3840}
        s_add_u32 s{sT1}, s{sT1}, {colbase}
        s_add_u32 s{sD+2}, s{sT1}, s{sTB}
        s_add_u32 s{sD+3}, s{sD+2}, {16*3840}
        """)
    if cls == 'A':
        g.e(f"s_lshl_b32 s{sT0}, s{sJ}, 1\ns_sub_u32 s{sT0}, s{sT0}, 8")
        gunit(0, sHB)
    elif cls == 'B':
        g.e(f"s_sub_u32 s{sT0}, s{sJ}, 4\ns_mul_i32 s{sT0}, s{sT0}, 3")
        q4(0)
    else:
        g.e(f"s_lshl_b32 s{sT0}, s{sJ}, 1")
        q4(2560)
    for sig in range(5): g += dma_stage(sig, cls)
    if cls == 'A':
        g.e(f"s_add_u32 s{sT0}, s{sT0}, 1"); gunit(2, sHB+1)
        g.e(f"s_add_u32 s{sT0}, s{sJ}, 4"); q2(0); qk_params(2)
    elif cls == 'B':
        qk_params(0)
        g.e(f"s_add_u32 s{sT0}, s{sT0}, 1"); qk_params(1)
        g.e(f"s_add_u32 s{sT0}, s{sT0}, 1"); qk_params(2); q2(0)
        g.e(f"s_mov_b32 s{sT0}, s{sJ}"); gunit(2, sHB+1)
    else:
        v_params(0)
        g.e(f"s_add_u32 s{sT0}, s{sT0}, 1"); v_params(1)
        g.e(f"s_and_b32 s{sT0}, s{sJ}, 1\ns_add_u32 s{sT0}, s{sT0}, 8"); v_params(2); q2(2560)
        g.e(f"s_mov_b32 s{sT0}, s{sJ}"); gunit(2, sHB+1)
    lab = f"L_non{cls}"
    g.e(f"""
    s_or_b32 s{sT0}, s2, s{sWAVE}
    s_cmp_lg_u32 s{sT0}, 0
    s_cbranch_scc1 {lab}
    s_memrealtime s[6:7]
    """)
    g.append(W(lg=0))
    g.e(f"""
    s_or_b32 s6, s6, 1
    v_mov_b32 v68, s6
    v_mov_b32 v69, 0
    """)
    g.append(I(f"buffer_store_dword v68, v69, {SDBG}, 0 offen sc1", cond=True))
    g.e(f"{lab}:")
    g.e(f"""
    s_mov_b32 s{sC10}, 0x00003F80
    s_mov_b32 s{sC01}, 0x3F800000
    s_mov_b32 s{sC11}, 0x3F803F80
    s_lshl_b32 s{sT0}, s{sWAVE}, 13
    s_add_u32 s{sT0}, s{sT0}, {L_X}
    v_xor_b32 v67, v64, v65
    v_lshlrev_b32 v67, 4, v67
    v_lshlrev_b32 v68, 9, v65
    v_add3_u32 v{vXW}, v67, v68, s{sT0}
    v_lshrrev_b32 v70, 5, v{vLANE}
    v_and_b32 v71, 31, v{vLANE}
    v_and_b32 v72, 7, v71
    v_lshrrev_b32 v73, 3, v71
    v_lshlrev_b32 v73, 7, v73
    """)
    for jj in range(4):
        g.e(f"""
        v_add_u32 v74, {2*jj}, v70
        v_xor_b32 v75, v72, v74
        v_lshlrev_b32 v75, 4, v75
        v_lshlrev_b32 v74, 9, v74
        v_add3_u32 v74, v74, v75, v73
        v_add_u32 v{vXR+jj}, s{sT0}, v74
        """)
    g.e(f"""
    v_and_b32 v74, 15, v{vLANE}
    v_lshrrev_b32 v75, 2, v74
    v_lshlrev_b32 v75, 7, v75
    v_lshl_add_u32 v75, v70, 10, v75
    v_and_b32 v76, 3, v74
    v_lshlrev_b32 v76, 3, v76
    v_and_b32 v77, 16, v{vLANE}
    v_lshl_add_u32 v76, v77, 1, v76
    v_and_b32 v77, 8, v74
    v_lshlrev_b32 v77, 3, v77
    v_xor_b32 v76, v76, v77
    v_add_u32 v{vTR}, v75, v76
    v_xor_b32 v{vTR+1}, 64, v{vTR}
    v_add_u32 v{vTR+2}, 0x10000, v{vTR}
    v_add_u32 v{vTR+3}, 0x10000, v{vTR+1}
    """)
    if cls == 'V':
        g.e(f"""
        v_lshrrev_b32 v74, 2, v71
        v_lshlrev_b32 v74, 14, v74
        v_and_b32 v75, 3, v71
        v_lshlrev_b32 v75, 4, v75
        v_lshl_add_u32 v75, v70, 6, v75
        v_add_u32 v{vEP}, v74, v75
        s_cmp_lt_u32 s{sJ}, 2
        s_cselect_b32 s{sT0}, 0, {OOB}
        v_add_u32 v{vEP1}, s{sT0}, v{vEP}
        """)
    else:
        g.e(f"""
        v_lshlrev_b32 v74, 3, v71
        v_lshl_add_u32 v{vEP}, v70, 14, v74
        """)
    g.e(f"""
    v_lshrrev_b32 v74, 4, v71
    v_mul_u32_u24 v74, 49152, v74
    v_and_b32 v75, 15, v71
    v_lshlrev_b32 v75, 4, v75
    v_lshl_add_u32 v75, v70, 8, v75
    v_add_u32 v{vH}, v74, v75
    """)
    g.e(f"""
    s_lshl_b32 s{sTA}, s2, 2
    s_add_u32 s{sTA}, s{sTA}, s{sWAVE}
    s_mul_i32 s{sTB}, s{sTA}, 6554
    s_lshr_b32 s{sTB}, s{sTB}, 16
    s_mul_i32 s{sT0}, s{sTB}, 10
    s_sub_u32 s{sTC}, s{sTA}, s{sT0}
    s_cmp_lt_u32 s{sTB}, 48
    s_cselect_b32 s36, s{sP+12}, s{sP+4}
    s_cselect_b32 s37, s{sP+13}, s{sP+5}
    s_mov_b32 s38, {640*1280}
    s_cselect_b32 s38, {1536*1280}, s38
    s_mov_b32 s39, 0x00020000
    """)
    g.e(f"""
    v_lshrrev_b32 v74, 2, v64
    v_and_b32 v75, 3, v64
    v_lshl_add_u32 v75, v74, 3, v75
    v_mul_u32_u24 v75, 1280, v75
    v_add_u32 v75, v75, v66
    v_lshlrev_b32 v74, 30, v74
    v_add_u32 v76, v75, v74
    s_cmp_lt_u32 s{sTA}, 720
    s_cselect_b32 s{sT0}, 0, {OOB}
    v_lshlrev_b32 v{vJST}, 4, v{vLANE}
    v_or_b32 v{vJST}, s{sT0}, v{vJST}
    v_or_b32 v75, s{sT0}, v75
    v_or_b32 v76, s{sT0}, v76
    """)
    for kg in range(4):
        g.e(f"""
        s_lshl_b32 s{sT0}, s{sTB}, 2
        s_sub_u32 s{sT0}, s{sT0}, {192-kg}
        s_mul_i32 s{sT1}, s{sT0}, 171
        s_lshr_b32 s{sT1}, s{sT1}, 9
        s_mul_i32 s98, s{sT1}, 3
        s_sub_u32 s98, s{sT0}, s98
        s_mul_i32 s{sT1}, s{sT1}, 20
        s_lshl_b32 s99, s98, 2
        s_cmp_eq_u32 s98, 2
        s_cselect_b32 s99, 16, s99
        s_cselect_b64 s[100:101], -1, 0
        s_add_u32 s{sT1}, s{sT1}, s99
        s_lshl_b32 s{sT0}, s{sTB}, 5
        s_add_u32 s{sT0}, s{sT0}, {16*(kg//2)+4*(kg%2)}
        s_cmp_lt_u32 s{sTB}, 48
        s_cselect_b32 s{sT0}, s{sT0}, s{sT1}
        s_cselect_b64 s[100:101], 0, s[100:101]
        s_mul_i32 s{sT0}, s{sT0}, 1280
        s_lshl_b32 s{sT1}, s{sTC}, 7
        s_add_u32 s{sJS+kg}, s{sT0}, s{sT1}
        v_cndmask_b32 v{vJK+kg}, v75, v76, s[100:101]
        """)
    g.e(f"""
    s_add_u32 s{sT0}, s{sWB}, {L_J}
    v_lshrrev_b32 v74, 4, v{vLANE}
    v_lshlrev_b32 v74, 10, v74
    v_and_b32 v75, 15, v{vLANE}
    v_lshrrev_b32 v76, 2, v75
    v_lshl_add_u32 v74, v76, 7, v74
    v_and_b32 v75, 3, v75
    v_lshl_add_u32 v74, v75, 3, v74
    v_add_u32 v{vJTR}, s{sT0}, v74
    s_sub_u32 s{sT0}, s{sTA}, 720
    s_cmp_lt_u32 s{sT0}, 16
    s_cselect_b32 s{sT1}, 0, {OOB}
    s_and_b32 s{sT0}, s{sT0}, 15
    s_lshl_b32 s{sT0}, s{sT0}, 10
    s_add_u32 s{sT0}, s{sT0}, s{sT1}
    s_add_u32 s{sT0}, s{sT0}, {WS_C}
    v_lshlrev_b32 v{vCST}, 4, v{vLANE}
    v_add_u32 v{vCST}, s{sT0}, v{vCST}
    v_mov_b32 v{vACC}, 0
    v_mov_b32 v{vACC+1}, 0
    v_mov_b32 v{vACC+2}, 0
    v_mov_b32 v{vACC+3}, 0
    """)
    def dots(grp):
        out = Seg()
        for r in range(32):
            x = vX + 32*grp + r
            out.e(f"v_dot2_f32_bf16 v{vACC+(r%2)}, v{x}, s{sC11}, v{vACC+(r%2)}")
            out.e(f"v_dot2_f32_bf16 v{vACC+2+(r%2)}, v{x}, v{x}, v{vACC+2+(r%2)}")
        return out
    for grp in range(5):
        g.append(W(vm=("x", grp*8+7)))
        if grp == 0: stamp(g, 1)
        for cbl in range(2):
            for rg in range(4):
                e = grp*8 + cbl*4 + rg
                g.e(f"ds_write_b128 v{vXW}, {a(4*e,4)} offset:{cbl*4096 + rg*128}")
        for cbl in range(2):
            for jj in range(4):
                sidx = grp*8 + cbl*4 + jj
                g.append(I(f"ds_read_b128 {v(vX+4*sidx,4)}, v{vXR+jj} offset:{cbl*4096}", tag=("xr", sidx)))
        if grp == 0:
            g += dma_stage(5, cls)
            for kg in range(4):
                g.e(f"s_add_u32 m0, s{sWB}, {L_J + kg*1024}")
                g.append(I(f"buffer_load_dwordx4 v{vJK+kg}, {SJ}, s{sJS+kg} offen lds", tag=("job", kg)))
            for tg in range(4):
                g.e(f"""
                s_lshl_b32 s{sT0}, s{sTC}, 2
                s_add_u32 s{sT0}, s{sT0}, {tg}
                s_mul_i32 s{sT1}, s{sT0}, 52
                s_lshr_b32 s{sT1}, s{sT1}, 8
                s_mul_i32 s{sT1}, s{sT1}, 355
                s_add_u32 s{sT0}, s{sT0}, s{sT1}
                s_mul_i32 s{sT1}, s{sTB}, 5
                s_add_u32 s{sT0}, s{sT0}, s{sT1}
                s_lshl_b32 s{sT0}, s{sT0}, 10
                s_add_u32 s{sJS+tg}, s{sT0}, {WS_W}
                """)
        else:
            g.append(W(lg=("xr", grp*8-1)))
            g += dots(grp-1)
    stamp(g, 2)
    g.append(W(lg=("xr", 39), vm=dma_tag(0)))
    g.e("s_barrier")
    return g, dots(4)

def tr_reads(n):
    if n >= 400: return []
    if n < 160: p, m = 0, n
    elif n < 240: p, m = 1, n-160
    else: p, m = 2, n-240
    sig = n // 16
    slot = sig % NSLOT
    if p != 1:
        ks, u = m // 4, m % 4
        off = (ks % 4)*4096 + (u//2)*2048; t = u % 2
    else:
        ks, u = m // 2, m % 2
        off = (ks % 8)*2048; t = u
    off += slot*16384
    reg = vTR + t
    if off >= 65536: off -= 65536; reg += 2
    f = aWF + 4*(n % 8)
    return [I(f"ds_read_b64_tr_b16 {a(f,2)}, v{reg} offset:{off}", tag=("tr", n, 0)),
            I(f"ds_read_b64_tr_b16 {a(f+2,2)}, v{reg} offset:{off+512}", tag=("tr", n, 1))]

def p1_mfma(n, cls):
    if n < 160: p, m = 0, n
    elif n < 240: p, m = 1, n-160
    else: p, m = 2, n-240
    if p != 1: ks, u = m // 4, m % 4
    else: ks, u = m // 2, m % 2
    acc = (aA, aB, aC)[p] + 16*u
    wf = a(aWF + 4*(n % 8), 4); x = v(vX + 4*ks, 4)
    c = "0" if ks == 0 else a(acc, 16)
    if cls == 'V' and p < 2: return I(f"v_mfma_f32_32x32x16_bf16 {a(acc,16)}, {x}, {wf}, {c}")
    return I(f"v_mfma_f32_32x32x16_bf16 {a(acc,16)}, {wf}, {x}, {c}")

def center(ks, dot=True):
    out = Seg()
    if "--nocenter" in sys.argv and ks > 0: return out
    if "--center5" in sys.argv and ks > 0:
        for r in range(4):
            x = vX + 4*ks + r
            out.e(f"v_lshlrev_b32 v{vLN+2*r}, 16, v{x}\nv_and_b32 v{vLN+2*r+1}, 0xffff0000, v{x}")
            out.e(f"v_add_f32 v{vLN+2*r}, v{vNM}, v{vLN+2*r}\nv_add_f32 v{vLN+2*r+1}, v{vNM}, v{vLN+2*r+1}")
            out.e(f"v_cvt_pk_bf16_f32 v{vX+4*ks+r}, v{vLN+2*r}, v{vLN+2*r+1}")
        return out
    if "--center4" in sys.argv and ks > 0:
        for r in range(4):
            x = vX + 4*ks + r
            out.e(f"v_lshlrev_b32 v{vLN+2*r}, 16, v{x}\nv_and_b32 v{vLN+2*r+1}, 0xffff0000, v{x}")
            out.e(f"v_pk_add_f32 v[{vLN+2*r}:{vLN+2*r+1}], v[{vLN+2*r}:{vLN+2*r+1}], v[{vNM}:{vNM+1}] op_sel_hi:[1,0]")
            out.e(f"v_cvt_pk_bf16_f32 v{vX+4*ks+r}, v{vLN+2*r}, v{vLN+2*r+1}")
        return out
    for r in range(4):
        x = vX + 4*ks + r
        out.e(f"v_dot2_f32_bf16 v{vLN+2*r}, v{x}, s{sC10}, v{vNM}")
        out.e(f"v_dot2_f32_bf16 v{vLN+2*r+1}, v{x}, s{sC01}, v{vNM}")
    for r in range(4):
        out.e(f"v_cvt_pk_bf16_f32 v{vX+4*ks+r}, v{vLN+2*r}, v{vLN+2*r+1}")
    return out

tmpctr = [0]
def epi_qk(acc, t, sbase, vscale, tag):
    out = Seg()
    for g4 in range(4):
        T = vTMP + 8*(tmpctr[0] % 4); tmpctr[0] += 1
        for e in range(4): out.e(f"v_accvgpr_read_b32 v{T+e}, a{acc+4*g4+e}")
        for e in range(4): out.e(f"v_mul_f32 v{T+e}, v{vscale}, v{T+e}")
        out.e(f"s_add_u32 s{sT0}, s{sbase}, {(8*t+2*g4)*16384}")
        out.e(f"v_cvt_pk_bf16_f32 v{T+4}, v{T}, v{T+1}\nv_cvt_pk_bf16_f32 v{T+5}, v{T+2}, v{T+3}")
        out.append(I(f"buffer_store_dwordx2 {v(T+4,2)}, v{vEP}, {SWS}, s{sT0} offen sc1", tag=tag))
    return out
def epi_v(acc, t, sbase, voff, tag):
    out = Seg()
    out.e(f"s_add_u32 s{sT1}, s{sbase}, {8*t*16384}")
    for m in range(2):
        T = vTMP + 16*(tmpctr[0] % 2); tmpctr[0] += 1
        for e in range(8): out.e(f"v_accvgpr_read_b32 v{T+e}, a{acc+8*m+e}")
        for e in range(8): out.e(f"v_mul_f32 v{T+e}, v{vR16+8*m+e}, v{T+e}")
        for e in range(4): out.e(f"v_cvt_pk_bf16_f32 v{T+8+e}, v{T+2*e}, v{T+2*e+1}")
        out.append(I(f"buffer_store_dwordx4 {v(T+8,4)}, v{voff}, {SWS}, s{sT1} offen offset:{128*m} sc1", tag=tag))
    return out
def epi_g(acc, t, shb, tag):
    out = Seg()
    ag = acc + 16*t; au = acc + 32 + 16*t
    for pp in range(2):
        P = vTMP + 24 + 4*(pp)
        for c4 in range(2):
            T = vTMP + 8*(tmpctr[0] % 3); tmpctr[0] += 1
            r0 = 8*pp + 4*c4
            for e in range(4): out.e(f"v_accvgpr_read_b32 v{T+e}, a{ag+r0+e}")
            for e in range(4): out.e(f"v_mul_f32 v{T+e}, v{vSG}, v{T+e}")
            for e in range(4): out.e(f"v_exp_f32 v{T+e}, v{T+e}")
            for e in range(4): out.e(f"v_accvgpr_read_b32 v{T+4+e}, a{au+r0+e}")
            for e in range(4): out.e(f"v_fma_f32 v{T+e}, v{T+e}, v{vS}, v{vS}")
            for e in range(4): out.e(f"v_rcp_f32 v{T+e}, v{T+e}")
            for e in range(4): out.e(f"v_mul_f32 v{T+4+e}, v{T+e}, v{T+4+e}")
            out.e(f"v_cvt_pk_bf16_f32 v{P+2*c4}, v{T+4}, v{T+5}\nv_cvt_pk_bf16_f32 v{P+2*c4+1}, v{T+6}, v{T+7}")
        out.append(I(f"buffer_store_dwordx4 {v(P,4)}, v{vH}, {SWS}, s{shb} offen offset:{t*1024+pp*512} sc1", tag=tag))
    return out

def job_process():
    out = Seg()
    out.append(W(vm=("job", 3)))
    for tg in range(4):
        T = vTMP + 4*tg
        out.append(I(f"ds_read_b64_tr_b16 {v(T,2)}, v{vJTR} offset:{tg*32}", tag=("jtr", tg, 0)))
        out.append(I(f"ds_read_b64_tr_b16 {v(T+2,2)}, v{vJTR} offset:{tg*32+512}", tag=("jtr", tg, 1)))
    out.e(f"""
    v_and_b32 v{vTMP+16}, 3, v{vLANE}
    v_cmp_eq_u32 vcc, 0, v{vTMP+16}
    v_mov_b32 v{vTMP+17}, s{sC11}
    v_mov_b32 v{vTMP+20}, 0
    v_cndmask_b32 v{vTMP+16}, v{vTMP+20}, v{vTMP+17}, vcc
    v_mov_b32 v{vTMP+17}, v{vTMP+16}
    v_mov_b32 v{vTMP+18}, v{vTMP+16}
    v_mov_b32 v{vTMP+19}, v{vTMP+16}
    """)
    out.append(I(f"buffer_store_dwordx4 {v(vTMP+16,4)}, v{vCST}, {SWS}, 0 offen sc1", tag="cst"))
    out.append(W(lg=("jtr", 3, 1)))
    for tg in range(4):
        out.append(I(f"buffer_store_dwordx4 {v(vTMP+4*tg,4)}, v{vJST}, {SWS}, s{sJS+tg} offen sc1", tag=("jst", tg)))
    return out

def spin(seg, name, addr, dst, width, srd_, cmp_lines):
    seg.e(f"s_mov_b32 s{sSPIN}, 0x40000")
    seg.e(f"L_sp{name}:")
    seg.e(cmp_lines)
    seg.e(f"s_cbranch_vccz L_ok{name}")
    seg.e(f"s_sub_u32 s{sSPIN}, s{sSPIN}, 1\ns_cbranch_scc1 L_ok{name}\ns_sleep 1")
    op = {1:"buffer_load_dword",4:"buffer_load_dwordx4"}[width]
    seg.append(I(f"{op} {v(dst,width)}, v{addr}, {srd_}, 0 offen sc1", cond=True))
    seg.e("s_waitcnt vmcnt(0)")
    seg.e(f"s_branch L_sp{name}")
    seg.e(f"L_ok{name}:")

def wave0_flag(seg, name, soff_reg):
    seg.e(f"s_cmp_lg_u32 s{sWAVE}, 0\ns_cbranch_scc1 L_fl{name}")
    seg.e(f"s_mov_b64 exec, 1")
    seg.append(I(f"buffer_store_dword v{vNON}, v{vZERO}, {SWS}, s{soff_reg} offen sc1", cond=True))
    seg.e(f"s_mov_b64 exec, -1")
    seg.e(f"L_fl{name}:")
vZERO = 37

def attn_addr_setup():
    g = Seg()
    T = vLN
    g.e(f"""
    s_lshl_b32 s{sHD}, s{sXCD}, 2
    s_lshr_b32 s{sTA}, s{sLOC}, 3
    s_add_u32 s{sHD}, s{sHD}, s{sTA}
    s_and_b32 s{sQB}, s{sLOC}, 7
    s_and_b32 s{sKH}, s{sWAVE}, 1
    s_lshr_b32 s{sTA}, s{sXCD}, 1
    s_lshl_b32 s{sTA}, s{sTA}, 3
    s_add_u32 s{sRB}, s{sTA}, s{sQB}
    s_and_b32 s{sTA}, s{sXCD}, 1
    s_lshl_b32 s{sTA}, s{sTA}, 2
    s_lshr_b32 s{sTB}, s{sLOC}, 3
    s_add_u32 s{sCB}, s{sTA}, s{sTB}
    s_mul_i32 s{sTA}, s{sHD}, {5*16384}
    v_lshrrev_b32 v{T}, 5, v{vLANE}
    v_and_b32 v{T+1}, 31, v{vLANE}
    v_lshlrev_b32 v{T+2}, 3, v{T+1}
    v_add_u32 v{T+2}, s{sTA}, v{T+2}
    v_lshl_add_u32 v{vK1A}, v{T}, 15, v{T+2}
    v_add_u32 v{vK1B}, 16384, v{vK1A}
    v_add_u32 v{T+2}, 65536, v{T+2}
    v_cmp_eq_u32 vcc, 0, v{T}
    v_mov_b32 v{T+3}, {WS_C-WS_K}
    v_mov_b32 v{vQ2}, {OOB}
    v_cndmask_b32 v{vK2}, v{T+3}, v{T+2}, vcc
    v_cndmask_b32 v{vQ2}, v{vQ2}, v{T+2}, vcc
    v_lshrrev_b32 v{T+2}, 2, v{T+1}
    v_lshlrev_b32 v{T+2}, 14, v{T+2}
    v_add_u32 v{T+2}, s{sTA}, v{T+2}
    v_mov_b32 v{T+3}, {WS_C-WS_V}
    v_cmp_gt_u32 vcc, 20, v{T+1}
    s_lshl_b32 s{sK0}, s{sKH}, 13
    s_add_u32 s{sV0}, s{sK0}, {WS_V}
    v_cndmask_b32 v{T+2}, v{T+3}, v{T+2}, vcc
    v_mov_b32 v{T+3}, {OOB}
    v_cmp_gt_u32 vcc, 24, v{T+1}
    s_add_u32 s{sV1}, s{sV0}, 4096
    s_add_u32 s{sK0}, s{sK0}, {WS_K}
    v_cndmask_b32 v{T+2}, v{T+3}, v{T+2}, vcc
    v_and_b32 v{T+3}, 3, v{T+1}
    v_lshlrev_b32 v{T+3}, 4, v{T+3}
    v_lshl_add_u32 v{T+3}, v{T}, 6, v{T+3}
    v_add_u32 v{vVL}, v{T+2}, v{T+3}
    s_add_u32 s{sK1}, s{sK0}, 4096
    s_lshl_b32 s{sTA}, s{sQB}, 1
    s_lshr_b32 s{sTB}, s{sWAVE}, 1
    s_add_u32 s{sTA}, s{sTA}, s{sTB}
    s_lshl_b32 s{sTA}, s{sTA}, 10
    s_lshl_b32 s{sTB}, s{sKH}, 9
    s_add_u32 s{sQLO}, s{sTA}, s{sTB}
    s_xor_b32 s{sQHI}, s{sQLO}, 512
    s_lshl_b32 s{sOST}, s{sQLO}, 1
    s_mul_i32 s{sTB}, s{sHD}, {3*32768}
    s_add_u32 s{sOST}, s{sOST}, s{sTB}
    s_add_u32 s{sOST}, s{sOST}, {WS_O}
    v_lshlrev_b32 v{T+2}, 4, v{T+1}
    v_lshl_add_u32 v{vOSA}, v{T}, 15, v{T+2}
    v_lshl_add_u32 v{vOSC}, v{T}, 3, v{T+2}
    v_add_u32 v{vOSC}, 65536, v{vOSC}
    v_lshlrev_b32 v{vLIN}, 4, v{vLANE}
    v_add_u32 v{vH3}, 49152, v{vLIN}
    v_add_u32 v{vH3+1}, 98304, v{vLIN}
    v_add_u32 v{vH3+2}, 147456, v{vLIN}
    v_lshrrev_b32 v{T+2}, 4, v{vLANE}
    v_and_b32 v{T+3}, 15, v{vLANE}
    v_lshlrev_b32 v{T+3}, 4, v{T+3}
    v_lshl_add_u32 v{vO3}, v{T+2}, 15, v{T+3}
    s_mul_i32 s{sTA}, s{sWAVE}, 6144
    v_add_u32 v{vRW}, s{sTA}, v{vLIN}
    s_xor_b32 s{sTB}, s{sWAVE}, 1
    s_mul_i32 s{sTA}, s{sTB}, 6144
    v_add_u32 v{vRR}, s{sTA}, v{vLIN}
    s_lshr_b32 s{sTA}, s{sRB}, 1
    s_lshl_b32 s{sTA}, s{sTA}, 8
    s_add_u32 s{sTA}, s{sTA}, {F_H}
    v_lshrrev_b32 v{T+3}, 2, v{T+3}
    v_add_u32 v{vFH}, s{sTA}, v{T+3}
    s_lshr_b32 s{sTA}, s{sRB}, 2
    s_lshl_b32 s{sTA}, s{sTA}, 10
    s_add_u32 s{sTA}, s{sTA}, {F_O}
    v_lshrrev_b32 v{T+2}, 3, v{T+1}
    v_and_b32 v{T+3}, 7, v{T+1}
    v_lshlrev_b32 v{T+3}, 2, v{T+3}
    v_lshl_add_u32 v{T+3}, v{T+2}, 8, v{T+3}
    v_add_u32 v{vFO}, s{sTA}, v{T+3}
    s_mul_i32 s{sTA}, s{sCB}, {72*5*1024}
    s_mul_i32 s{sTB}, s{sWAVE}, {12*5*1024}
    s_add_u32 s{sWP}, s{sTA}, s{sTB}
    s_add_u32 s{sWP}, s{sWP}, {WS_W}
    s_mul_i32 s{sTA}, s{sRB}, {4*48*1024}
    s_mul_i32 s{sTB}, s{sWAVE}, {12*1024}
    s_add_u32 s{sHP}, s{sTA}, s{sTB}
    s_add_u32 s{sHP}, s{sHP}, {WS_H}
    s_lshl_b32 s{sTA}, s{sRB}, 10
    s_mul_i32 s{sTB}, s{sWAVE}, {24*32768}
    s_add_u32 s{sOP}, s{sTA}, s{sTB}
    s_add_u32 s{sOP}, s{sOP}, {WS_O}
    s_mov_b32 s{sSAFE}, 0
    """)
    return g

def spread(gaps, group, g0, g1):
    if "--novalu" in sys.argv and g0 >= 160: group = [i for i in group if i.cls not in ("valu","trans")]
    tot = sum(i.cost() for i in group) or 1
    acc = 0
    for i in group:
        k = g0 + min(g1-g0-1, int(acc * (g1-g0) / tot))
        gaps[k].append(i); acc += i.cost()

def phase1(cls):
    g, lastdots = class_setup(cls)
    for n in range(4): g += tr_reads(n)
    g += lastdots
    inv = f2u(1.0/640.0)
    A0, A1, A2, A3 = vACC, vACC+1, vACC+2, vACC+3
    g.e(f"""
    s_mov_b32 s{sT0}, {inv}
    s_mov_b32 s{sT1}, {f2u(1e-5)}
    v_add_f32 v{A0}, v{A0}, v{A1}
    v_add_f32 v{A2}, v{A2}, v{A3}
    v_mov_b32 v{A1}, v{A0}
    v_mov_b32 v{A3}, v{A2}
    v_permlane32_swap_b32 v{A0}, v{A1}
    v_permlane32_swap_b32 v{A2}, v{A3}
    v_add_f32 v{A0}, v{A0}, v{A1}
    v_add_f32 v{A2}, v{A2}, v{A3}
    v_mul_f32 v{A0}, s{sT0}, v{A0}
    v_mul_f32 v{A2}, s{sT0}, v{A2}
    v_fma_f32 v{A2}, -v{A0}, v{A0}, v{A2}
    v_max_f32 v{A2}, 0, v{A2}
    v_cvt_pk_bf16_f32 v{A0}, v{A0}, v{A2}
    v_and_b32 v{A2}, 0xffff0000, v{A0}
    v_lshlrev_b32 v{A0}, 16, v{A0}
    v_add_f32 v{A2}, s{sT1}, v{A2}
    v_sub_f32 v{vNM}, 0, v{A0}
    v_cvt_pk_bf16_f32 v{A2}, v{A2}, v{A2}
    v_lshlrev_b32 v{A2}, 16, v{A2}
    v_sqrt_f32 v{A2}, v{A2}
    """)
    g += center(0)
    g.e(f"""
    v_cvt_pk_bf16_f32 v{A2}, v{A2}, v{A2}
    v_lshlrev_b32 v{vS}, 16, v{A2}
    v_rcp_f32 v{vR}, v{vS}
    v_mov_b32 v{vZERO}, 0
    """)
    post = Seg()
    post.e(f"""
    v_mul_f32 v{vSG}, {f2u(-LOG2E)}, v{vR}
    """)
    if cls != 'V':
        for k in range(3): post.e(f"v_mul_f32 v{vSCL+k}, s{sSC+k}, v{vR}")
    else:
        post.e(f"""
        s_lshl_b32 s{sT0}, s{sWAVE}, 13
        s_add_u32 s{sT0}, s{sT0}, {L_X}
        v_and_b32 v{vSCL}, 31, v{vLANE}
        v_lshlrev_b32 v{vSCL}, 2, v{vSCL}
        v_add_u32 v{vSCL}, s{sT0}, v{vSCL}
        v_lshrrev_b32 v{vSCL+1}, 5, v{vLANE}
        v_lshlrev_b32 v{vSCL+1}, 4, v{vSCL+1}
        v_add_u32 v{vSCL+1}, s{sT0}, v{vSCL+1}
        ds_write_b32 v{vSCL}, v{vR}
        """)
        for k in range(4):
            post.append(I(f"ds_read_b128 {v(vR16+4*k,4)}, v{vSCL+1} offset:{32*k}", tag=("r16", k)))
    stamp(g, 3)
    gaps = []
    for n in range(400):
        gp = []
        if n % 2 == 0: gp.append(W(lg=("tr", n+1, 1)))
        if n % 16 == 12 and n//16 + 1 < 25:
            sig = n // 16
            gp.append(W(vm=dma_tag(sig+1))); gp[-1].comment = ("stagewait", sig)
            gp.append(I("s_barrier"))
        gp.append(p1_mfma(n, cls))
        gp += tr_reads(n+4)
        gaps.append(gp)
    for sig in range(24):
        d = dma_stage(sig+6, cls)
        if d: spread(gaps, d, 16*sig+12, 16*sig+20)
    spread(gaps, post, 0, 3)
    for ks in range(1, 40): spread(gaps, center(ks), max(0, 4*(ks-1)-1), 4*ks-1)
    non = Seg()
    non.append(I(f"buffer_load_dword v{vNON}, v{vZERO}, {SDBG}, 0 offen sc1", tag="non"))
    non.e(f"""
    v_lshrrev_b32 v{vPA}, 2, v{vLANE}
    v_lshlrev_b32 v{vPA}, 8, v{vPA}
    v_and_b32 v{vLN}, 3, v{vLANE}
    v_lshl_add_u32 v{vPA}, v{vLN}, 4, v{vPA}
    v_add_u32 v{vPA}, {F_QKV}, v{vPA}
    """)
    spread(gaps, job_process() + non, 161, 172)
    if cls == 'A':
        e0 = epi_g(aA, 0, sHB, "h0") + epi_g(aA, 1, sHB, "h0")
        cut = len(e0)*3//4
        spread(gaps, e0[:cut], 172, 240)
        rest0 = e0[cut:]
        e1 = epi_qk(aB, 0, sEB+2, vSCL+2, "qkv") + epi_qk(aB+16, 1, sEB+2, vSCL+2, "qkv")
    elif cls == 'B':
        e0 = Seg()
        for u in range(4): e0 += epi_qk(aA+16*u, u % 2, sEB + u//2, vSCL + u//2, "qkv")
        spread(gaps, e0, 172, 240); rest0 = []
        e1 = epi_qk(aB, 0, sEB+2, vSCL+2, "qkv") + epi_qk(aB+16, 1, sEB+2, vSCL+2, "qkv")
    else:
        e0 = Seg(); e0.append(W(lg=("r16", 3)))
        for u in range(4): e0 += epi_v(aA+16*u, u % 2, sEB + u//2, vEP, "qkv")
        spread(gaps, e0, 172, 240); rest0 = []
        e1 = epi_v(aB, 0, sEB+2, vEP1, "qkv") + epi_v(aB+16, 1, sEB+2, vEP1, "qkv")
    spread(gaps, e1, 242, 270)
    SIG = 18
    for ins in gaps[16*SIG+12]:
        if ins.comment == ("stagewait", SIG): ins.wvm = [dma_tag(SIG+1), "qkv", "non", ("jst",3)]
    pub = Seg()
    pub.e(f"""
    s_lshr_b32 s{sTA}, s2, 4
    s_lshl_b32 s{sTA}, s{sTA}, 8
    s_and_b32 s{sTB}, s2, 15
    s_lshl_b32 s{sTB}, s{sTB}, 2
    s_add_u32 s{sTA}, s{sTA}, s{sTB}
    s_add_u32 s{sFL}, s{sTA}, {F_QKV}
    """)
    spread(gaps, pub, 272, 280)
    pb = Seg()
    spin(pb, f"N{cls}", vZERO, vNON, 1, SDBG, f"v_cmp_eq_u32 vcc, 0, v{vNON}")
    wave0_flag(pb, f"Q{cls}", sFL)
    gaps[16*SIG+12] += pb
    if rest0: spread(gaps, rest0, 304, 350)
    spread(gaps, attn_addr_setup(), 352 if rest0 else 304, 392)
    gaps[385].append(I(f"buffer_load_dwordx4 {v(44,4)}, v{vPA}, {SWS}, 0 offen sc1", tag="pollq"))
    for n, gp in enumerate(gaps):
        if n == 160: stamp(g, 4)
        if n == 240: stamp(g, 5)
        g += gp
    stamp(g, 6)
    g.e("s_branch L_att0") if cls != 'V' else None
    return g

def kv_set(t): return aKV + 14*(t % 4)
def k_loads(t):
    b = kv_set(t); so = sK0 if t < 16 else sK1; off = (t % 16)*256
    return [I(f"buffer_load_dwordx2 {a(b,2)}, v{vK1A}, {SWS}, s{so} offen offset:{off} sc1", tag=("k",t,0)),
            I(f"buffer_load_dwordx2 {a(b+2,2)}, v{vK1B}, {SWS}, s{so} offen offset:{off} sc1", tag=("k",t,1)),
            I(f"buffer_load_dwordx2 {a(b+4,2)}, v{vK2}, {SWS}, s{so} offen offset:{off} sc1", tag=("k",t,2))]
def v_loads(t):
    b = kv_set(t) + 6; so = sV0 if t < 16 else sV1; off = (t % 16)*256
    return [I(f"buffer_load_dwordx4 {a(b,4)}, v{vVL}, {SWS}, s{so} offen offset:{off} sc1", tag=("v",t,0)),
            I(f"buffer_load_dwordx4 {a(b+4,4)}, v{vVL}, {SWS}, s{so} offen offset:{off+128} sc1", tag=("v",t,1))]
def q_loads():
    out = []
    for u in range(4):
        b = aQ + 6*u; so = sQLO if u < 2 else sQHI; off = (u % 2)*256
        out.append(I(f"buffer_load_dwordx2 {a(b,2)}, v{vK1A}, {SWS}, s{so} offen offset:{off} sc1", tag=("q",u,0)))
        out.append(I(f"buffer_load_dwordx2 {a(b+2,2)}, v{vK1B}, {SWS}, s{so} offen offset:{off} sc1", tag=("q",u,1)))
        out.append(I(f"buffer_load_dwordx2 {a(b+4,2)}, v{vQ2}, {SWS}, s{so} offen offset:{off} sc1", tag=("q",u,2)))
    return out
def s_mfma(n):
    t, u = n // 4, n % 4
    S = v(16*(n % 2), 16); k = kv_set(t); q = aQ + 6*u
    return (I(f"v_mfma_f32_32x32x16_bf16 {S}, {a(k,4)}, {a(q,4)}, 0"),
            I(f"v_mfma_f32_32x32x8_bf16 {S}, {a(k+4,2)}, {a(q+4,2)}, {S}"))
def pv_mfma(n):
    t, u = n // 4, n % 4
    O = a(aO + 16*u, 16); vv = kv_set(t) + 6; P = 32 + 8*(n % 2)
    return (I(f"v_mfma_f32_32x32x16_bf16 {O}, {a(vv,4)}, {v(P,4)}, {'0' if t == 0 else O}"),
            I(f"v_mfma_f32_32x32x16_bf16 {O}, {a(vv+4,4)}, {v(P+4,4)}, {O}"))
def softmax_valu(n):
    S = 16*(n % 2); P = 32 + 8*(n % 2)
    E = lambda i: I(f"v_exp_f32 v{S+i}, v{S+i}")
    C = lambda k: I(f"v_cvt_pk_bf16_f32 v{P+k}, v{S+2*k}, v{S+2*k+1}")
    return [E(0),E(1),E(2),C(0),E(3),E(4), C(1),E(5),E(6),C(2),E(7),E(8), C(3),E(9),E(10),C(4),E(11),E(12), C(5),E(13),E(14),E(15),C(6),C(7)]

def p3_frags():
    fr = []
    for ks in range(12):
        fr += [("w", ks, t) for t in range(5)] + [("h", ks, u) for u in range(4)]
    for ks in range(12, 18):
        fr += [("w", ks, t) for t in range(5)] + [("o", ks, u) for u in range(4)]
    return fr
PRE_SLOTS = [a(88+4*i,4) for i in range(27 if STAMPS else 28)] + [v(64+4*i,4) for i in range(48)]
KV_SLOTS = [a(aKV+4*i,4) for i in range(14)]
def p3_load(f, reg):
    kind, ks, x = f
    if kind == "w":
        lin = ks*5 + x if ks < 12 else None
        if ks < 12: off = (ks*5 + x)*1024; base = sWP
        else: off = ((ks-12)*5 + x)*1024; base = sWP2
        hi, lo = off // 4096 * 4096, off % 4096
        return (f"s_add_u32 s{sTW}, s{base}, {hi}", ("w", base, hi)), I(f"buffer_load_dwordx4 {reg}, v{vLIN}, {SWS}, s{sTW} offen offset:{lo} sc1", tag=f)
    if kind == "h":
        off = ks*1024; hi, lo = off // 4096 * 4096, off % 4096
        vr = vLIN if x == 0 else vH3 + x - 1
        return (f"s_add_u32 s{sTH}, s{sHP}, {hi}", ("h", hi)), I(f"buffer_load_dwordx4 {reg}, v{vr}, {SWS}, s{sTH} offen offset:{lo} sc1", tag=f)
    if kind == "o":
        return (f"s_add_u32 s{sTH}, s{sOP}, {(ks-12)*4*32768}", ("o", ks)), I(f"buffer_load_dwordx4 {reg}, v{vO3}, {SWS}, s{sTH} offen offset:{x*256} sc1", tag=f)
sWP2 = 80; sTW = 81; sTH = 82
class Loader:
    def __init__(self): self.w = None; self.h = None
    def emit(self, f, reg):
        (sal, key), ld = p3_load(f, reg)
        out = []
        if f[0] == "w":
            if self.w != key: out.append(I(sal)); self.w = key
        else:
            if self.h != key: out.append(I(sal)); self.h = key
        out.append(ld); return out

vFTMP = 64
sFO = 83
L_VOTE = 0x8000; L_R3 = 0x9000; R3S = 21504

def attention(regmap, loader):
    g = Seg()
    g.e("L_att0:")
    g.append(W(vm="pollq"))
    spin(g, "Q", vPA, 44, 4, SWS, f"v_xor_b32 v44, v44, v{vNON}\nv_xor_b32 v45, v45, v{vNON}\nv_xor_b32 v46, v46, v{vNON}\nv_xor_b32 v47, v47, v{vNON}\nv_or3_b32 v44, v44, v45, v46\nv_or_b32 v44, v44, v47\nv_cmp_ne_u32 vcc, 0, v44")
    stamp(g, 7)
    g += q_loads()
    for t in range(3): g += k_loads(t) + v_loads(t)
    g += epi_g(aC, 0, sHB+1, "h1") + epi_g(aC, 1, sHB+1, "h1")
    g.e(f"""
    v_readfirstlane_b32 s{sNON}, v{vNON}
    s_lshl_b32 s{sTA}, s{sMB}, 8
    s_lshl_b32 s{sTB}, s{sJ}, 2
    s_add_u32 s{sTA}, s{sTA}, s{sTB}
    s_add_u32 s{sFL}, s{sTA}, {F_H}
    s_mul_i32 s{sTA}, s{sCB}, {72*5*1024}
    s_mul_i32 s{sTB}, s{sWAVE}, {6*5*1024}
    s_add_u32 s{sWP2}, s{sTA}, s{sTB}
    s_add_u32 s{sWP2}, s{sWP2}, {WS_W + 48*5*1024}
    s_lshl_b32 s{sTA}, s{sQB}, 10
    s_lshr_b32 s{sTB}, s{sHD}, 3
    s_lshl_b32 s{sTB}, s{sTB}, 8
    s_add_u32 s{sTA}, s{sTA}, s{sTB}
    s_and_b32 s{sTB}, s{sHD}, 7
    s_lshl_b32 s{sTB}, s{sTB}, 2
    s_add_u32 s{sTA}, s{sTA}, s{sTB}
    s_add_u32 s{sFO}, s{sTA}, {F_O}
    """)
    stamp(g, 8)
    g.e("L_att1:")
    g.append(W(vm=[("q",3,2), ("k",0,2)]))
    m = s_mfma(0); g.append(m[0]); g.append(m[1])
    free = [[] for _ in range(128*4)]
    for t in range(32):
        if t + 3 < 32:
            kl = k_loads(t+3); vl = v_loads(t+3)
            for i in range(3): free[16*t + i].append(kl[i])
            for i in range(2): free[16*t + 4 + i].append(vl[i])
        if t + 1 < 32: free[16*t + 11].append(W(vm=[("k",t+1,2), ("v",t+1,1)]))
    free[3].append(W(vm=("v",0,1)))
    pub = Seg(); pub.append(W(vm="h1")); pub.e("s_barrier")
    pub.e(f"s_cmp_lg_u32 s{sWAVE}, 0\ns_cbranch_scc1 L_flH\ns_mov_b64 exec, 1\nv_mov_b32 v{vFTMP}, s{sNON}\nv_mov_b32 v{vFTMP+1}, 0")
    pub.append(I(f"buffer_store_dword v{vFTMP}, v{vFTMP+1}, {SWS}, s{sFL} offen sc1", cond=True))
    pub.e(f"s_mov_b64 exec, -1\nL_flH:")
    free[16*1 + 7] += pub
    free[16*8 + 7].append(I(f"buffer_load_dword v{vFTMP+2}, v{vFH}, {SWS}, 0 offen sc1", tag="pollh"))
    chk = Seg(); chk.append(W(vm="pollh"))
    spin(chk, "H", vFH, vFTMP+2, 1, SWS, f"v_cmp_ne_u32 vcc, s{sNON}, v{vFTMP+2}")
    free[16*10 + 7] += chk
    fr = p3_frags()
    pos = []
    for t in range(11, 32):
        pos += [16*t + i for i in (6,7,8,9,10,12,13,14,15)]
    q = []
    for i, reg in enumerate(PRE_SLOTS):
        regmap[fr[i]] = reg
        q += loader.emit(fr[i], reg)
    step = len(pos) / len(q)
    assert step >= 1.0
    for i, ins in enumerate(q): free[pos[int(i*step)]].append(ins)
    for n in range(128):
        va = softmax_valu(n)
        ms = [None]*4
        if n + 1 < 128: ms[0], ms[1] = s_mfma(n+1)
        if n >= 1: ms[2], ms[3] = pv_mfma(n-1)
        for p in range(4):
            if ms[p] is not None: g.append(ms[p])
            g += free[4*n + p]
            g += va[6*p:6*p+6]
    m = pv_mfma(127); g.append(m[0]); g.append(m[1])
    stamp(g, 9)
    for u in range(2):
        for k in range(12): g.e(f"v_accvgpr_read_b32 v{12*u+k}, a{aO+16*u+k}")
    for u in (2, 3):
        for k in range(3):
            g.e(f"ds_write_b128 v{vRW}, {a(aO+16*u+4*k,4)} offset:{((u-2)*3+k)*1024}")
    g.append(W(lg=0)); g.e("s_barrier")
    for k in range(6): g.append(I(f"ds_read_b128 {v(24+4*k,4)}, v{vRR} offset:{k*1024}", tag=("red",k)))
    g.e(f"s_mov_b32 s{sTA}, {f2u(2.0**-60)}\ns_mov_b32 s{sTB}, {f2u(2.0**60)}\ns_mov_b32 s{sTC}, 0x7f000000")
    for u in range(2):
        g.append(W(lg=("red", 3*u+2)))
        for k in range(12): g.e(f"v_add_f32 v{12*u+k}, v{12*u+k}, v{24+12*u+k}")
    g.e(f"""
    v_mov_b32 v24, v8
    v_mov_b32 v26, v8
    v_mov_b32 v25, v20
    v_mov_b32 v27, v20
    v_add_f32 v28, |v0|, |v1|
    v_add_f32 v29, |v12|, |v13|
    v_permlane32_swap_b32 v26, v24
    v_permlane32_swap_b32 v27, v25
    """)
    for k in range(2, 12):
        g.e(f"v_add_f32 v28, v28, |v{k}|\nv_add_f32 v29, v29, |v{12+k}|")
        if k == 3: g.e("v_rcp_f32 v30, v24\nv_rcp_f32 v31, v25")
    g.e(f"""
    v_min_f32 v26, v24, v25
    v_max_f32 v27, v24, v25
    v_add_f32 v28, v28, v29
    v_cmp_nge_f32 vcc, v26, s{sTA}
    v_cmp_nle_f32 s[98:99], v27, s{sTB}
    v_cmp_nlt_f32 s[100:101], v28, s{sTC}
    """)
    for u in range(2):
        for k in range(12): g.e(f"v_mul_f32 v{12*u+k}, v{30+u}, v{12*u+k}")
    g.e(f"""
    s_or_b64 vcc, vcc, s[98:99]
    s_or_b64 vcc, vcc, s[100:101]
    s_cselect_b32 s{sTA}, 1, 0
    s_lshl_b32 s{sTB}, s{sWAVE}, 2
    s_add_u32 s{sTB}, s{sTB}, {L_VOTE}
    v_mov_b32 v24, s{sTA}
    v_mov_b32 v25, s{sTB}
    """)
    for u in range(2):
        for k in range(6): g.e(f"v_cvt_pk_bf16_f32 v{32+6*u+k + (2 if u else 0)}, v{12*u+2*k}, v{12*u+2*k+1}")
    g.e("ds_write_b32 v25, v24")
    g.append(I(f"buffer_store_dwordx4 v[32:35], v{vOSA}, {SWS}, s{sOST} offen sc1", tag="ost"))
    g.append(I(f"buffer_store_dwordx2 v[36:37], v{vOSC}, {SWS}, s{sOST} offen sc1", tag="ost"))
    g.append(I(f"buffer_store_dwordx4 v[40:43], v{vOSA}, {SWS}, s{sOST} offen offset:512 sc1", tag="ost"))
    g.append(I(f"buffer_store_dwordx2 v[44:45], v{vOSC}, {SWS}, s{sOST} offen offset:512 sc1", tag="ost"))
    g.e(f"v_mov_b32 v25, {L_VOTE}")
    g.append(W(lg=0)); g.e("s_barrier")
    g.append(I(f"ds_read_b128 v[28:31], v25", tag="votes"))
    stamp(g, 10)
    return g

vLA = 0; vGO = 5; vXD = 10; vW3 = 20; vP3T = 22
def phase3(regmap, loader):
    g = Seg()
    fr = p3_frags()
    gaps = [[] for _ in range(360)]
    pre = [[] for _ in range(360)]
    npre = len(PRE_SLOTS)
    import collections
    freeq = collections.deque((0, r) for r in KV_SLOTS)
    rest = [f for f in fr[npre:] if f[0] != "o"]
    ofr = [f for f in fr if f[0] == "o"]
    def release(ks):
        for f in fr:
            if f[1] == ks: freeq.append((20*ks+20, regmap[f]))
    released = set()
    gpos = 2
    STEP = 3
    for f in rest:
        while not freeq:
            ks = min(k for k in range(18) if k not in released); released.add(ks); release(ks)
        e, r = freeq.popleft()
        gpos = max(gpos, e)
        regmap[f] = r
        gaps[gpos] += loader.emit(f, r)
        gpos += STEP
    last_w = gpos
    OPOLL, OCHK = 150, 196
    gaps[OPOLL].append(I(f"buffer_load_dword v{vP3T}, v{vFO}, {SWS}, 0 offen sc1", tag="pollo"))
    chk = Seg(); chk.append(W(vm="pollo"))
    spin(chk, "O", vFO, vP3T, 1, SWS, f"v_cmp_ne_u32 vcc, s{sNON}, v{vP3T}")
    stamp(chk, 12)
    gaps[OCHK] += chk
    gpos = OCHK
    for f in ofr:
        while not freeq:
            ks = min(k for k in range(18) if k not in released); released.add(ks); release(ks)
        e, r = freeq.popleft()
        assert e <= OCHK + 40, (e, f)
        gpos = max(gpos, e)
        regmap[f] = r
        gaps[gpos] += loader.emit(f, r)
        gpos += 1
    vt = Seg(); vt.append(W(lg="votes"))
    vt.e(f"""
    v_or3_b32 v28, v28, v29, v30
    v_or_b32 v28, v28, v31
    s_nop 0
    v_readfirstlane_b32 s{sTA}, v28
    s_andn2_b32 s{sTA}, s{sTA}, s{sSAFE}
    s_cbranch_scc1 L_fallback
    """)
    gaps[6] += vt
    pub = Seg(); pub.append(W(vm="ost")); pub.e("s_barrier")
    pub.e(f"s_cmp_lg_u32 s{sWAVE}, 0\ns_cbranch_scc1 L_flO\ns_mov_b64 exec, 1\nv_mov_b32 v28, s{sNON}\nv_mov_b32 v29, 0")
    pub.append(I(f"buffer_store_dword v28, v29, {SWS}, s{sFO} offen sc1", cond=True))
    pub.e(f"s_mov_b64 exec, -1\nL_flO:")
    stamp(pub, 11)
    gaps[30] += pub
    ad = Seg()
    T = vP3T + 1
    ad.e(f"""
    s_lshl_b32 s{sTA}, s{sWAVE}, 6
    v_lshrrev_b32 v{T}, 4, v{vLIN}
    v_add_u32 v{T}, s{sTA}, v{T}
    s_mul_i32 s{sTA}, s{sRB}, {64*1280}
    s_mul_i32 s{sTB}, s{sCB}, 160
    s_add_u32 s{sMBX}, s{sTA}, s{sTB}
    """)
    for k in range(5):
        ad.e(f"""
        v_add_u32 v{T+1}, {256*k}, v{T}
        v_mul_u32_u24 v{T+2}, 3277, v{T+1}
        v_lshrrev_b32 v{T+2}, 16, v{T+2}
        v_mul_u32_u24 v{T+3}, 20, v{T+2}
        v_sub_u32 v{T+3}, v{T+1}, v{T+3}
        v_mul_u32_u24 v{T+1}, 336, v{T+2}
        v_lshl_add_u32 v{T+1}, v{T+3}, 4, v{T+1}
        v_add_u32 v{vLA+k}, {L_R3}, v{T+1}
        v_mul_u32_u24 v{T+1}, 1280, v{T+2}
        v_lshl_add_u32 v{vGO+k}, v{T+3}, 3, v{T+1}
        """)
        ad.append(I(f"buffer_load_dwordx2 {v(vXD+2*k,2)}, v{vGO+k}, {SX}, s{sMBX} offen", tag=("xres",k)))
    ad.e(f"""
    s_mul_i32 s{sTA}, s{sWAVE}, {R3S}
    s_add_u32 s{sTA}, s{sTA}, {L_R3}
    v_lshrrev_b32 v{T}, 4, v{vLIN}
    v_and_b32 v{T+1}, 15, v{T}
    v_mul_u32_u24 v{T+1}, 336, v{T+1}
    v_and_b32 v{T}, 48, v{T}
    v_add3_u32 v{vW3}, v{T}, v{T+1}, s{sTA}
    """)
    spread(gaps, ad, 40, 140)
    for m in range(360):
        ks, u, t = m // 20, (m % 20) // 5, m % 5
        b = ("h" if ks < 12 else "o", ks, u)
        if m % 20 == 0:
            tags = [("w", ks, tt) for tt in range(5)] + ([("h", ks, uu) for uu in range(4)] if ks < 12 else [b])
            g.append(W(vm=tags))
        elif ks >= 12 and t == 0:
            g.append(W(vm=b))
        acc = a(4*(5*u+t), 4)
        g.append(I(f"v_mfma_f32_16x16x32_bf16 {acc}, {regmap[('w',ks,t)]}, {regmap[b]}, {'0' if ks == 0 else acc}"))
        g += gaps[m]
        if ks == 17 and u >= 2:
            uu = u - 2
            g.e(f"ds_write_b128 v{vW3}, {a(4*(5*uu+t),4)} offset:{uu*16*336 + t*64}")
    for uu in (2, 3):
        for t in range(5): g.e(f"ds_write_b128 v{vW3}, {a(4*(5*uu+t),4)} offset:{uu*16*336 + t*64}")
    stamp(g, 13)
    g.append(W(lg=0)); g.e("s_barrier")
    R = 64
    for k in range(5):
        for src in range(4):
            g.append(I(f"ds_read_b128 {v(R+16*k+4*src,4)}, v{vLA+k} offset:{src*R3S}", tag=("fr",k,src)))
    g.append(W(vm=("xres",4)))
    for k in range(5):
        b = R + 16*k; x = vXD + 2*k; T = 24
        g.e(f"""
        v_lshlrev_b32 v{T}, 16, v{x}
        v_and_b32 v{T+1}, 0xffff0000, v{x}
        v_lshlrev_b32 v{T+2}, 16, v{x+1}
        v_and_b32 v{T+3}, 0xffff0000, v{x+1}
        """)
        g.append(W(lg=("fr",k,3)))
        for e in range(4): g.e(f"v_add_f32 v{b+e}, v{b+e}, v{b+4+e}")
        for e in range(4): g.e(f"v_add_f32 v{b+8+e}, v{b+8+e}, v{b+12+e}")
        for e in range(4): g.e(f"v_add_f32 v{T+e}, v{T+e}, v{b+e}")
        for e in range(4): g.e(f"v_add_f32 v{T+e}, v{T+e}, v{b+8+e}")
        g.e(f"v_cvt_pk_bf16_f32 v{b}, v{T}, v{T+1}\nv_cvt_pk_bf16_f32 v{b+1}, v{T+2}, v{T+3}")
        g.e(f"buffer_store_dwordx2 {v(b,2)}, v{vGO+k}, {SOUT}, s{sMBX} offen")
    if STAMPS:
        g.e("s_waitcnt vmcnt(0)")
        stamp(g, 14)
        dump_stamps(g)
    g.e("L_end:\ns_endpgm")
    return g

def dump_stamps(g):
    g.e(f"""
    s_lshl_b32 s{sTA}, s2, 2
    s_add_u32 s{sTA}, s{sTA}, s{sWAVE}
    s_lshl_b32 s{sTA}, s{sTA}, 8
    s_add_u32 s{sTA}, s{sTA}, {WS_T}
    v_mbcnt_lo_u32_b32 v0, -1, 0
    v_mbcnt_hi_u32_b32 v0, -1, v0
    v_lshlrev_b32 v0, 2, v0
    v_accvgpr_read_b32 v1, a{aSTAMP}
    buffer_store_dword v1, v0, {SWS}, s{sTA} offen
    s_waitcnt vmcnt(0)
    """)

def fallback():
    g = Seg()
    g.e("L_fallback:")
    g.e(f"s_mov_b32 s{sSAFE}, 1\ns_waitcnt vmcnt(0) lgkmcnt(0)\ns_barrier")
    g += q_loads()
    for u in range(4): g.e(f"v_mov_b32 v{32+u}, 0xff800000")
    g.e(f"s_mov_b32 s{sTA}, s{sK0}\ns_mov_b32 s{sTB}, 32")
    g.e("L_fbloop:")
    b = aKV
    g.e(f"""
    buffer_load_dwordx2 {a(b,2)}, v{vK1A}, {SWS}, s{sTA} offen sc1
    buffer_load_dwordx2 {a(b+2,2)}, v{vK1B}, {SWS}, s{sTA} offen sc1
    buffer_load_dwordx2 {a(b+4,2)}, v{vK2}, {SWS}, s{sTA} offen sc1
    s_waitcnt vmcnt(0)
    """)
    for u in range(4):
        q = aQ + 6*u
        g.e(f"v_mfma_f32_32x32x16_bf16 v[0:15], {a(b,4)}, {a(q,4)}, 0")
        g.e(f"v_mfma_f32_32x32x8_bf16 v[0:15], {a(b+4,2)}, {a(q+4,2)}, v[0:15]")
        for k in range(8): g.e(f"v_max3_f32 v{32+u}, v{2*k}, v{2*k+1}, v{32+u}")
    g.e(f"""
    s_add_u32 s{sTA}, s{sTA}, 256
    s_sub_u32 s{sTB}, s{sTB}, 1
    s_cmp_lg_u32 s{sTB}, 0
    s_cbranch_scc1 L_fbloop
    """)
    for u in range(4): g.e(f"v_mov_b32 v{36+u}, v{32+u}")
    for u in range(4): g.e(f"v_permlane32_swap_b32 v{32+u}, v{36+u}")
    for u in range(4): g.e(f"v_max_f32 v{32+u}, v{32+u}, v{36+u}")
    g.e(f"ds_write_b128 v{vRW}, v[32:35]\ns_waitcnt lgkmcnt(0)\ns_barrier\nds_read_b128 v[36:39], v{vRR}\ns_waitcnt lgkmcnt(0)")
    g.e(f"v_cmp_lt_u32 vcc, 511, v{vLIN}")
    for u in range(4):
        m = 32 + u; q2 = aQ + 6*u + 4
        g.e(f"""
        v_max_f32 v{m}, v{m}, v{36+(u+2)%4}
        v_sub_f32 v{m}, 0, v{m}
        v_cvt_pk_bf16_f32 v0, v{m}, v{m}
        v_lshlrev_b32 v1, 16, v0
        v_sub_f32 v{m}, v{m}, v1
        v_cvt_pk_bf16_f32 v2, v{m}, v{m}
        v_lshlrev_b32 v3, 16, v2
        v_sub_f32 v{m}, v{m}, v3
        v_cvt_pk_bf16_f32 v4, v1, v3
        v_mov_b32 v6, 0
        v_cvt_pk_bf16_f32 v5, v{m}, v6
        v_accvgpr_read_b32 v6, a{q2}
        v_accvgpr_read_b32 v7, a{q2+1}
        v_cndmask_b32 v6, v6, v4, vcc
        v_cndmask_b32 v7, v7, v5, vcc
        v_accvgpr_write_b32 a{q2}, v6
        v_accvgpr_write_b32 a{q2+1}, v7
        """)
    for t in range(3): g += k_loads(t) + v_loads(t)
    g.e("s_waitcnt vmcnt(0)\ns_barrier\ns_branch L_att1")
    return g

HEADER = open("header.txt").read()

def build():
    pro = prologue()
    cls = {c: phase1(c) for c in "ABV"}
    regmap = {}; loader = Loader()
    att = attention(regmap, loader)
    p3 = phase3(regmap, loader)
    fb = fallback()
    tail = Seg(); tail += att; tail += p3
    if STOP == "p1":
        tail = Seg(); tail.e("L_att0:")
        tail += epi_g(aC, 0, sHB+1, "h1") + epi_g(aC, 1, sHB+1, "h1")
        tail.e("s_waitcnt vmcnt(0)"); stamp(tail, 7)
        if STAMPS: dump_stamps(tail)
        tail.e("L_end:\ns_endpgm"); fb = Seg()
    log = []
    tot = fix_hazards(pro, log=log)
    for c in "ABV":
        ctx = list(pro[-8:]); n0 = len(ctx); path = ctx + list(cls[c]); tot += fix_hazards(path, log=log)
        assert path[:n0] == ctx; cls[c][:] = path[n0:]
    for c in "ABV":
        ctx = list(cls[c][-30:]); n0 = len(ctx); path = ctx + list(tail); tot += fix_hazards(path, log=log)
        assert all(x is y for x, y in zip(path[:n0], ctx)); tail[:] = path[n0:]
    tot += fix_hazards(fb, log=log)
    for c in "ABV": resolve_waits(list(pro) + list(cls[c]) + list(tail))
    allins = list(pro) + list(cls['A']) + list(cls['B']) + list(cls['V']) + list(tail) + list(fb)
    finalize_waits(allins)
    for c in "ABV":
        errs = check_loads(list(pro) + list(cls[c]) + list(tail))
        for e in errs[:10]: print("LOAD HAZARD", c, e, file=sys.stderr)
        assert not errs
    print(f"nop states inserted: {tot}", file=sys.stderr)
    if "--log" in sys.argv:
        for l in log: print(l, file=sys.stderr)
    body = "\n".join(("" if i.cls == "label" else "    ") + i.text for i in allins)
    return HEADER.replace("@@BODY@@", body)

if __name__ == "__main__":
    out = build()
    path = [x for x in sys.argv[1:] if not x.startswith("--")]
    open(path[0] if path else "out.s", "w").write(out)
```

```python
import re

TRANS = ("v_exp_f32","v_log_f32","v_rcp_f32","v_rsq_f32","v_sqrt_f32","v_sin_f32","v_cos_f32","v_exp_f16","v_rcp_f16")

def _regs(tok):
    tok = tok.strip()
    tok = re.sub(r"^-", "", tok)
    m = re.fullmatch(r"abs\((.*)\)", tok) or re.fullmatch(r"\|(.*)\|", tok)
    if m: tok = m.group(1)
    m = re.fullmatch(r"([vas])(\d+)", tok)
    if m: return [(m.group(1), int(m.group(2)))]
    m = re.fullmatch(r"([vas])\[(\d+):(\d+)\]", tok)
    if m: return [(m.group(1), i) for i in range(int(m.group(2)), int(m.group(3))+1)]
    if tok == "vcc": return [("s","vcc")]
    if tok in ("exec", "exec_lo", "exec_hi"): return [("s","exec")]
    if tok == "m0": return [("s","m0")]
    return []

class I:
    __slots__ = ("text","op","cls","rd","wr","tag","cond","wvm","wlg","passes","srcc","comment","n_vm","n_lg","keep")
    def __init__(self, text, tag=None, cond=False, comment=None):
        self.text = text; self.tag = tag; self.cond = cond; self.comment = comment
        self.wvm = None; self.wlg = None; self.n_vm = None; self.n_lg = None
        self.passes = 0; self.srcc = []
        t = text.split(";")[0].strip()
        if t.endswith(":"):
            self.op = "label"; self.cls = "label"; self.rd = []; self.wr = []; return
        if t.startswith("."):
            self.op = "dir"; self.cls = "label"; self.rd = []; self.wr = []; return
        parts = t.split(None, 1)
        op = parts[0]; self.op = op
        rest = parts[1] if len(parts) > 1 else ""
        ops = [o.strip() for o in rest.split(",")] if rest else []
        toks = []
        for o in ops:
            toks.append(o.split()[0] if o.split() else o)
        mods = rest
        rd, wr = [], []
        base = re.sub(r"_e32$|_e64$|_sdwa$|_dpp$", "", op)
        if op.startswith("v_mfma"):
            self.cls = "mfma"
            wr = _regs(toks[0]); rd = _regs(toks[1]) + _regs(toks[2]) + _regs(toks[3])
            self.srcc = _regs(toks[3])
            if "32x32x4_2b" in op: self.passes = 16
            elif "32x32" in op: self.passes = 8
            else: self.passes = 4
        elif op.startswith("buffer_load") or op.startswith("global_load"):
            self.cls = "vmem"
            if re.search(r"\blds\b", mods) or "_lds_" in op:
                for k in toks: rd += _regs(k)
                rd += [("s","m0")]
            else:
                wr = _regs(toks[0])
                for k in toks[1:]: rd += _regs(k)
        elif op.startswith("buffer_store") or op.startswith("global_store") or op.startswith("buffer_atomic") or op.startswith("global_atomic"):
            self.cls = "vmem"
            for k in toks: rd += _regs(k)
        elif op.startswith("buffer_inv") or op.startswith("buffer_wbl2"):
            self.cls = "vmem"
        elif op.startswith("ds_read") or op.startswith("ds_bpermute") or op.startswith("ds_swizzle"):
            self.cls = "lds"; wr = _regs(toks[0])
            for k in toks[1:]: rd += _regs(k)
        elif op.startswith("ds_"):
            self.cls = "lds"
            for k in toks: rd += _regs(k)
        elif op.startswith("s_load") or op.startswith("s_memtime") or op.startswith("s_memrealtime"):
            self.cls = "smem"; wr = _regs(toks[0])
            for k in toks[1:]: rd += _regs(k)
        elif op == "s_waitcnt": self.cls = "wait"
        elif op == "s_barrier": self.cls = "barrier"
        elif op == "s_nop": self.cls = "nop"
        elif op.startswith("s_cbranch") or op in ("s_branch","s_endpgm","s_setpc_b64"):
            self.cls = "branch"
            if "vcc" in op: rd = [("s","vcc")]
            for k in toks: rd += _regs(k)
        elif op in ("s_sleep","s_setprio"): self.cls = "salu"
        elif op.startswith("s_cmp") or op.startswith("s_bitcmp"):
            self.cls = "salu"
            for k in toks: rd += _regs(k)
        elif op.startswith("s_"):
            self.cls = "salu"; wr = _regs(toks[0])
            for k in toks[1:]: rd += _regs(k)
            if "saveexec" in op: wr += [("s","exec")]
        elif op.startswith("v_"):
            self.cls = "trans" if base in TRANS else "valu"
            if base.startswith("v_cmp"):
                wr = _regs(toks[0])
                for k in toks[1:]: rd += _regs(k)
            elif base in ("v_readfirstlane_b32","v_readlane_b32"):
                wr = _regs(toks[0])
                for k in toks[1:]: rd += _regs(k)
            elif base.startswith("v_permlane") and "swap" in base:
                wr = _regs(toks[0]) + _regs(toks[1]); rd = list(wr)
            elif base in ("v_add_co_u32","v_sub_co_u32","v_addc_co_u32"):
                wr = _regs(toks[0]) + _regs(toks[1])
                for k in toks[2:]: rd += _regs(k)
            else:
                wr = _regs(toks[0])
                for k in toks[1:]: rd += _regs(k)
                if base in ("v_fmac_f32","v_dot2c_f32_bf16"): rd += _regs(toks[0])
                if base == "v_cndmask_b32" and len(toks) == 3: rd += [("s","vcc")]
        else:
            raise ValueError("unknown instr: " + text)
        self.rd = rd; self.wr = wr
    def isdot(self): return self.op.startswith("v_dot2")
    def slots(self):
        if self.cls == "label": return 0
        if self.cls == "nop": return int(self.text.split()[1]) + 1
        return 1
    def cost(self):
        if self.cls == "label": return 0
        if self.cls == "trans" or "permlane" in self.op: return 8
        if self.cls == "mfma": return 8
        if self.cls == "nop": return 4*self.slots()
        return 4

def W(vm=None, lg=None, comment=None):
    i = I("s_waitcnt 0", comment=comment)
    i.wvm = vm; i.wlg = lg
    return i

def resolve_waits(path):
    vm_idx = {}; lg_idx = {}
    vm_n = 0; lg_n = 0
    smem_pending = False
    for ins in path:
        if ins.cls == "vmem":
            if not ins.cond:
                vm_n += 1
                if ins.tag is not None: vm_idx[ins.tag] = vm_n
        elif ins.cls == "lds":
            assert not ins.cond or True
            if not ins.cond:
                lg_n += 1
                if ins.tag is not None: lg_idx[ins.tag] = lg_n
        elif ins.cls == "smem":
            smem_pending = True
        elif ins.cls == "wait" and (ins.wvm is not None or ins.wlg is not None):
            if ins.wvm is not None:
                if isinstance(ins.wvm, int): n = ins.wvm
                else:
                    tags = ins.wvm if isinstance(ins.wvm, list) else [ins.wvm]
                    n = min(vm_n - vm_idx[t] for t in tags)
                    assert n >= 0
                    n = min(n, 63)
                ins.n_vm = n if ins.n_vm is None else min(ins.n_vm, n)
            if ins.wlg is not None:
                if isinstance(ins.wlg, int): n = ins.wlg
                else:
                    tags = ins.wlg if isinstance(ins.wlg, list) else [ins.wlg]
                    n = min(lg_n - lg_idx[t] for t in tags)
                    n = min(n, 15)
                    assert not smem_pending, "counted lgkm wait with smem pending"
                if n == 0: smem_pending = False
                ins.n_lg = n if ins.n_lg is None else min(ins.n_lg, n)

def finalize_waits(instrs):
    for ins in instrs:
        if ins.cls == "wait" and (ins.wvm is not None or ins.wlg is not None):
            parts = []
            if ins.wvm is not None:
                assert ins.n_vm is not None, ("unresolved", ins.wvm); parts.append(f"vmcnt({ins.n_vm})")
            if ins.wlg is not None:
                assert ins.n_lg is not None, ("unresolved", ins.wlg); parts.append(f"lgkmcnt({ins.n_lg})")
            ins.text = "s_waitcnt " + " ".join(parts)

def _ov(a, b):
    if not a or not b: return False
    return not set(a).isdisjoint(b)

def need_states(p, c):
    n = 0
    pv = p.cls in ("valu","trans"); cv = c.cls in ("valu","trans")
    pw_vec = [r for r in p.wr if r[0] in "va"]
    pw_s = [r for r in p.wr if r[0] == "s"]
    if pv:
        if c.cls == "mfma" and _ov(pw_vec, c.rd): n = max(n, 2)
        if cv and c.op.startswith("v_permlane") and _ov(pw_vec, c.rd): n = max(n, 2)
        if cv and (c.op.startswith("v_readfirstlane") or c.op.startswith("v_readlane")) and _ov(pw_vec, c.rd): n = max(n, 1)
        if cv and "dpp" in c.text and _ov(pw_vec, c.rd): n = max(n, 2)
        if pw_s:
            if cv and (_ov(pw_s, c.rd)): n = max(n, 2)
            if c.cls == "vmem" and _ov(pw_s, c.rd): n = max(n, 5)
            if c.cls == "mfma" and ("s","exec") in pw_s: n = max(n, 4)
            if c.cls in ("salu","branch") and _ov(pw_s, c.rd): n = max(n, 1)
        if p.cls == "trans" and c.cls == "valu" and _ov(pw_vec, c.rd): n = max(n, 1)
        if p.cls == "trans" and c.cls in ("vmem","lds") and _ov(pw_vec, c.rd): n = max(n, 1)
        if p.isdot():
            if c.isdot() and c.op == p.op:
                srcab = c.rd[:]
                toks = [t.strip().split()[0] for t in c.text.split(None,1)[1].split(",")]
                ab = _regs(toks[1]) + _regs(toks[2])
                if _ov(pw_vec, ab): n = max(n, 3)
            elif c.cls in ("valu","trans","mfma","vmem","lds") and (_ov(pw_vec, c.rd) or _ov(pw_vec, c.wr)): n = max(n, 3)
    if p.cls == "salu":
        if ("s","m0") in p.wr and c.cls == "vmem" and ("s","m0") in c.rd: n = max(n, 1)
    if p.cls == "vmem" and re.search(r"store_dwordx[34]", p.op):
        toks = [t.strip().split()[0] for t in p.text.split(None,1)[1].split(",")]
        data = _regs(toks[0]) if p.op.startswith("buffer") else _regs(toks[1])
        if _ov(data, c.wr): n = max(n, 2 if cv else 1)
    if p.cls == "mfma":
        P = p.passes
        tab = {4:(6,8,3), 8:(10,12,7), 16:(18,20,15)}[P]
        if c.cls == "mfma":
            toks = [t.strip().split()[0] for t in c.text.split(None,1)[1].split(",")]
            ab = _regs(toks[1]) + _regs(toks[2])
            if _ov(p.wr, ab): n = max(n, tab[1])
            if _ov(p.wr, c.srcc):
                if not (c.srcc == p.wr and c.passes == p.passes): n = max(n, tab[0])
            elif _ov(p.wr, c.wr):
                n = max(n, tab[0])
        elif cv or c.cls in ("vmem","lds"):
            if _ov(p.wr, c.rd) or _ov(p.wr, c.wr): n = max(n, tab[1])
            if cv and _ov(p.srcc, c.wr): n = max(n, tab[2])
    return n

def fix_hazards(path, window=24, log=None):
    out = []
    total = 0
    for c in path:
        if c.cls != "label":
            dist = 0; need = 0
            for p in reversed(out):
                if p.cls == "label": continue
                r = need_states(p, c)
                if r - dist > need: need = r - dist; why = p
                dist += p.slots()
                if dist >= window: break
            if need > 0:
                total += need
                if log is not None: log.append((need, why.text, c.text))
                k = need
                while k > 0:
                    m = min(k, 16); out.append(I(f"s_nop {m-1}")); k -= m
        out.append(c)
    path[:] = out
    return total

def check_loads(path):
    vmq = []
    lgq = []
    errs = []
    for ins in path:
        if ins.cls == "wait":
            m = re.search(r"vmcnt\((\d+)\)", ins.text)
            if m:
                n = int(m.group(1)); vmq = vmq[len(vmq)-n:] if n < len(vmq) else vmq
                if n == 0: vmq = []
            m = re.search(r"lgkmcnt\((\d+)\)", ins.text)
            if m:
                n = int(m.group(1))
                if n == 0: lgq = []
                elif n < len(lgq): lgq = lgq[len(lgq)-n:]
            continue
        if ins.cls == "label": continue
        touched = set(ins.rd) | set(ins.wr)
        for q in (vmq, lgq):
            for o in q:
                if o.wr and not touched.isdisjoint(o.wr):
                    if ins.cls == o.cls and set(ins.rd).isdisjoint(o.wr): continue
                    errs.append((o.text, ins.text))
        if ins.cls == "vmem" and not ins.cond: vmq.append(ins)
        elif ins.cls in ("lds","smem") and not ins.cond: lgq.append(ins)
    return errs


SCC_READ = ("s_addc_u32","s_subb_u32","s_cselect_b32","s_cselect_b64","s_cbranch_scc0","s_cbranch_scc1")
def scc_reads(i): return i.op in SCC_READ
def scc_writes(i):
    if i.cls != "salu": return False
    return not (i.op.startswith("s_mov") or i.op.startswith("s_mul_i32") or i.op.startswith("s_cselect") or i.op in ("s_getpc_b64","s_sleep","s_setprio","s_mul_hi_u32"))
def scc_live_before(lst, idx):
    for i in lst[idx:]:
        if scc_reads(i): return True
        if scc_writes(i): return False
    return False
def mark_scc(lst):
    last = None
    for i in lst:
        if scc_reads(i) and not hasattr_keep(i): i.keep = last
        if scc_writes(i): last = i
def hasattr_keep(i):
    try: return i.keep is not None
    except AttributeError: return False
def check_scc(path):
    last = None; errs = []
    for i in path:
        if scc_reads(i) and hasattr_keep(i) and i.keep is not last: errs.append((i.text, i.keep.text, last.text if last else None))
        if scc_writes(i): last = i
    return errs
```

```python
import sys, math, struct, collections
from asmlib import *

STAMPS = "--stamps" in sys.argv
def opt(name, default):
    for a_ in sys.argv:
        if a_.startswith(f"--{name}="): return type(default)(a_.split("=")[1])
    return default
STOP = opt("stop", "")
K0 = opt("k0", 12)

def f2u(x): return struct.unpack("<I", struct.pack("<f", x))[0]

WS_Q = 0x000000; WS_K = 0x280000; WS_V = 0x500000; WS_C = 0x780000
WS_O = 0x800000
WS_H = 0xB00000
WS_W = 0x1100000
WS_F = 0x1400000
WS_T = 0x1410000
WS_SIZE = 0x1480000
F_QKV = WS_F; F_H = WS_F + 0x2000; F_O = WS_F + 0x4000
OOB = 0x40000000
LOG2E = 1.4426950408889634
QSCALE = (20 ** -0.5) * LOG2E

L_RING = 0; NSLOT = 7; L_X = 7*16384; L_J = 9*16384
XSLOT = [7, 8, 2, 3, 4, 5, 6, 9, 7, 8]
LW = 40960; L_PF = 6144; NLPF = 33; L_VOTE = LW - 1024

sWAVE=3; sXCD=4; sLOC=5; sT0=6; sT1=7
SX="s[8:11]"; SQKV="s[12:15]"; SG="s[16:19]"; SU="s[20:23]"; SWS="s[24:27]"; SOUT="s[28:31]"; SDBG="s[32:35]"; SJ="s[36:39]"
sMB=40; sJ=41; sWB=42; sXO=43
sD=47
sC10=53; sC01=54; sC11=55
sEB=56
sHB=59
sSC=61
sP=64
sNON=84; sTA=85; sTB=86; sTC=87
sHD=88; sQB=89; sKH=90; sJS=91
sFLQ=95
pK=64; pV=66; pQ=68; pTW=70; pTH=72
sWP=74; sHP=75; sOP=76; sOST=77; sFL=78; sMBX=79; sWP2=80; sRB=81; sCB=82; sFO=83
sSAFE=43; sSPIN=44; sLW=45; sQHI=46

vLANE=1; vXLD=2; vXR=88; vXW=4; vDQ=8; vDG=10; vTR=12; vEP=16; vEP1=17; vH=18
vJK=19; vJST=23; vJTR=24; vCST=25; vNM=26; vR=27; vS=28; vSG=29; vSCL=30; vNON=33; vACC=34; vZERO=37; vPA=38
vLN=40; vR16=48; vTMP=64; vX=96
vK1A=48; vK1B=49; vK2=50; vQ2=51; vVL=52; vLIN=53; vH3=54; vO3=57; vOSA=58; vOSC=59; vRW=60; vRR=61; vFH=62; vFO=63
aA=0; aB=64; aC=96; aWF=160
aO=0; aQ=64; aKV=200; aSTAMP=199

def v(n, k=1): return f"v{n}" if k == 1 else f"v[{n}:{n+k-1}]"
def a(n, k=1): return f"a{n}" if k == 1 else f"a[{n}:{n+k-1}]"
def sp(n): return f"s[{n}:{n+1}]"

class Seg(list):
    def e(self, text, **kw):
        for t in text.strip().split("\n"):
            t = t.strip()
            if t: self.append(I(t, **kw))
        mark_scc(self)
        return self

def stamp(seg, k):
    if not STAMPS: return
    seg.e(f"s_memtime s[96:97]")
    seg.append(W(lg=0))
    seg.e(f"s_mov_b64 exec, {1<<k}\nv_accvgpr_write_b32 a{aSTAMP}, s96\ns_mov_b64 exec, -1")
    if k in (0, 14):
        seg.e(f"s_memrealtime s[96:97]")
        seg.append(W(lg=0))
        seg.e(f"s_mov_b64 exec, {1<<(16 if k == 0 else 17)}\nv_accvgpr_write_b32 a{aSTAMP}, s96\ns_mov_b64 exec, -1")

def srd(seg, S, ptr, size):
    b = int(S[2:].split(":")[0])
    seg.e(f"s_mov_b32 s{b}, s{ptr}\ns_mov_b32 s{b+1}, s{ptr+1}\ns_mov_b32 s{b+2}, {size}\ns_mov_b32 s{b+3}, 0x00020000")

class Gap:
    def __init__(self, mfma):
        self.mfma = mfma; self.sec = [[], [], []]
    def flat(self): return ([self.mfma] if self.mfma is not None else []) + self.sec[0] + self.sec[1] + self.sec[2]
def section(i):
    if i.cls in ("vmem", "lds"): return 1
    if i.cls in ("valu", "trans"): return 2
    return 0
class Chain:
    def __init__(self, gaps): self.gaps = gaps; self.k = 0; self.last = 0
    def put(self, group, g0, g1):
        tot = sum(i.cost() for i in group) or 1
        acc = 0
        for i in group:
            want = g0 + min(g1-g0-1, int(acc * (g1-g0) / tot))
            if want > self.k and not scc_reads(i): self.k = want; self.last = 0
            sec = section(i)
            if sec < self.last: self.k += 1
            self.gaps[self.k].sec[sec].append(i); self.last = sec
            acc += i.cost()
        return self.k
    def block(self, group, k):
        if k > self.k: self.k = k
        self.gaps[self.k].sec[2] += list(group); self.last = 2

def weave(main, fill, per):
    out = Seg(); fill = list(fill)
    for m in main:
        out.append(m); out += fill[:per]; fill = fill[per:]
    out += fill
    return out

def pass_kind(cls, p):
    if p == 2: return 'G'
    if p == 0: return 'G' if cls == 'A' else 'Q'
    return 'Q'
def dma_stage(sig, cls):
    if sig >= 25: return []
    p = 0 if sig < 10 else (1 if sig < 15 else 2)
    kind = pass_kind(cls, p)
    slot = sig % NSLOT
    out = Seg()
    vd = vDG if kind == 'G' else vDQ
    stride = 3072 if kind == 'G' else 3840
    rows = 64 if p != 1 else 128
    for src in range(2):
        S = (SG if src == 0 else SU) if kind == 'G' else SQKV
        so = sD + 2*p + src
        out.e(f"s_add_u32 m0, s{sWB}, {L_RING + slot*16384 + src*2048}")
        out.append(I(f"buffer_load_dwordx4 v{vd}, {S}, s{so} offen lds", tag=("dma", sig, src, 0)))
        out.append(I(f"buffer_load_dwordx4 v{vd+1}, {S}, s{so} offen offset:1024 lds", tag=("dma", sig, src, 1)))
        out.e(f"s_add_u32 s{so}, s{so}, {rows*stride}")
    return out
def dma_tag(sig): return ("dma", sig, 1, 1)

def prologue():
    g = Seg()
    g.e(f"""
    s_cmp_ge_u32 s2, 256
    s_cbranch_scc1 L_end
    s_load_dwordx16 s[64:79], s[0:1], 0
    s_load_dwordx4 s[80:83], s[0:1], 64
    s_getpc_b64 s[36:37]
    L_pc0:
    s_lshr_b32 s{sLOC}, s2, 3
    s_mov_b32 s38, L_codeend-L_pc0
    s_mov_b32 s39, 0x00020000
    s_lshl_b32 s{sT0}, s{sLOC}, 12
    v_lshlrev_b32 v64, 4, v0
    """)
    g.append(I(f"buffer_load_dwordx4 a[192:195], v64, {SJ}, s{sT0} offen", tag="code"))
    g.e(f"""
    v_and_b32 v{vLANE}, 63, v0
    v_lshrrev_b32 v0, 6, v0
    s_and_b32 s{sXCD}, s2, 7
    v_readfirstlane_b32 s{sWAVE}, v0
    s_and_b32 s{sT0}, s{sXCD}, 1
    s_lshl_b32 s{sT0}, s{sT0}, 3
    s_and_b32 s{sT1}, s{sLOC}, 7
    s_add_u32 s{sMB}, s{sT0}, s{sT1}
    v_lshrrev_b32 v64, 3, v{vLANE}
    v_and_b32 v65, 7, v{vLANE}
    v_xor_b32 v66, v64, v65
    v_lshlrev_b32 v66, 4, v66
    v_mul_u32_u24 v{vXLD}, 1280, v64
    v_add_u32 v{vXLD}, v{vXLD}, v66
    v_xor_b32 v67, 1, v64
    v_xor_b32 v66, 16, v66
    v_mul_u32_u24 v{vXLD+1}, 1280, v67
    v_add_u32 v{vXLD+1}, v{vXLD+1}, v66
    s_lshl_b32 s{sWB}, s{sWAVE}, 12
    s_lshl_b32 s{sT0}, s{sMB}, 2
    s_add_u32 s{sT0}, s{sT0}, s{sWAVE}
    s_mul_i32 s{sXO}, s{sT0}, 40960
    s_add_u32 s{sXO+1}, s{sXO}, {10240-1024}
    s_add_u32 s{sXO+2}, s{sXO}, {20480-2048}
    s_add_u32 s{sXO+3}, s{sXO}, {30720-3072}
    """)
    if STAMPS: g.e(f"v_accvgpr_write_b32 a{aSTAMP}, 0")
    g.append(W(lg=0))
    srd(g, SX, sP+0, 2621440)
    stamp(g, 0)
    xl = []
    for cb in range(10):
        for rg in range(4):
            pre = []
            if cb < 8:
                if rg == 0: pre.append(I(f"s_add_u32 m0, s{sWB}, {XSLOT[cb]*16384 - cb*128}"))
                ld = I(f"buffer_load_dwordx4 v{vXLD+rg//2}, {SX}, s{sXO+rg} offen offset:{cb*128+rg*1024} lds", tag=("x", cb, rg))
            else:
                off = cb*128 + rg*1024
                if off > 4095:
                    pre.append(I(f"s_add_u32 s{sXO+rg}, s{sXO+rg}, 1024") if cb == 8 else None); off -= 1024
                    pre = [p for p in pre if p]
                ld = I(f"buffer_load_dwordx4 {a(16*(cb-8)+4*rg,4)}, v{vXLD+rg//2}, {SX}, s{sXO+rg} offen offset:{off}", tag=("x", cb, rg))
            xl.append(pre + [ld])
    f = Seg()
    srd(f, SQKV, sP+2, 640*3840); srd(f, SG, sP+8, 640*3072); srd(f, SU, sP+10, 640*3072)
    srd(f, SWS, sP+18, WS_SIZE); srd(f, SOUT, sP+14, 2621440); srd(f, SDBG, sP+16, 256)
    f.e(f"""
    s_lshr_b32 s{sT0}, s{sXCD}, 1
    s_lshl_b32 s{sT0}, s{sT0}, 2
    s_lshr_b32 s{sT1}, s{sLOC}, 3
    s_add_u32 s{sJ}, s{sT0}, s{sT1}
    v_lshlrev_b32 v66, 4, v65
    v_lshlrev_b32 v67, 1, v64
    v_and_b32 v67, 4, v67
    v_xor_b32 v67, v65, v67
    v_lshlrev_b32 v67, 4, v67
    v_mul_u32_u24 v{vDQ}, 3840, v64
    v_add_u32 v{vDQ}, v{vDQ}, v67
    v_add_u32 v{vDQ+1}, {8*3840-1024}, v{vDQ}
    v_mul_u32_u24 v{vDG}, 3072, v64
    v_add_u32 v{vDG}, v{vDG}, v67
    v_add_u32 v{vDG+1}, {8*3072-1024}, v{vDG}
    s_mov_b32 s{sC10}, 0x00003F80
    s_mov_b32 s{sC01}, 0x3F800000
    s_mov_b32 s{sC11}, 0x3F803F80
    s_add_u32 s{sT0}, s{sWB}, {L_X}
    v_lshlrev_b32 v{vXW}, 4, v{vLANE}
    v_add_u32 v{vXW}, s{sT0}, v{vXW}
    v_lshrrev_b32 v70, 5, v{vLANE}
    v_and_b32 v71, 31, v{vLANE}
    v_and_b32 v72, 7, v71
    v_lshrrev_b32 v73, 3, v71
    v_lshrrev_b32 v74, 1, v73
    v_xor_b32 v74, v72, v74
    v_lshlrev_b32 v74, 7, v74
    v_lshl_add_u32 v73, v73, 10, v74
    s_add_u32 s{sT0}, s{sWB}, 32768
    v_add_u32 v73, s{sT0}, v73
    """)
    for jj in range(4):
        f.e(f"""
        v_add_u32 v74, {2*jj}, v70
        v_xor_b32 v75, v72, v74
        v_lshl_add_u32 v{vXR+jj}, v75, 4, v73
        v_add_u32 v{vXR+4+jj}, 65536, v{vXR+jj}
        """)
    f.e(f"""
    v_and_b32 v74, 15, v{vLANE}
    v_lshrrev_b32 v75, 2, v74
    v_lshlrev_b32 v75, 7, v75
    v_lshl_add_u32 v75, v70, 10, v75
    v_and_b32 v76, 3, v74
    v_lshlrev_b32 v76, 3, v76
    v_and_b32 v77, 16, v{vLANE}
    v_lshl_add_u32 v76, v77, 1, v76
    v_and_b32 v77, 8, v74
    v_lshlrev_b32 v77, 3, v77
    v_xor_b32 v76, v76, v77
    v_add_u32 v{vTR}, v75, v76
    v_xor_b32 v{vTR+1}, 64, v{vTR}
    v_add_u32 v{vTR+2}, 0x10000, v{vTR}
    v_add_u32 v{vTR+3}, 0x10000, v{vTR+1}
    v_lshrrev_b32 v74, 4, v71
    v_mul_u32_u24 v74, 49152, v74
    v_and_b32 v75, 15, v71
    v_lshlrev_b32 v75, 4, v75
    v_lshl_add_u32 v75, v70, 8, v75
    v_add_u32 v{vH}, v74, v75
    """)
    f.e(f"""
    s_lshl_b32 s{sTA}, s2, 2
    s_add_u32 s{sTA}, s{sTA}, s{sWAVE}
    s_mul_i32 s{sTB}, s{sTA}, 6554
    s_lshr_b32 s{sTB}, s{sTB}, 16
    s_mul_i32 s{sT0}, s{sTB}, 10
    s_sub_u32 s{sTC}, s{sTA}, s{sT0}
    s_cmp_lt_u32 s{sTB}, 48
    s_cselect_b32 s36, s{sP+12}, s{sP+4}
    s_cselect_b32 s37, s{sP+13}, s{sP+5}
    s_mov_b32 s38, {640*1280}
    s_cselect_b32 s38, {1536*1280}, s38
    s_mov_b32 s39, 0x00020000
    v_lshrrev_b32 v74, 2, v64
    v_and_b32 v75, 3, v64
    v_lshl_add_u32 v75, v74, 3, v75
    v_mul_u32_u24 v75, 1280, v75
    v_add_u32 v75, v75, v66
    v_lshlrev_b32 v74, 30, v74
    v_add_u32 v76, v75, v74
    s_cmp_lt_u32 s{sTA}, 720
    s_cselect_b32 s{sT0}, 0, {OOB}
    v_lshlrev_b32 v{vJST}, 4, v{vLANE}
    v_or_b32 v{vJST}, s{sT0}, v{vJST}
    v_or_b32 v75, s{sT0}, v75
    v_or_b32 v76, s{sT0}, v76
    """)
    for kg in range(4):
        f.e(f"""
        s_lshl_b32 s{sT0}, s{sTB}, 2
        s_sub_u32 s{sT0}, s{sT0}, {192-kg}
        s_mul_i32 s{sT1}, s{sT0}, 171
        s_lshr_b32 s{sT1}, s{sT1}, 9
        s_mul_i32 s98, s{sT1}, 3
        s_sub_u32 s98, s{sT0}, s98
        s_mul_i32 s{sT1}, s{sT1}, 20
        s_lshl_b32 s99, s98, 2
        s_cmp_eq_u32 s98, 2
        s_cselect_b32 s99, 16, s99
        s_cselect_b64 s[100:101], -1, 0
        s_add_u32 s{sT1}, s{sT1}, s99
        s_lshl_b32 s{sT0}, s{sTB}, 5
        s_add_u32 s{sT0}, s{sT0}, {16*(kg//2)+4*(kg%2)}
        s_cmp_lt_u32 s{sTB}, 48
        s_cselect_b32 s{sT0}, s{sT0}, s{sT1}
        s_cselect_b64 s[100:101], 0, s[100:101]
        s_mul_i32 s{sT0}, s{sT0}, 1280
        s_lshl_b32 s{sT1}, s{sTC}, 7
        s_add_u32 s{sJS+kg}, s{sT0}, s{sT1}
        v_cndmask_b32 v{vJK+kg}, v75, v76, s[100:101]
        """)
    f.e(f"""
    s_add_u32 s{sT0}, s{sWB}, {L_J}
    v_lshrrev_b32 v74, 4, v{vLANE}
    v_lshlrev_b32 v74, 10, v74
    v_and_b32 v75, 15, v{vLANE}
    v_lshrrev_b32 v76, 2, v75
    v_lshl_add_u32 v74, v76, 7, v74
    v_and_b32 v75, 3, v75
    v_lshl_add_u32 v74, v75, 3, v74
    v_add_u32 v{vJTR}, s{sT0}, v74
    s_sub_u32 s{sT0}, s{sTA}, 720
    s_cmp_lt_u32 s{sT0}, 16
    s_cselect_b32 s{sT1}, 0, {OOB}
    s_and_b32 s{sT0}, s{sT0}, 15
    s_lshl_b32 s{sT0}, s{sT0}, 10
    s_add_u32 s{sT0}, s{sT0}, s{sT1}
    s_add_u32 s{sT0}, s{sT0}, {WS_C}
    v_lshlrev_b32 v{vCST}, 4, v{vLANE}
    v_add_u32 v{vCST}, s{sT0}, v{vCST}
    v_mov_b32 v{vACC}, 0
    v_mov_b32 v{vACC+1}, 0
    v_mov_b32 v{vACC+2}, 0
    v_mov_b32 v{vACC+3}, 0
    v_and_b32 v80, 3, v{vLANE}
    v_cmp_eq_u32 vcc, 0, v80
    v_mov_b32 v81, s{sC11}
    v_mov_b32 v84, 0
    v_cndmask_b32 v80, v84, v81, vcc
    v_mov_b32 v81, v80
    v_mov_b32 v82, v80
    v_mov_b32 v83, v80
    v_lshrrev_b32 v{vPA}, 2, v{vLANE}
    v_lshlrev_b32 v{vPA}, 8, v{vPA}
    v_lshl_add_u32 v{vPA}, v75, 4, v{vPA}
    v_add_u32 v{vPA}, {F_QKV}, v{vPA}
    s_lshr_b32 s{sT0}, s2, 4
    s_lshl_b32 s{sT0}, s{sT0}, 8
    s_and_b32 s{sT1}, s2, 15
    s_lshl_b32 s{sT1}, s{sT1}, 2
    s_add_u32 s{sT0}, s{sT0}, s{sT1}
    s_add_u32 s{sFLQ}, s{sT0}, {F_QKV}
    """)
    per = len(f)//40; f = list(f)
    for grp_ in xl:
        g += grp_[:-1]
        if grp_[:-1] and f: g.append(f.pop(0))
        g.append(grp_[-1])
        n = per
        while scc_live_before(f, n): n += 1
        g += f[:n]; f = f[n:]
    g += f
    g.e(f"""
    s_cmp_lt_u32 s{sJ}, 4
    s_cbranch_scc1 L_clsV
    s_cmp_lt_u32 s{sJ}, 8
    s_cbranch_scc1 L_clsB
    """)
    return g

def class_setup(cls):
    g = Seg()
    g.e({'A':"L_clsA:", 'B':"L_clsB:", 'V':"L_clsV:"}[cls])
    t32 = 98
    g.e(f"s_lshl_b32 s{t32}, s{sMB}, 2\ns_add_u32 s{t32}, s{t32}, s{sWAVE}")
    cq = f2u(QSCALE); tb = 99
    def gunit(o, p, hb):
        o.e(f"""
        s_lshl_b32 s{sT1}, s{sT0}, 7
        s_mul_i32 s{tb}, s{sWAVE}, {16*3072}
        s_add_u32 s{sD+2*p}, s{sT1}, s{tb}
        s_mov_b32 s{sD+2*p+1}, s{sD+2*p}
        s_mul_i32 s{tb}, s{t32}, {2*48*1024}
        s_lshl_b32 s{sT1}, s{sT0}, 11
        s_add_u32 s{tb}, s{tb}, s{sT1}
        s_add_u32 s{hb}, s{tb}, {WS_H}
        """)
    def qk_params(o, idx):
        o.e(f"""
        s_lshl_b32 s{sT1}, s{sT0}, 18
        s_lshl_b32 s{tb}, s{t32}, 8
        s_add_u32 s{sEB+idx}, s{sT1}, s{tb}
        s_cmp_lt_u32 s{sT0}, 10
        s_cselect_b32 s{sSC+idx}, {cq}, 1.0
        """)
    def v_params(o, idx):
        o.e(f"""
        s_lshl_b32 s{sT1}, s{sT0}, 18
        s_lshl_b32 s{tb}, s{t32}, 8
        s_add_u32 s{tb}, s{tb}, {WS_V}
        s_add_u32 s{sEB+idx}, s{sT1}, s{tb}
        """)
    def q4(o, colbase):
        o.e(f"""
        s_lshl_b32 s{sT1}, s{sT0}, 7
        s_mul_i32 s{tb}, s{sWAVE}, {16*3840}
        s_add_u32 s{sT1}, s{sT1}, {colbase}
        s_add_u32 s{sD}, s{sT1}, s{tb}
        s_add_u32 s{sD+1}, s{sD}, 128
        """)
    def q2(o, colbase):
        o.e(f"""
        s_lshl_b32 s{sT1}, s{sT0}, 7
        s_mul_i32 s{tb}, s{sWAVE}, {32*3840}
        s_add_u32 s{sT1}, s{sT1}, {colbase}
        s_add_u32 s{sD+2}, s{sT1}, s{tb}
        s_add_u32 s{sD+3}, s{sD+2}, {16*3840}
        """)
    if cls == 'A':
        g.e(f"s_lshl_b32 s{sT0}, s{sJ}, 1\ns_sub_u32 s{sT0}, s{sT0}, 8"); gunit(g, 0, sHB)
    elif cls == 'B':
        g.e(f"s_sub_u32 s{sT0}, s{sJ}, 4\ns_mul_i32 s{sT0}, s{sT0}, 3"); q4(g, 0)
    else:
        g.e(f"s_lshl_b32 s{sT0}, s{sJ}, 1"); q4(g, 2560)
    g += dma_stage(0, cls) + dma_stage(1, cls)
    if cls == 'A':
        g.e(f"s_add_u32 s{sT0}, s{sT0}, 1"); gunit(g, 2, sHB+1)
        g.e(f"s_add_u32 s{sT0}, s{sJ}, 4"); q2(g, 0); qk_params(g, 2)
    elif cls == 'B':
        qk_params(g, 0)
        g.e(f"s_add_u32 s{sT0}, s{sT0}, 1"); qk_params(g, 1)
        g.e(f"s_add_u32 s{sT0}, s{sT0}, 1"); qk_params(g, 2); q2(g, 0)
        g.e(f"s_mov_b32 s{sT0}, s{sJ}"); gunit(g, 2, sHB+1)
    else:
        v_params(g, 0)
        g.e(f"s_add_u32 s{sT0}, s{sT0}, 1"); v_params(g, 1)
        g.e(f"s_and_b32 s{sT0}, s{sJ}, 1\ns_add_u32 s{sT0}, s{sT0}, 8"); v_params(g, 2); q2(g, 2560)
        g.e(f"s_mov_b32 s{sT0}, s{sJ}"); gunit(g, 2, sHB+1)
    if cls == 'V':
        g.e(f"""
        v_lshrrev_b32 v74, 2, v71
        v_lshlrev_b32 v74, 14, v74
        v_and_b32 v75, 3, v71
        v_lshlrev_b32 v75, 4, v75
        v_lshl_add_u32 v75, v70, 6, v75
        v_add_u32 v{vEP}, v74, v75
        s_cmp_lt_u32 s{sJ}, 2
        s_cselect_b32 s{sT0}, 0, {OOB}
        v_add_u32 v{vEP1}, s{sT0}, v{vEP}
        """)
    else:
        g.e(f"v_lshlrev_b32 v74, 3, v71\nv_lshl_add_u32 v{vEP}, v70, 14, v74")
    if cls == 'V':
        g.e(f"""
        s_or_b32 s{sT0}, s2, s{sWAVE}
        s_cmp_lg_u32 s{sT0}, 0
        s_cbranch_scc1 L_non
        s_memrealtime s[6:7]
        """)
        g.append(W(lg=0))
        g.e(f"s_or_b32 s6, s6, 1\nv_mov_b32 v68, s6\nv_mov_b32 v69, 0")
        g.append(I(f"buffer_store_dword v68, v69, {SDBG}, 0 offen sc1", cond=True))
        g.e("L_non:")
    g.append(I(f"buffer_store_dwordx4 v[80:83], v{vCST}, {SWS}, 0 offen sc1", tag="cst"))
    def dots(cb):
        out = Seg()
        for r in range(16):
            x = vX + 16*cb + r
            out.e(f"v_dot2_f32_bf16 v{vACC+(r%2)}, v{x}, s{sC11}, v{vACC+(r%2)}")
            out.e(f"v_dot2_f32_bf16 v{vACC+2+(r%2)}, v{x}, v{x}, v{vACC+2+(r%2)}")
        return out
    jobdma = Seg()
    for kg in range(4):
        jobdma.e(f"s_add_u32 m0, s{sWB}, {L_J + kg*1024}")
        jobdma.append(I(f"buffer_load_dwordx4 v{vJK+kg}, {SJ}, s{sJS+kg} offen lds", tag=("job", kg)))
    jobpar = Seg()
    for tg in range(4):
        jobpar.e(f"""
        s_lshl_b32 s{sT0}, s{sTC}, 2
        s_add_u32 s{sT0}, s{sT0}, {tg}
        s_mul_i32 s{sT1}, s{sT0}, 52
        s_lshr_b32 s{sT1}, s{sT1}, 8
        s_mul_i32 s{sT1}, s{sT1}, 355
        s_add_u32 s{sT0}, s{sT0}, s{sT1}
        s_mul_i32 s{sT1}, s{sTB}, 5
        s_add_u32 s{sT0}, s{sT0}, s{sT1}
        s_lshl_b32 s{sT0}, s{sT0}, 10
        s_add_u32 s{sJS+tg}, s{sT0}, {WS_W}
        """)
    def reads(cb):
        off = (XSLOT[cb] - 2)*16384; hi = off >= 65536
        return [I(f"ds_read_b128 {v(vX+16*cb+4*jj,4)}, v{vXR+jj+(4 if hi else 0)} offset:{off % 65536}", tag=("xr", cb, jj)) for jj in range(4)]
    order = [0, 1, 2, 3, 4, 5, 6, 7, 8, 9]
    for i, cb in enumerate(order):
        if cb < 8: g.append(W(vm=("x", cb, 3)))
        if i == 0: stamp(g, 1)
        if cb == 8:
            g.append(W(vm=("x", 9, 3)))
            for e in range(8): g.e(f"ds_write_b128 v{vXW}, {a(4*e,4)} offset:{(e//4)*16384 + (e%4)*1024}")
        g += reads(cb)
        if i >= 1:
            g.append(W(lg=("xr", order[i-1], 3)))
            g += dots(order[i-1])
        if cb == 3: g += dma_stage(2, cls)
    stamp(g, 2)
    g.append(W(lg=0, vm=dma_tag(0)))
    g.e("s_barrier")
    return g, dots(9), list(jobdma) + list(jobpar)

NTAIL = 4
def p1_order():
    o = []
    for ks in range(40): o += [(0, ks, u) for u in range(4)]
    for ks in range(40): o += [(1, ks, u) for u in range(2)]
    k1 = 40 - 4*NTAIL
    for ks in range(k1): o += [(2, ks, u) for u in range(4)]
    for ks in range(k1, 40): o += [(2, ks, 0), (2, ks, 2)]
    for ks in range(k1, 40): o += [(2, ks, 1), (2, ks, 3)]
    return o
ORDER = p1_order()
def stage_of(p, ks): return (ks//4, 10 + ks//8, 15 + ks//4)[p]
DIST = 6
def tr_reads(n):
    if n >= 400: return []
    p, ks, u = ORDER[n]
    slot = stage_of(p, ks) % NSLOT
    if p != 1: off = (ks % 4)*4096 + (u//2)*2048
    else: off = (ks % 8)*2048
    off += slot*16384
    reg = vTR + (u % 2)
    if off >= 65536: off -= 65536; reg += 2
    f = aWF + 4*(n % 8)
    return [I(f"ds_read_b64_tr_b16 {a(f,2)}, v{reg} offset:{off}", tag=("tr", n, 0)),
            I(f"ds_read_b64_tr_b16 {a(f+2,2)}, v{reg} offset:{off+512}", tag=("tr", n, 1))]
def p1_mfma(n, cls):
    p, ks, u = ORDER[n]
    acc = (aA, aB, aC)[p] + 16*u
    wf = a(aWF + 4*(n % 8), 4); x = v(vX + 4*ks, 4)
    c = "0" if ks == 0 else a(acc, 16)
    if cls == 'V' and p < 2: return I(f"v_mfma_f32_32x32x16_bf16 {a(acc,16)}, {x}, {wf}, {c}")
    return I(f"v_mfma_f32_32x32x16_bf16 {a(acc,16)}, {wf}, {x}, {c}")

def center_dot(ks):
    out = Seg()
    for r in range(4):
        x = vX + 4*ks + r
        out.e(f"v_dot2_f32_bf16 v{vLN+2*r}, v{x}, s{sC10}, v{vNM}")
        out.e(f"v_dot2_f32_bf16 v{vLN+2*r+1}, v{x}, s{sC01}, v{vNM}")
    for r in range(4):
        out.e(f"v_cvt_pk_bf16_f32 v{vX+4*ks+r}, v{vLN+2*r}, v{vLN+2*r+1}")
    return out
def center5(ks):
    out = Seg()
    for r in range(4):
        x = vX + 4*ks + r
        out.e(f"v_lshlrev_b32 v{vLN+2*r}, 16, v{x}\nv_and_b32 v{vLN+2*r+1}, s{sC10}, v{x}")
        out.e(f"v_add_f32 v{vLN+2*r}, v{vNM}, v{vLN+2*r}\nv_add_f32 v{vLN+2*r+1}, v{vNM}, v{vLN+2*r+1}")
        out.e(f"v_cvt_pk_bf16_f32 v{vX+4*ks+r}, v{vLN+2*r}, v{vLN+2*r+1}")
    return out

tmpctr = [0]
def epi_qk(acc, t, sbase, vscale, tag):
    out = Seg()
    for g4 in range(4):
        T = vTMP + 8*(tmpctr[0] % 4); tmpctr[0] += 1
        out.e(f"s_add_u32 s{sT0+g4%2}, s{sbase}, {(8*t+2*g4)*16384}")
        for e in range(4): out.e(f"v_accvgpr_read_b32 v{T+e}, a{acc+4*g4+e}")
        for e in range(4): out.e(f"v_mul_f32 v{T+e}, v{vscale}, v{T+e}")
        out.e(f"v_cvt_pk_bf16_f32 v{T+4}, v{T}, v{T+1}\nv_cvt_pk_bf16_f32 v{T+5}, v{T+2}, v{T+3}")
        out.append(I(f"buffer_store_dwordx2 {v(T+4,2)}, v{vEP}, {SWS}, s{sT0+g4%2} offen sc1", tag=tag))
    return out
def epi_v(acc, t, sbase, voff, tag):
    out = Seg()
    out.e(f"s_add_u32 s{sT0+t}, s{sbase}, {8*t*16384}")
    for m in range(2):
        T = vTMP + 16*(tmpctr[0] % 2); tmpctr[0] += 1
        for e in range(8): out.e(f"v_accvgpr_read_b32 v{T+e}, a{acc+8*m+e}")
        for e in range(8): out.e(f"v_mul_f32 v{T+e}, v{vR16+8*m+e}, v{T+e}")
        for e in range(4): out.e(f"v_cvt_pk_bf16_f32 v{T+8+e}, v{T+2*e}, v{T+2*e+1}")
        out.append(I(f"buffer_store_dwordx4 {v(T+8,4)}, v{voff}, {SWS}, s{sT0+t} offen offset:{128*m} sc1", tag=tag))
    return out
def epi_g(acc, t, shb, tag):
    out = Seg()
    ag = acc + 16*t; au = acc + 32 + 16*t
    for pp in range(2):
        P = vTMP + 24 + 4*(pp)
        for c4 in range(2):
            T = vTMP + 8*(tmpctr[0] % 3); tmpctr[0] += 1
            r0 = 8*pp + 4*c4
            for e in range(4): out.e(f"v_accvgpr_read_b32 v{T+e}, a{ag+r0+e}")
            for e in range(4): out.e(f"v_mul_f32 v{T+e}, v{vSG}, v{T+e}")
            for e in range(4): out.e(f"v_exp_f32 v{T+e}, v{T+e}")
            for e in range(4): out.e(f"v_accvgpr_read_b32 v{T+4+e}, a{au+r0+e}")
            for e in range(4): out.e(f"v_fma_f32 v{T+e}, v{T+e}, v{vS}, v{vS}")
            for e in range(4): out.e(f"v_rcp_f32 v{T+e}, v{T+e}")
            for e in range(4): out.e(f"v_mul_f32 v{T+4+e}, v{T+e}, v{T+4+e}")
            out.e(f"v_cvt_pk_bf16_f32 v{P+2*c4}, v{T+4}, v{T+5}\nv_cvt_pk_bf16_f32 v{P+2*c4+1}, v{T+6}, v{T+7}")
        out.append(I(f"buffer_store_dwordx4 {v(P,4)}, v{vH}, {SWS}, s{shb} offen offset:{t*1024+pp*512} sc1", tag=tag))
    return out

def job_process():
    out = Seg()
    out.append(W(vm=("job", 3)))
    for tg in range(4):
        T = vTMP + 4*tg
        out.append(I(f"ds_read_b64_tr_b16 {v(T,2)}, v{vJTR} offset:{tg*32}", tag=("jtr", tg, 0)))
        out.append(I(f"ds_read_b64_tr_b16 {v(T+2,2)}, v{vJTR} offset:{tg*32+512}", tag=("jtr", tg, 1)))
    out2 = Seg()
    out2.append(W(lg=("jtr", 3, 1)))
    for tg in range(4):
        out2.append(I(f"buffer_store_dwordx4 {v(vTMP+4*tg,4)}, v{vJST}, {SWS}, s{sJS+tg} offen sc1", tag="h1"))
    return out, out2

def spin(seg, name, addr, dst, width, srd_, cmp_lines):
    seg.e(f"s_mov_b32 s{sSPIN}, 0x40000")
    seg.e(f"L_sp{name}:")
    seg.e(cmp_lines)
    seg.e(f"s_cbranch_vccz L_ok{name}")
    seg.e(f"s_sub_u32 s{sSPIN}, s{sSPIN}, 1\ns_cbranch_scc1 L_ok{name}\ns_sleep 1")
    op = {1:"buffer_load_dword",4:"buffer_load_dwordx4"}[width]
    seg.append(I(f"{op} {v(dst,width)}, v{addr}, {srd_}, 0 offen sc1", cond=True))
    seg.e("s_waitcnt vmcnt(0)")
    seg.e(f"s_branch L_sp{name}")
    seg.e(f"L_ok{name}:")
def all4(d, non):
    return f"v_xor_b32 v{d}, {non}, v{d}\nv_xor_b32 v{d+1}, {non}, v{d+1}\nv_xor_b32 v{d+2}, {non}, v{d+2}\nv_xor_b32 v{d+3}, {non}, v{d+3}\nv_or3_b32 v{d}, v{d}, v{d+1}, v{d+2}\nv_or_b32 v{d}, v{d}, v{d+3}\nv_cmp_ne_u32 vcc, 0, v{d}"
def publish(seg, name, soff_reg, t):
    seg.e(f"s_cmp_lg_u32 s{sWAVE}, 0\ns_cbranch_scc1 L_fl{name}")
    seg.e(f"s_mov_b64 exec, 1\nv_mov_b32 v{t}, s{sNON}\nv_mov_b32 v{t+1}, 0")
    seg.append(I(f"buffer_store_dword v{t}, v{t+1}, {SWS}, s{soff_reg} offen sc1", cond=True))
    seg.e(f"s_mov_b64 exec, -1\nL_fl{name}:")

def wsbase(g, p, soff):
    g.e(f"s_add_u32 s{p}, s24, s{soff}\ns_addc_u32 s{p+1}, s25, 0")

def attn_addr_setup():
    g = Seg()
    T = vLN
    g.e(f"""
    s_lshl_b32 s{sHD}, s{sXCD}, 2
    s_lshr_b32 s{sTA}, s{sLOC}, 3
    s_add_u32 s{sHD}, s{sHD}, s{sTA}
    s_and_b32 s{sQB}, s{sLOC}, 7
    s_and_b32 s{sKH}, s{sWAVE}, 1
    s_mul_i32 s{sTA}, s{sHD}, {5*16384}
    v_lshrrev_b32 v{T}, 5, v{vLANE}
    v_and_b32 v{T+1}, 31, v{vLANE}
    v_lshlrev_b32 v{T+2}, 3, v{T+1}
    v_add_u32 v{T+2}, s{sTA}, v{T+2}
    v_lshl_add_u32 v{vK1A}, v{T}, 15, v{T+2}
    v_add_u32 v{vK1B}, 16384, v{vK1A}
    v_add_u32 v{T+2}, 65536, v{T+2}
    v_cmp_eq_u32 vcc, 0, v{T}
    v_mov_b32 v{T+3}, {WS_C-WS_K}
    v_mov_b32 v{vQ2}, {WS_C-WS_Q+16}
    v_cndmask_b32 v{vK2}, v{T+3}, v{T+2}, vcc
    v_cndmask_b32 v{vQ2}, v{vQ2}, v{T+2}, vcc
    v_lshrrev_b32 v{T+2}, 2, v{T+1}
    v_lshlrev_b32 v{T+2}, 14, v{T+2}
    v_add_u32 v{T+2}, s{sTA}, v{T+2}
    v_and_b32 v{T+3}, 3, v{T+1}
    v_lshlrev_b32 v{T+3}, 4, v{T+3}
    v_lshl_add_u32 v{T+3}, v{T}, 6, v{T+3}
    v_add_u32 v{T+2}, v{T+2}, v{T+3}
    v_mov_b32 v{T+3}, {WS_C-WS_V+16}
    v_cmp_gt_u32 vcc, 20, v{T+1}
    s_lshl_b32 s{sTA}, s{sKH}, 13
    s_add_u32 s{sTB}, s{sTA}, {WS_K+4096}
    v_cndmask_b32 v{T+2}, v{T+3}, v{T+2}, vcc
    v_mov_b32 v{T+3}, {WS_C-WS_V}
    v_cmp_eq_u32 vcc, 20, v{T+1}
    """)
    wsbase(g, pK, sTB)
    g.e(f"""
    v_cndmask_b32 v{vVL}, v{T+2}, v{T+3}, vcc
    s_add_u32 s{sTB}, s{sTA}, {WS_V+4096}
    """)
    wsbase(g, pV, sTB)
    g.e(f"""
    s_lshl_b32 s{sTA}, s{sQB}, 1
    s_lshr_b32 s{sTB}, s{sWAVE}, 1
    s_add_u32 s{sTA}, s{sTA}, s{sTB}
    s_lshl_b32 s{sTA}, s{sTA}, 10
    s_lshl_b32 s{sTB}, s{sKH}, 9
    s_add_u32 s{sTC}, s{sTA}, s{sTB}
    """)
    wsbase(g, pQ, sTC)
    g.e(f"""
    s_xor_b32 s{sQHI}, s{sTC}, 512
    s_lshl_b32 s{sOST}, s{sTC}, 1
    s_mul_i32 s{sTB}, s{sHD}, {3*32768}
    s_add_u32 s{sOST}, s{sOST}, s{sTB}
    s_add_u32 s{sOST}, s{sOST}, {WS_O}
    """)
    wsbase(g, pTW, sQHI)
    g2 = Seg()
    g2.e(f"""
    s_lshr_b32 s{sTA}, s{sXCD}, 1
    s_lshl_b32 s{sTA}, s{sTA}, 3
    s_add_u32 s{sRB}, s{sTA}, s{sQB}
    s_and_b32 s{sTA}, s{sXCD}, 1
    s_lshl_b32 s{sTA}, s{sTA}, 2
    s_lshr_b32 s{sTB}, s{sLOC}, 3
    s_add_u32 s{sCB}, s{sTA}, s{sTB}
    v_lshlrev_b32 v{T+2}, 4, v{T+1}
    v_lshl_add_u32 v{vOSA}, v{T}, 15, v{T+2}
    v_lshl_add_u32 v{vOSC}, v{T}, 3, v{T+2}
    v_add_u32 v{vOSC}, 65536, v{vOSC}
    v_lshlrev_b32 v{vLIN}, 4, v{vLANE}
    v_add_u32 v{vH3}, 49152, v{vLIN}
    v_add_u32 v{vH3+1}, 98304, v{vLIN}
    v_add_u32 v{vH3+2}, 147456, v{vLIN}
    v_lshrrev_b32 v{T+2}, 4, v{vLANE}
    v_and_b32 v{T+3}, 15, v{vLANE}
    v_lshlrev_b32 v{T+3}, 4, v{T+3}
    v_lshl_add_u32 v{vO3}, v{T+2}, 15, v{T+3}
    s_mul_i32 s{sLW}, s{sWAVE}, {LW}
    v_add_u32 v{vRW}, s{sLW}, v{vLIN}
    s_xor_b32 s{sTB}, s{sWAVE}, 1
    s_mul_i32 s{sTA}, s{sTB}, {LW}
    v_add_u32 v{vRR}, s{sTA}, v{vLIN}
    v_add_u32 v{vFH}, {F_H-F_QKV}, v{vPA}
    s_lshr_b32 s{sTA}, s{sRB}, 2
    s_lshl_b32 s{sTA}, s{sTA}, 10
    s_add_u32 s{sTA}, s{sTA}, {F_O}
    v_lshrrev_b32 v{T+2}, 3, v{T+1}
    v_and_b32 v{T+3}, 7, v{T+1}
    v_lshlrev_b32 v{T+3}, 2, v{T+3}
    v_lshl_add_u32 v{T+3}, v{T+2}, 8, v{T+3}
    v_add_u32 v{vFO}, s{sTA}, v{T+3}
    s_mul_i32 s{sTA}, s{sCB}, {72*5*1024}
    s_mul_i32 s{sTB}, s{sWAVE}, {12*5*1024}
    s_add_u32 s{sWP}, s{sTA}, s{sTB}
    s_add_u32 s{sWP}, s{sWP}, {WS_W}
    s_mul_i32 s{sTB}, s{sWAVE}, {6*5*1024}
    s_add_u32 s{sWP2}, s{sTA}, s{sTB}
    s_add_u32 s{sWP2}, s{sWP2}, {WS_W + 48*5*1024}
    s_mul_i32 s{sTA}, s{sRB}, {4*48*1024}
    s_mul_i32 s{sTB}, s{sWAVE}, {12*1024}
    s_add_u32 s{sHP}, s{sTA}, s{sTB}
    s_add_u32 s{sHP}, s{sHP}, {WS_H}
    s_lshl_b32 s{sTA}, s{sRB}, 10
    s_mul_i32 s{sTB}, s{sWAVE}, {24*32768}
    s_add_u32 s{sOP}, s{sTA}, s{sTB}
    s_add_u32 s{sOP}, s{sOP}, {WS_O}
    s_mov_b32 s{sSAFE}, 0
    s_add_u32 s{sFL}, s{sFLQ}, {F_H-F_QKV}
    s_lshl_b32 s{sTA}, s{sQB}, 10
    s_lshr_b32 s{sTB}, s{sHD}, 3
    s_lshl_b32 s{sTB}, s{sTB}, 8
    s_add_u32 s{sTA}, s{sTA}, s{sTB}
    s_and_b32 s{sTB}, s{sHD}, 7
    s_lshl_b32 s{sTB}, s{sTB}, 2
    s_add_u32 s{sTA}, s{sTA}, s{sTB}
    s_add_u32 s{sFO}, s{sTA}, {F_O}
    """)
    return g, g2

def kv_set(t): return aKV + 14*(t % 4)
def k_loads(t):
    b = kv_set(t); off = t*256 - 4096
    return [I(f"global_load_dwordx2 {a(b,2)}, v{vK1A}, {sp(pK)} offset:{off} sc1", tag=("k",t,0)),
            I(f"global_load_dwordx2 {a(b+2,2)}, v{vK1B}, {sp(pK)} offset:{off} sc1", tag=("k",t,1)),
            I(f"global_load_dwordx2 {a(b+4,2)}, v{vK2}, {sp(pK)} offset:{off} sc1", tag=("k",t,2))]
def v_loads(t):
    b = kv_set(t) + 6; off = t*256 - 4096
    return [I(f"global_load_dwordx4 {a(b,4)}, v{vVL}, {sp(pV)} offset:{off} sc1", tag=("v",t,0)),
            I(f"global_load_dwordx4 {a(b+4,4)}, v{vVL}, {sp(pV)} offset:{off+128} sc1", tag=("v",t,1))]
def q_loads():
    out = []
    for u in range(4):
        b = aQ + 6*u; p = pQ if u < 2 else pTW; off = (u % 2)*256
        out.append(I(f"global_load_dwordx2 {a(b,2)}, v{vK1A}, {sp(p)} offset:{off} sc1", tag=("q",u,0)))
        out.append(I(f"global_load_dwordx2 {a(b+2,2)}, v{vK1B}, {sp(p)} offset:{off} sc1", tag=("q",u,1)))
        out.append(I(f"global_load_dwordx2 {a(b+4,2)}, v{vQ2}, {sp(p)} offset:{off} sc1", tag=("q",u,2)))
    return out

def phase1(cls):
    g, lastdots, jobstart = class_setup(cls)
    for n in range(DIST): g += tr_reads(n)
    g += lastdots
    inv = f2u(1.0/640.0)
    A0, A1, A2, A3 = vACC, vACC+1, vACC+2, vACC+3
    g.e(f"""
    s_mov_b32 s{sT0}, {inv}
    v_add_f32 v{A0}, v{A0}, v{A1}
    v_add_f32 v{A2}, v{A2}, v{A3}
    v_mov_b32 v{A1}, v{A0}
    v_mov_b32 v{A3}, v{A2}
    v_permlane32_swap_b32 v{A0}, v{A1}
    v_permlane32_swap_b32 v{A2}, v{A3}
    v_add_f32 v{A0}, v{A0}, v{A1}
    v_add_f32 v{A2}, v{A2}, v{A3}
    v_mul_f32 v{A0}, s{sT0}, v{A0}
    v_mul_f32 v{A2}, s{sT0}, v{A2}
    v_fma_f32 v{A2}, -v{A0}, v{A0}, v{A2}
    v_max_f32 v{A2}, 0, v{A2}
    v_cvt_pk_bf16_f32 v{A0}, v{A0}, v{A2}
    v_and_b32 v{A2}, 0xffff0000, v{A0}
    v_lshlrev_b32 v{A0}, 16, v{A0}
    v_sub_f32 v{vNM}, 0, v{A0}
    """)
    for ks in range(K0): g += center_dot(ks)
    g.e(f"s_mov_b32 s{sC10}, 0xffff0000")
    post = Seg()
    post.e(f"""
    v_add_f32 v{A2}, {f2u(1e-5)}, v{A2}
    v_cvt_pk_bf16_f32 v{A2}, v{A2}, v{A2}
    v_lshlrev_b32 v{A2}, 16, v{A2}
    v_sqrt_f32 v{A2}, v{A2}
    v_mov_b32 v{vZERO}, 0
    v_cvt_pk_bf16_f32 v{A2}, v{A2}, v{A2}
    v_lshlrev_b32 v{vS}, 16, v{A2}
    v_rcp_f32 v{vR}, v{vS}
    v_mul_f32 v{vSG}, {f2u(-LOG2E)}, v{vR}
    """)
    if cls != 'V':
        for k in range(3): post.e(f"v_mul_f32 v{vSCL+k}, s{sSC+k}, v{vR}")
    else:
        post.e(f"""
        s_add_u32 s{sT0}, s{sWB}, {L_X}
        v_and_b32 v{vSCL}, 31, v{vLANE}
        v_lshlrev_b32 v{vSCL}, 2, v{vSCL}
        v_add_u32 v{vSCL}, s{sT0}, v{vSCL}
        v_lshrrev_b32 v{vSCL+1}, 5, v{vLANE}
        v_lshlrev_b32 v{vSCL+1}, 4, v{vSCL+1}
        v_add_u32 v{vSCL+1}, s{sT0}, v{vSCL+1}
        ds_write_b32 v{vSCL}, v{vR}
        """)
        for k in range(4):
            post.append(I(f"ds_read_b128 {v(vR16+4*k,4)}, v{vSCL+1} offset:{32*k}", tag=("r16", k)))
    post.append(I(f"buffer_load_dword v{vNON}, v{vZERO}, {SDBG}, 0 offen sc1", tag="non"))
    stamp(g, 3)
    g.append(W(lg=("tr", 1, 1)))
    gaps = [Gap(p1_mfma(n, cls)) for n in range(400)]
    seen = {0}; barrier_gap = {}
    for n in range(400):
        if n + DIST < 400:
            sg = stage_of(*ORDER[n+DIST][:2])
            if sg not in seen:
                seen.add(sg); barrier_gap[sg] = n
                w = W(vm=[dma_tag(sg)]); gaps[n].sec[0] += [w, I("s_barrier")]
        if n % 2 == 1 and n + 1 < 400: gaps[n].sec[0].append(W(lg=("tr", min(n+2, 399), 1)))
        gaps[n].sec[1] += tr_reads(n + DIST)
    dm = Chain(gaps)
    dm.put(dma_stage(3, cls) + dma_stage(4, cls) + dma_stage(5, cls), 0, barrier_gap[1])
    for sg in range(1, 25):
        d = dma_stage(sg+5, cls)
        if d: dm.put(d, barrier_gap[sg]+1, barrier_gap[sg]+11)
        if sg == 1: dm.put(jobstart, barrier_gap[sg]+11, barrier_gap[sg]+16+24)
    ch = Chain(gaps)
    cen = Seg()
    for ks in range(K0, 40): cen += center5(ks)
    ch.put(cen, 0, 154)
    for n in range(160):
        ks = ORDER[n][1]
    ch.put(post, 154, 162)
    if cls == 'A':
        e0 = epi_g(aA, 0, sHB, "h1") + epi_g(aA, 1, sHB, "h1")
        cut = len(e0)*3//4
        ch.put(e0[:cut], 162, 240); rest0 = e0[cut:]
        e1 = epi_qk(aB, 0, sEB+2, vSCL+2, "qkv") + epi_qk(aB+16, 1, sEB+2, vSCL+2, "qkv")
    elif cls == 'B':
        e0 = Seg()
        for u in range(4): e0 += epi_qk(aA+16*u, u % 2, sEB + u//2, vSCL + u//2, "qkv")
        ch.put(e0, 162, 240); rest0 = []
        e1 = epi_qk(aB, 0, sEB+2, vSCL+2, "qkv") + epi_qk(aB+16, 1, sEB+2, vSCL+2, "qkv")
    else:
        e0 = Seg(); e0.append(W(lg=("r16", 3)))
        for u in range(4): e0 += epi_v(aA+16*u, u % 2, sEB + u//2, vEP, "qkv")
        ch.put(e0, 162, 240); rest0 = []
        e1 = epi_v(aB, 0, sEB+2, vEP1, "qkv") + epi_v(aB+16, 1, sEB+2, vEP1, "qkv")
    ch.put(e1, 242, opt('e1end', 258))
    PUB = opt("pub", 18)
    bg = barrier_gap[PUB]
    assert ch.k < bg - 8, (ch.k, bg)
    gaps[bg].sec[0][0].wvm += ["qkv", "non", "cst"]
    as1, as2 = attn_addr_setup()
    ch.put(as1, 260, bg)
    pb = Seg()
    spin(pb, f"N{cls}", vZERO, vNON, 1, SDBG, f"v_cmp_eq_u32 vcc, 0, v{vNON}")
    pb.e(f"v_readfirstlane_b32 s{sNON}, v{vNON}")
    publish(pb, f"Q{cls}", sFLQ, vLN+2)
    ch.block(pb, bg)
    k = bg + 2
    if rest0: ch.put(rest0, k, k+22); k += 22
    j1, j2 = job_process()
    ch.put(j1, k, k+4); ch.put(j2, k+7, k+15)
    ch.put(as2, k+15, 352)
    POLL = opt("poll", 352); CHK = opt("chk", 366)
    ch.put([I(f"buffer_load_dwordx4 {v(44,4)}, v{vPA}, {SWS}, 0 offen sc1", tag="pollq")], POLL, POLL+1)
    ck = Seg(); ck.append(W(vm="pollq"))
    spin(ck, f"Q{cls}", vPA, 44, 4, SWS, all4(44, f"s{sNON}"))
    stamp(ck, 7)
    ch.block(ck, CHK)
    ld = Chain(gaps); ld.k = ch.k + 1
    first = q_loads() + k_loads(0) + v_loads(0) + k_loads(1) + v_loads(1) + k_loads(2) + v_loads(2)
    ld.put(first, ch.k + 1, 400)
    ch.put(epi_g(aC, 0, sHB+1, "h1"), 400 - 8*NTAIL + 2, 399)
    for n, gp in enumerate(gaps):
        if n == 160: stamp(g, 4)
        if n == 240: stamp(g, 5)
        g += gp.flat()
    stamp(g, 6)
    if cls != 'V': g.e("s_branch L_att0")
    return g

def s_mfma(n):
    t, u = n // 4, n % 4
    S = v(16*(n % 2), 16); k = kv_set(t); q = aQ + 6*u
    return (I(f"v_mfma_f32_32x32x16_bf16 {S}, {a(k,4)}, {a(q,4)}, 0"),
            I(f"v_mfma_f32_32x32x8_bf16 {S}, {a(k+4,2)}, {a(q+4,2)}, {S}"))
def pv_mfma(n):
    t, u = n // 4, n % 4
    O = a(aO + 16*u, 16); vv = kv_set(t) + 6; P = 32 + 8*(n % 2)
    return (I(f"v_mfma_f32_32x32x16_bf16 {O}, {a(vv,4)}, {v(P,4)}, {'0' if t == 0 else O}"),
            I(f"v_mfma_f32_32x32x16_bf16 {O}, {a(vv+4,4)}, {v(P+4,4)}, {O}"))
def softmax_valu(n):
    S = 16*(n % 2); P = 32 + 8*(n % 2)
    E = lambda i: I(f"v_exp_f32 v{S+i}, v{S+i}")
    C = lambda k: I(f"v_cvt_pk_bf16_f32 v{P+k}, v{S+2*k}, v{S+2*k+1}")
    return [E(0),E(1),E(2),C(0),E(3),E(4), C(1),E(5),E(6),C(2),E(7),E(8), C(3),E(9),E(10),C(4),E(11),E(12), C(5),E(13),E(14),E(15),C(6),C(7)]

def p3_frags():
    fr = []
    for ks in range(12):
        fr += [("w", ks, t) for t in range(5)] + [("h", ks, u) for u in range(4)]
    for ks in range(12, 18):
        fr += [("w", ks, t) for t in range(5)] + [("o", ks, u) for u in range(4)]
    return fr
FR = p3_frags()
PRE_SLOTS = [a(88+4*i,4) for i in range(27 if STAMPS else 28)] + [v(64+4*i,4) for i in range(48)]
KV_SLOTS = [a(aKV+4*i,4) for i in range(14)]
LDS_FR = [f for f in FR if f[0] == "w"][-NLPF:]
class Loader:
    def __init__(self): self.cur = {pTW: None, pTH: None}
    def base(self, p, sreg, hi):
        if self.cur[p] == (sreg, hi): return []
        self.cur[p] = (sreg, hi)
        o = Seg(); o.e(f"s_add_u32 s{p}, s{sreg}, {hi+4096}\ns_add_u32 s{p}, s24, s{p}\ns_addc_u32 s{p+1}, s25, 0"); return list(o)
    def addr(self, f):
        kind, ks, x = f
        if kind == "w":
            off = (ks*5 + x)*1024 if ks < 12 else ((ks-12)*5 + x)*1024
            return pTW, (sWP if ks < 12 else sWP2), off // 8192 * 8192, off % 8192 - 4096, vLIN
        if kind == "h":
            off = ks*1024
            return pTH, sHP, off // 8192 * 8192, off % 8192 - 4096, (vLIN if x == 0 else vH3 + x - 1)
        return pTH, sOP, (ks-12)*4*32768, x*256 - 4096, vO3
    def emit(self, f, reg):
        p, sreg, hi, lo, vr = self.addr(f)
        return self.base(p, sreg, hi) + [I(f"global_load_dwordx4 {reg}, v{vr}, {sp(p)} offset:{lo} sc1", tag=f)]
    def emit_lds(self, f, idx):
        kind, ks, x = f
        off = (ks*5 + x)*1024 if ks < 12 else ((ks-12)*5 + x)*1024
        sreg = sWP if ks < 12 else sWP2
        hi, lo = off // 4096 * 4096, off % 4096
        out = self.base(pTW, sreg, hi - 4096)
        m0 = L_PF + idx*1024 - lo
        if self.cur.get("m0") != m0:
            self.cur["m0"] = m0; out.append(I(f"s_add_u32 m0, s{sLW}, {m0}"))
        return out + [I(f"global_load_lds_dwordx4 v{vLIN}, {sp(pTW)} offset:{lo} sc1", tag=("L",)+f)]
vFT = 64

def attention(regmap, loader):
    g = Seg()
    g.e("L_att0:")
    g += epi_g(aC, 1, sHB+1, "h1")
    stamp(g, 8)
    g.e("L_att1:")
    g.append(W(vm=[("q",3,2), ("k",0,2)]))
    m = s_mfma(0); g.append(m[0]); g.append(m[1])
    free = [[] for _ in range(128*4)]
    for t in range(32):
        if t + 3 < 32:
            kl = k_loads(t+3); vl = v_loads(t+3)
            for i in range(3): free[16*t + i].append(kl[i])
            for i in range(2): free[16*t + 4 + i].append(vl[i])
        if t + 1 < 32: free[16*t + 11].append(W(vm=[("k",t+1,2), ("v",t+1,1)]))
    free[3].append(W(vm=("v",0,1)))
    pub = Seg(); pub.append(W(vm="h1")); pub.e("s_barrier")
    publish(pub, "H", sFL, vFT)
    free[16*1 + 7] += pub
    HP = opt("hpoll", 7)
    free[16*HP + 7].append(I(f"buffer_load_dwordx4 {v(vFT+4,4)}, v{vFH}, {SWS}, 0 offen sc1", tag="pollh"))
    chk = Seg(); chk.append(W(vm="pollh"))
    spin(chk, "H", vFH, vFT+4, 4, SWS, all4(vFT+4, f"s{sNON}"))
    free[16*(HP+2) + 7] += chk
    pos = []
    for t in range(HP+3, 32):
        pos += [16*t + i for i in (6,7,8,9,10,12,13,14,15)]
    q = []
    for i, f in enumerate(LDS_FR): q.append(loader.emit_lds(f, i))
    for i, reg in enumerate(PRE_SLOTS):
        regmap[FR[i]] = reg
        q.append(loader.emit(FR[i], reg))
    step = len(pos) / len(q)
    assert step >= 1.0
    for i, ins in enumerate(q):
        k = int(i*step)
        sal = ins[:-1]
        if sal and k > 0 and int((i-1)*step) < k - 1 and i > 0:
            free[pos[k-1]].append(sal[0]); sal = sal[1:]
        free[pos[k]] += sal + [ins[-1]]
    for n in range(128):
        va = softmax_valu(n)
        ms = [None]*4
        if n + 1 < 128: ms[0], ms[1] = s_mfma(n+1)
        if n >= 1: ms[2], ms[3] = pv_mfma(n-1)
        for p in range(4):
            if ms[p] is not None: g.append(ms[p])
            g += free[4*n + p]
            g += va[6*p:6*p+6]
    m = pv_mfma(127); g.append(m[0]); g.append(m[1])
    stamp(g, 9)
    for k in range(3): g.e(f"ds_write_b128 v{vRW}, {a(aO+32+4*k,4)} offset:{k*1024}")
    for u in range(2):
        for k in range(12): g.e(f"v_accvgpr_read_b32 v{12*u+k}, a{aO+16*u+k}")
    for k in range(3): g.e(f"ds_write_b128 v{vRW}, {a(aO+48+4*k,4)} offset:{(3+k)*1024}")
    g.append(W(lg=0)); g.e("s_barrier")
    for k in range(6): g.append(I(f"ds_read_b128 {v(24+4*k,4)}, v{vRR} offset:{k*1024}", tag=("red",k)))
    g.e(f"s_mov_b32 s{sTA}, {f2u(2.0**-60)}\ns_mov_b32 s{sTB}, {f2u(2.0**60)}\ns_mov_b32 s{sTC}, 0x7f000000")
    for u in range(2):
        g.append(W(lg=("red", 3*u+2)))
        for k in range(12): g.e(f"v_add_f32 v{12*u+k}, v{12*u+k}, v{24+12*u+k}")
    g.e(f"""
    v_mov_b32 v24, v8
    v_mov_b32 v26, v8
    v_mov_b32 v25, v20
    v_mov_b32 v27, v20
    v_add_f32 v28, |v0|, |v1|
    v_add_f32 v29, |v12|, |v13|
    v_permlane32_swap_b32 v26, v24
    v_permlane32_swap_b32 v27, v25
    v_add_f32 v28, v28, |v2|
    v_rcp_f32 v30, v24
    v_rcp_f32 v31, v25
    v_add_f32 v29, v29, |v14|
    """)
    for u in range(2):
        for k in range(8): g.e(f"v_mul_f32 v{32+8*u+k}, v{30+u}, v{12*u+k}")
        for k in range(4): g.e(f"v_cvt_pk_bf16_f32 v{32+8*u+k}, v{32+8*u+2*k}, v{32+8*u+2*k+1}")
        g.append(I(f"buffer_store_dwordx4 {v(32+8*u,4)}, v{vOSA}, {SWS}, s{sOST} offen offset:{512*u} sc1", tag="ost"))
    for u in range(2):
        for k in range(4): g.e(f"v_mul_f32 v{36+8*u+k}, v{30+u}, v{12*u+8+k}")
        for k in range(2): g.e(f"v_cvt_pk_bf16_f32 v{36+8*u+k}, v{36+8*u+2*k}, v{36+8*u+2*k+1}")
        g.append(I(f"buffer_store_dwordx2 {v(36+8*u,2)}, v{vOSC}, {SWS}, s{sOST} offen offset:{512*u} sc1", tag="ost"))
    for k in range(3, 12):
        g.e(f"v_add_f32 v28, v28, |v{k}|\nv_add_f32 v29, v29, |v{12+k}|")
    g.e(f"""
    v_min_f32 v26, v24, v25
    v_max_f32 v27, v24, v25
    v_add_f32 v28, v28, v29
    v_cmp_nge_f32 vcc, v26, s{sTA}
    v_cmp_nle_f32 s[98:99], v27, s{sTB}
    v_cmp_nlt_f32 s[100:101], v28, s{sTC}
    s_lshl_b32 s{sTB}, s{sWAVE}, 2
    s_add_u32 s{sTB}, s{sTB}, {L_VOTE}
    v_mov_b32 v25, s{sTB}
    s_or_b64 vcc, vcc, s[98:99]
    s_or_b64 vcc, vcc, s[100:101]
    s_cselect_b32 s{sTA}, 1, 0
    v_mov_b32 v24, s{sTA}
    ds_write_b32 v25, v24
    v_mov_b32 v25, {L_VOTE}
    """)
    stamp(g, 10)
    return g

vLA = 0; vGO = 5; vXD = 10; vW3 = 20; vLP = 21; vP3T = 22
R3ROW = 336
def phase3(regmap, loader):
    g = Seg()
    gaps = [Gap(None) for _ in range(360)]
    npre = len(PRE_SLOTS)
    freeq = collections.deque((0, r) for r in KV_SLOTS)
    released = set()
    def take(limit=None):
        while not freeq:
            ks = min(k for k in range(18) if k not in released); released.add(ks)
            for f in FR:
                if f[1] == ks: freeq.append((20*ks+20, regmap[f]))
        return freeq.popleft()
    rest = [f for f in FR[npre:] if f[0] != "o" and f not in LDS_FR]
    ofr = [f for f in FR if f[0] == "o"]
    ld = Chain(gaps)
    gpos = 1
    STEP = opt("p3step", 4)
    for f in rest:
        e, r = take(); gpos = max(gpos, e); regmap[f] = r
        assert gpos + 30 < 20*f[1], (f, gpos)
        ld.put(loader.emit(f, r), gpos, gpos+1); gpos += STEP
    OPOLL, OCHK = opt("opoll", 150), opt("ochk", 190)
    assert gpos < OPOLL
    ld.put([I(f"buffer_load_dword v{vP3T}, v{vFO}, {SWS}, 0 offen sc1", tag="pollo")], OPOLL, OPOLL+1)
    chk = Seg(); chk.append(W(vm="pollo"))
    spin(chk, "O", vFO, vP3T, 1, SWS, f"v_cmp_ne_u32 vcc, s{sNON}, v{vP3T}")
    stamp(chk, 12)
    ld.block(chk, OCHK)
    gpos = OCHK + 1
    for f in ofr:
        e, r = take(); assert e <= gpos + 10, (e, f, gpos)
        gpos = max(gpos, e); regmap[f] = r
        ld.put(loader.emit(f, r), gpos, gpos+1); gpos += 2
    lr = Chain(gaps)
    for i, f in enumerate(LDS_FR):
        e, r = take(); regmap[f] = r
        at = max(e, 20*f[1] - 24 + 3*f[2])
        assert at < 20*f[1] - 4, (f, at)
        lr.put([I(f"ds_read_b128 {r}, v{vLP} offset:{L_PF + i*1024}", tag=("R",)+f)], at, at+1)
    ch = Chain(gaps)
    v1 = Seg(); v1.append(W(lg=0)); v1.e("s_barrier"); v1.append(I("ds_read_b128 v[28:31], v25", tag="votes"))
    ch.put(v1, 2, 3)
    vt = Seg(); vt.append(W(lg="votes"))
    vt.e(f"""
    v_or3_b32 v28, v28, v29, v30
    v_or_b32 v28, v28, v31
    s_nop 0
    v_readfirstlane_b32 s{sTA}, v28
    s_andn2_b32 s{sTA}, s{sTA}, s{sSAFE}
    s_cbranch_scc1 L_fallback
    """)
    ch.block(vt, 10)
    pub = Seg(); pub.append(W(vm="ost")); pub.e("s_barrier")
    publish(pub, "O", sFO, 28)
    stamp(pub, 11)
    ch.block(pub, opt("opub", 24))
    ad = Seg()
    T = 23
    ad.e(f"""
    s_lshl_b32 s{sTA}, s{sWAVE}, 6
    v_lshrrev_b32 v{T}, 4, v{vLIN}
    v_add_u32 v{T}, s{sTA}, v{T}
    v_add_u32 v{vLP}, s{sLW}, v{vLIN}
    s_mul_i32 s{sTA}, s{sRB}, {64*1280}
    s_mul_i32 s{sTB}, s{sCB}, 160
    s_add_u32 s{sMBX}, s{sTA}, s{sTB}
    """)
    for k in range(5):
        ad.e(f"""
        v_add_u32 v24, {256*k}, v{T}
        v_mul_u32_u24 v26, 3277, v24
        v_lshrrev_b32 v26, 16, v26
        v_mul_u32_u24 v27, 20, v26
        v_sub_u32 v27, v24, v27
        v_mul_u32_u24 v24, {R3ROW}, v26
        v_lshl_add_u32 v24, v27, 4, v24
        v_add_u32 v{vLA+k}, {L_PF}, v24
        v_add_u32 v{32+k}, {L_PF+2*LW}, v24
        v_mul_u32_u24 v24, 1280, v26
        v_lshl_add_u32 v{vGO+k}, v27, 3, v24
        """)
        ad.append(I(f"buffer_load_dwordx2 {v(vXD+2*k,2)}, v{vGO+k}, {SX}, s{sMBX} offen", tag=("xres",k)))
    ad.e(f"""
    s_add_u32 s{sTA}, s{sLW}, {L_PF}
    v_lshrrev_b32 v{T}, 4, v{vLIN}
    v_and_b32 v24, 15, v{T}
    v_mul_u32_u24 v24, {R3ROW}, v24
    v_and_b32 v{T}, 48, v{T}
    v_add3_u32 v{vW3}, v{T}, v24, s{sTA}
    """)
    ch.put(ad, 30, 140)
    def tg(f): return ("R",)+f if f in LDS_FR else f
    for m in range(360):
        ks, u, t = m // 20, (m % 20) // 5, m % 5
        b = ("h" if ks < 12 else "o", ks, u)
        w = None
        if m % 20 == 0:
            ws_ = [("w", ks, tt) for tt in range(5)]
            vm = [f for f in ws_ if f not in LDS_FR] + ([("h", ks, uu) for uu in range(4)] if ks < 12 else [b])
            lg = [tg(f) for f in ws_ if f in LDS_FR]
            w = W(vm=vm, lg=(lg or None))
        elif ks >= 12 and t == 0: w = W(vm=b)
        if w is not None:
            if m == 0: g.append(w)
            else: gaps[m-1].sec[2].append(w)
        acc = a(4*(5*u+t), 4)
        gaps[m].mfma = I(f"v_mfma_f32_16x16x32_bf16 {acc}, {regmap[('w',ks,t)]}, {regmap[b]}, {'0' if ks == 0 else acc}")
        if ks == 17 and u >= 2:
            uu = u - 2
            gaps[m].sec[1].append(I(f"ds_write_b128 v{vW3}, {a(4*(5*uu+t),4)} offset:{uu*16*R3ROW + t*64}"))
    first_r = min(i for i, gp in enumerate(gaps) if any(x.tag and x.tag[0] == "R" for x in gp.sec[1] if isinstance(x.tag, tuple)))
    gaps[first_r].sec[0].insert(0, W(vm=("L",)+LDS_FR[-1]))
    for gp in gaps: g += gp.flat()
    for uu in (2, 3):
        for t in range(5): g.e(f"ds_write_b128 v{vW3}, {a(4*(5*uu+t),4)} offset:{uu*16*R3ROW + t*64}")
    stamp(g, 13)
    g.append(W(lg=0)); g.e("s_barrier")
    R = 64
    for k in range(5):
        for src in range(4):
            ar = vLA + k if src < 2 else 32 + k
            g.append(I(f"ds_read_b128 {v(R+16*k+4*src,4)}, v{ar} offset:{(src%2)*LW}", tag=("fr",k,src)))
    g.append(W(vm=("xres",4)))
    for k in range(5):
        b = R + 16*k; x = vXD + 2*k; T = 24
        g.e(f"""
        v_lshlrev_b32 v{T}, 16, v{x}
        v_and_b32 v{T+1}, 0xffff0000, v{x}
        v_lshlrev_b32 v{T+2}, 16, v{x+1}
        v_and_b32 v{T+3}, 0xffff0000, v{x+1}
        """)
        g.append(W(lg=("fr",k,3)))
        for e in range(4): g.e(f"v_add_f32 v{b+e}, v{b+e}, v{b+4+e}")
        for e in range(4): g.e(f"v_add_f32 v{b+8+e}, v{b+8+e}, v{b+12+e}")
        for e in range(4): g.e(f"v_add_f32 v{T+e}, v{T+e}, v{b+e}")
        for e in range(4): g.e(f"v_add_f32 v{T+e}, v{T+e}, v{b+8+e}")
        g.e(f"v_cvt_pk_bf16_f32 v{b}, v{T}, v{T+1}\nv_cvt_pk_bf16_f32 v{b+1}, v{T+2}, v{T+3}")
        g.e(f"buffer_store_dwordx2 {v(b,2)}, v{vGO+k}, {SOUT}, s{sMBX} offen")
    if STAMPS:
        g.e("s_waitcnt vmcnt(0)")
        stamp(g, 14)
        dump_stamps(g)
    g.e("L_end:\ns_endpgm")
    return g

def dump_stamps(g):
    g.e(f"""
    s_lshl_b32 s{sTA}, s2, 2
    s_add_u32 s{sTA}, s{sTA}, s{sWAVE}
    s_lshl_b32 s{sTA}, s{sTA}, 8
    s_add_u32 s{sTA}, s{sTA}, {WS_T}
    v_mbcnt_lo_u32_b32 v0, -1, 0
    v_mbcnt_hi_u32_b32 v0, -1, v0
    v_lshlrev_b32 v0, 2, v0
    v_accvgpr_read_b32 v1, a{aSTAMP}
    buffer_store_dword v1, v0, {SWS}, s{sTA} offen
    s_waitcnt vmcnt(0)
    """)

def fallback():
    g = Seg()
    g.e("L_fallback:")
    g.e(f"s_mov_b32 s{sSAFE}, 1\ns_waitcnt vmcnt(0) lgkmcnt(0)\ns_barrier")
    wsbase(g, pTW, sQHI)
    g += q_loads()
    for u in range(4): g.e(f"v_mov_b32 v{32+u}, 0xff800000")
    g.e(f"s_sub_u32 s{pTH}, s{pK}, 4096\ns_subb_u32 s{pTH+1}, s{pK+1}, 0\ns_mov_b32 s{sTB}, 32")
    g.e("L_fbloop:")
    b = aKV
    g.e(f"""
    global_load_dwordx2 {a(b,2)}, v{vK1A}, {sp(pTH)} sc1
    global_load_dwordx2 {a(b+2,2)}, v{vK1B}, {sp(pTH)} sc1
    global_load_dwordx2 {a(b+4,2)}, v{vK2}, {sp(pTH)} sc1
    s_waitcnt vmcnt(0)
    """)
    for u in range(4):
        q = aQ + 6*u
        g.e(f"v_mfma_f32_32x32x16_bf16 v[0:15], {a(b,4)}, {a(q,4)}, 0")
        g.e(f"v_mfma_f32_32x32x8_bf16 v[0:15], {a(b+4,2)}, {a(q+4,2)}, v[0:15]")
        for k in range(8): g.e(f"v_max3_f32 v{32+u}, v{2*k}, v{2*k+1}, v{32+u}")
    g.e(f"""
    s_add_u32 s{pTH}, s{pTH}, 256
    s_addc_u32 s{pTH+1}, s{pTH+1}, 0
    s_sub_u32 s{sTB}, s{sTB}, 1
    s_cmp_lg_u32 s{sTB}, 0
    s_cbranch_scc1 L_fbloop
    """)
    for u in range(4): g.e(f"v_mov_b32 v{36+u}, v{32+u}")
    for u in range(4): g.e(f"v_permlane32_swap_b32 v{32+u}, v{36+u}")
    for u in range(4): g.e(f"v_max_f32 v{32+u}, v{32+u}, v{36+u}")
    g.e(f"ds_write_b128 v{vRW}, v[32:35]\ns_waitcnt lgkmcnt(0)\ns_barrier\nds_read_b128 v[36:39], v{vRR}\ns_waitcnt lgkmcnt(0)")
    g.e(f"v_cmp_lt_u32 vcc, 511, v{vLIN}")
    for u in range(4):
        m = 32 + u; q2 = aQ + 6*u + 4
        g.e(f"""
        v_max_f32 v{m}, v{m}, v{36+(u+2)%4}
        v_sub_f32 v{m}, 0, v{m}
        v_cvt_pk_bf16_f32 v0, v{m}, v{m}
        v_lshlrev_b32 v1, 16, v0
        v_sub_f32 v{m}, v{m}, v1
        v_cvt_pk_bf16_f32 v2, v{m}, v{m}
        v_lshlrev_b32 v3, 16, v2
        v_sub_f32 v{m}, v{m}, v3
        v_cvt_pk_bf16_f32 v4, v1, v3
        v_mov_b32 v6, 0
        v_cvt_pk_bf16_f32 v5, v{m}, v6
        v_accvgpr_read_b32 v6, a{q2}
        v_accvgpr_read_b32 v7, a{q2+1}
        v_cndmask_b32 v6, v6, v4, vcc
        v_cndmask_b32 v7, v7, v5, vcc
        v_accvgpr_write_b32 a{q2}, v6
        v_accvgpr_write_b32 a{q2+1}, v7
        """)
    for t in range(3): g += k_loads(t) + v_loads(t)
    g.e("s_waitcnt vmcnt(0)\ns_barrier\ns_branch L_att1\nL_codeend:")
    return g

HEADER = open("header.txt").read()

def check_centred(path):
    done = set()
    for i in path:
        if i.op == "v_cvt_pk_bf16_f32" and i.wr[0][1] >= vX: done.add(i.wr[0][1])
        if i.cls == "mfma":
            for r in i.rd:
                if r[0] == "v" and r[1] >= vX: assert r[1] in done, ("not centred", i.text)

def build():
    pro = prologue()
    cls = {c: phase1(c) for c in "ABV"}
    for c in "ABV": check_centred(cls[c])
    regmap = {}; loader = Loader()
    att = attention(regmap, loader)
    p3 = phase3(regmap, loader)
    fb = fallback()
    tail = Seg(); tail += att; tail += p3
    log = []
    tot = fix_hazards(pro, log=log)
    for c in "ABV":
        ctx = list(pro[-8:]); n0 = len(ctx); path = ctx + list(cls[c]); tot += fix_hazards(path, log=log)
        assert all(x is y for x, y in zip(path[:n0], ctx)); cls[c][:] = path[n0:]
    for c in "ABV":
        ctx = list(cls[c][-30:]); n0 = len(ctx); path = ctx + list(tail); tot += fix_hazards(path, log=log)
        assert all(x is y for x, y in zip(path[:n0], ctx)); tail[:] = path[n0:]
    tot += fix_hazards(fb, log=log)
    for c in "ABV": resolve_waits(list(pro) + list(cls[c]) + list(tail))
    allins = list(pro) + list(cls['A']) + list(cls['B']) + list(cls['V']) + list(tail) + list(fb)
    finalize_waits(allins)
    for c in "ABV":
        errs = check_loads(list(pro) + list(cls[c]) + list(tail))
        for e in errs[:10]: print("LOAD HAZARD", c, e, file=sys.stderr)
        assert not errs
        errs = check_scc(list(pro) + list(cls[c]) + list(tail))
        for e in errs[:10]: print("SCC HAZARD", c, e, file=sys.stderr)
        assert not errs
    print(f"nop states inserted: {tot}", file=sys.stderr)
    if "--log" in sys.argv:
        for l in log: print(l, file=sys.stderr)
    body = "\n".join(("" if i.cls == "label" else "    ") + i.text for i in allins)
    return HEADER.replace("@@BODY@@", body)

if __name__ == "__main__":
    out = build()
    path = [x for x in sys.argv[1:] if not x.startswith("--")]
    open(path[0] if path else "out.s", "w").write(out)
```

```python
import sys, math, struct, collections
from asmlib import *

STAMPS = "--stamps" in sys.argv
def opt(name, default):
    for a_ in sys.argv:
        if a_.startswith(f"--{name}="): return type(default)(a_.split("=")[1])
    return default
STOP = opt("stop", "")
XS = [int(x) for x in opt("xs", "").split(",") if x]
K0 = opt("k0", 14)
LAG = opt("lag", 4)

def f2u(x): return struct.unpack("<I", struct.pack("<f", x))[0]

WS_Q = 0x000000; WS_K = 0x280000; WS_V = 0x500000; WS_C = 0x780000
WS_O = 0x800000
WS_H = 0xB00000
WS_W = 0x1100000
WS_F = 0x1400000
WS_T = 0x1410000
WS_SIZE = 0x1480000
F_QKV = WS_F; F_H = WS_F + 0x2000; F_O = WS_F + 0x4000
OOB = 0x40000000
LOG2E = 1.4426950408889634
QSCALE = (20 ** -0.5) * LOG2E

L_RING = 0; NSLOT = 8; L_X = 8*16384; L_J = 9*16384
XSLOT = [8, 9, 2, 3, 4, 5, 6, 7, 8, 9]
LW = 40960; L_PF = 6144; NLPF = 33; L_VOTE = LW - 1024

sWAVE=3; sXCD=4; sLOC=5; sT0=6; sT1=7
SX="s[8:11]"; SWS="s[24:27]"; SOUT="s[28:31]"; SDBG="s[32:35]"; SJ="s[36:39]"
pW=12
sMB=40; sJ=41; sWB=42; pX=44
sSL=[47,48,49,50,51,52,62,63]
sC10=53; sC01=54; sC11=55
sEB=56
sHB=59
sSC=61
sP=64
sNON=84; sTA=85; sTB=86; sTC=87
sHD=88; sQB=89; sKH=90; sJS=91
sFLQ=95; sJO=78
pK=64; pV=66; pQ=68; pTW=70; pTH=72
sWP=74; sHP=75; sOP=76; sOST=77; sFL=78; sMBX=79; sWP2=80; sRB=81; sCB=82; sFO=83
sSAFE=43; sSPIN=44; sLW=45; sQHI=46

vLANE=1; vXLD=84; vXR=88; vDH=4; vTH=6; vDQ=8; vDG=10; vTR=12; vEP=16; vH=18
vJK=19; vJST=23; vJTR=24; vCST=25; vNM=26; vR=27; vS=28; vSG=29; vSCL=30; vNON=33; vACC=34; vZERO=37; vPA=38
vLN=40; vR16=48; vTMP=64; vX=96
vK1=48; vK2=50; vQ2=51; vVL=52; vLIN=53; vH3=54; vO3=57; vOSA=58; vOSC=59; vRW=60; vRR=61; vFH=62; vFO=63
aA=0; aB=64; aC=96; aWF=160; NWF=10
aO=0; aQ=64; aKV=200; aSTAMP=199; aST=[255]

def v(n, k=1): return f"v{n}" if k == 1 else f"v[{n}:{n+k-1}]"
def a(n, k=1): return f"a{n}" if k == 1 else f"a[{n}:{n+k-1}]"
def sp(n): return f"s[{n}:{n+1}]"

class Seg(list):
    def e(self, text, **kw):
        for t in text.strip().split("\n"):
            t = t.strip()
            if t: self.append(I(t, **kw))
        mark_scc(self)
        return self

def stamp(seg, k):
    if not STAMPS: return
    seg.e(f"s_memrealtime s[96:97]" if "--rt" in sys.argv else f"s_memtime s[96:97]")
    seg.append(W(lg=0))
    seg.e(f"s_mov_b64 exec, {1<<k}\nv_accvgpr_write_b32 a{aST[0]}, s96\ns_mov_b64 exec, -1")
    if k in (0, 14):
        seg.e(f"s_memrealtime s[96:97]")
        seg.append(W(lg=0))
        seg.e(f"s_mov_b64 exec, {1<<(16 if k == 0 else 17)}\nv_accvgpr_write_b32 a{aST[0]}, s96\ns_mov_b64 exec, -1")

def srd(seg, S, ptr, size):
    b = int(S[2:].split(":")[0])
    seg.e(f"s_mov_b32 s{b}, s{ptr}\ns_mov_b32 s{b+1}, s{ptr+1}\ns_mov_b32 s{b+2}, {size}\ns_mov_b32 s{b+3}, 0x00020000")

class Gap:
    def __init__(self, mfma):
        self.mfma = mfma; self.sec = [[], [], []]
    def flat(self): return ([self.mfma] if self.mfma is not None else []) + self.sec[0] + self.sec[1] + self.sec[2]
def section(i):
    if i.cls in ("vmem", "lds"): return 1
    if i.cls in ("valu", "trans"): return 2
    return 0
class Chain:
    def __init__(self, gaps): self.gaps = gaps; self.k = 0; self.last = 0
    def put(self, group, g0, g1):
        tot = sum(i.cost() for i in group) or 1
        acc = 0
        for i in group:
            want = g0 + min(g1-g0-1, int(acc * (g1-g0) / tot))
            if want > self.k and not scc_reads(i): self.k = want; self.last = 0
            sec = section(i)
            if sec < self.last: self.k += 1
            self.gaps[self.k].sec[sec].append(i); self.last = sec
            acc += i.cost()
        return self.k
    def block(self, group, k):
        if k > self.k: self.k = k
        self.gaps[self.k].sec[2] += list(group); self.last = 2

def gap_cost(gp, base=8):
    c = base if gp.mfma is not None else 0
    ns = 0
    for i in gp.sec[0]:
        if i.cls == "barrier": c += 33
        else: ns += 1
    c += 4*max(0, ns - 1)
    for i in gp.sec[1]: c += mem_cost(i)
    for i in gp.sec[2]: c += (33 if i.cls == "barrier" else 16 if i.cls == "vmem" else 12 if i.cls == "branch" else i.cost())
    return c
def mem_cost(i):
    if i.cls == "lds": return 16 if "write" in i.op else 4
    if "store" in i.op: return 16
    return 4 if i.op.startswith("global") else 8
class Stream:
    stores = []
    def __init__(self, gaps, k=0, cap=32, base=8): self.gaps = gaps; self.k = k; self.last = 0; self.cap = cap; self.base = base
    def put(self, group, g0, dead, every=0, stsp=0, free=False):
        for i in group:
            sec = section(i); k = self.k
            if g0 > k: k = g0; self.last = 0
            if sec < self.last: k += 1
            if i.cls == "vmem":
                if every: k = max(k, getattr(self, "lastv", -99) + every)
                if stsp and "store" in i.op and Stream.stores: k = max(k, Stream.stores[-1] + stsp)
            d = dead(i) if callable(dead) else dead
            if sec < self.last and self.k >= d: sec = self.last
            k = max(min(k, d), self.k + (1 if sec < self.last else 0))
            while k < d:
                gp = self.gaps[k]; c0 = gap_cost(gp, self.base); gp.sec[sec].append(i); c = gap_cost(gp, self.base); gp.sec[sec].pop()
                if c <= self.cap and not (free and sec == 0 and c > c0): break
                k += 1
            if k != self.k: self.last = 0
            self.gaps[k].sec[sec].append(i); self.k = k; self.last = sec
            if i.cls == "vmem":
                self.lastv = k
                if "store" in i.op: Stream.stores.append(k)
        return self.k
    def block(self, group, k):
        if k > self.k: self.k = k
        self.gaps[self.k].sec[2] += list(group); self.last = 2
def report(name, gaps, lo, hi, cap=32, base=8):
    t = sum(max(cap, gap_cost(gaps[n], base)) for n in range(lo, hi)); u = sum(gap_cost(gaps[n], base) for n in range(lo, hi))
    print(f"model {name}: gaps {lo}..{hi} ideal {cap*(hi-lo)} predicted {t} issue {u}", file=sys.stderr)

def weave(main, fill, per):
    out = Seg(); fill = list(fill)
    for m in main:
        out.append(m); out += fill[:per]; fill = fill[per:]
    out += fill
    return out

def dma_stage(sig):
    if sig >= 25: return []
    p = 0 if sig < 10 else (1 if sig < 15 else 2)
    out = Seg()
    vd = (vDQ, vDH, vDG)[p]
    adv = (64*3840, 128*3072, 64*3072)[p]
    out.e(f"s_mov_b32 m0, s{sSL[sig % NSLOT]}")
    for src in range(2):
        for r in range(2):
            out.append(I(f"global_load_lds_dwordx4 v{vd+r}, {sp(pW+4*p+2*src)} offset:{src*2048+r*1024}", tag=("dma", sig, src, r)))
    if sig not in (9, 14, 24): out.e(f"v_add_u32 v{vd}, {adv}, v{vd}\nv_add_u32 v{vd+1}, {adv}, v{vd+1}")
    return mark_m0(out)
def dma_tag(sig): return ("dma", sig, 1, 1)

def dots(cb):
    out = Seg()
    for r in range(16):
        x = vX + 16*cb + r
        out.e(f"v_dot2_f32_bf16 v{vACC+(r%2)}, v{x}, s{sC11}, v{vACC+(r%2)}")
        out.e(f"v_dot2_f32_bf16 v{vACC+2+(r%2)}, v{x}, v{x}, v{vACC+2+(r%2)}")
    return out
def x_reads(cb):
    off = (XSLOT[cb] - 2)*16384; hi = off >= 65536
    return [I(f"ds_read_b128 {v(vX+16*cb+4*jj,4)}, v{vXR+jj+(4 if hi else 0)} offset:{off % 65536}", tag=("xr", cb, jj)) for jj in range(4)]
def mix(g, loads, fill):
    fill = list(fill); n = len(loads)
    for i, grp in enumerate(loads):
        g += grp[:-1]
        if grp[:-1] and grp[-2].wr == [("s","m0")] and fill and fill[0].cls in ("salu","valu") and not scc_live_before(fill, 0): g.append(fill.pop(0))
        k = len(fill) // (n - i)
        g.append(grp[-1])
        while 0 < k < len(fill) and scc_live_before(fill, k): k += 1
        if i + 1 < n and loads[i+1][:-1]:
            while k < len(fill) and scc_live_before(fill, k): k += 1
        g += fill[:k]; fill = fill[k:]
    g += fill
def groups(seg):
    out = []; cur = []
    for i in seg:
        cur.append(i)
        if i.cls == "vmem": out.append(cur); cur = []
    return out, cur

def prologue():
    g = Seg()
    g.e(f"""
    s_cmp_ge_u32 s2, 256
    s_cbranch_scc1 L_end
    s_load_dwordx16 s[64:79], s[0:1], 0
    s_load_dwordx4 s[80:83], s[0:1], 64
    s_getpc_b64 s[36:37]
    L_pc0:
    s_lshr_b32 s{sLOC}, s2, 3
    s_mov_b32 s38, L_codeend-L_pc0
    s_mov_b32 s39, 0x00020000
    s_lshl_b32 s{sT0}, s{sLOC}, 12
    v_lshlrev_b32 v64, 4, v0
    """)
    g.append(I(f"buffer_load_dwordx4 a[200:203], v64, {SJ}, s{sT0} offen", tag="code"))
    g.e(f"""
    v_and_b32 v{vLANE}, 63, v0
    v_lshrrev_b32 v0, 6, v0
    s_and_b32 s{sXCD}, s2, 7
    v_readfirstlane_b32 s{sWAVE}, v0
    s_and_b32 s{sT0}, s{sXCD}, 1
    s_lshl_b32 s{sT0}, s{sT0}, 3
    s_and_b32 s{sT1}, s{sLOC}, 7
    s_add_u32 s{sMB}, s{sT0}, s{sT1}
    v_lshrrev_b32 v64, 3, v{vLANE}
    v_and_b32 v65, 7, v{vLANE}
    v_xor_b32 v66, v64, v65
    v_lshlrev_b32 v66, 4, v66
    v_mul_u32_u24 v{vXLD}, 1280, v64
    v_add_u32 v{vXLD}, v{vXLD}, v66
    v_add_u32 v{vXLD+1}, {10240-1024}, v{vXLD}
    v_xor_b32 v67, 1, v64
    v_xor_b32 v66, 16, v66
    v_mul_u32_u24 v67, 1280, v67
    v_add_u32 v67, v67, v66
    v_add_u32 v{vXLD+2}, {20480-2048}, v67
    v_add_u32 v{vXLD+3}, {30720-3072}, v67
    s_lshl_b32 s{sWB}, s{sWAVE}, 12
    s_lshl_b32 s{sT0}, s{sMB}, 2
    s_add_u32 s{sT0}, s{sT0}, s{sWAVE}
    s_mul_i32 s{sT0}, s{sT0}, 40960
    """)
    if STAMPS: g.e(f"v_accvgpr_write_b32 a{aST[0]}, 0")
    g.append(W(lg=0))
    g.e(f"s_add_u32 s{pX}, s{sP}, s{sT0}\ns_addc_u32 s{pX+1}, s{sP+1}, 0")
    stamp(g, 0)
    PF = opt("pf", 7); PFM = opt("pfm", "")
    if PF & 1:
        XR = opt("xrep", 1)
        g.e(f"""
        s_lshr_b32 s{sT1}, s{sXCD}, {XR}
        s_lshl_b32 s{sT1}, s{sT1}, 5
        s_add_u32 s{sT1}, s{sT1}, s{sLOC}
        s_lshl_b32 s{sT1}, s{sT1}, 2
        s_add_u32 s{sT1}, s{sT1}, s{sWAVE}
        s_mul_i32 s{sT1}, s{sT1}, {2560*XR}
        s_and_b32 s98, s{sXCD}, 1
        s_mul_i32 s98, s98, 1310720
        s_add_u32 s{sT1}, s{sT1}, s98
        v_lshlrev_b32 v78, 4, v{vLANE}
        v_add_u32 v78, s{sT1}, v78
        """)
        if XR == 2: g.e("v_add_u32 v78, 1024, v78")
        for o_ in ((0, 1024, 1536) if XR == 1 else (-1024, 0, 1024, 2048, 3072)):
            g.append(I(f"global_load_dwordx4 a[204:207], v78, {sp(sP)} offset:{o_}{PFM}", tag="pf"))
    xl = []
    for cb in range(10):
        c8 = cb % 8
        for rg in range(4):
            pre = []
            if cb == 8 and rg == 0: pre += list(Seg().e(f"s_add_u32 s{pX}, s{pX}, 1024\ns_addc_u32 s{pX+1}, s{pX+1}, 0"))
            if rg == 0: pre.append(I(f"s_add_u32 m0, s{sWB}, {XSLOT[cb]*16384 - c8*128}"))
            ld = I(f"global_load_lds_dwordx4 v{vXLD+rg}, {sp(pX)} offset:{c8*128+rg*1024}", tag=("x", cb, rg))
            xl.append(pre + [ld])
    f = Seg()
    srd(f, SX, sP+0, 2621440)
    for i in range(8): f.e(f"s_add_u32 s{sSL[i]}, s{sWB}, {L_RING + i*16384}")
    srd(f, SWS, sP+18, WS_SIZE); srd(f, SOUT, sP+14, 2621440); srd(f, SDBG, sP+16, 256)
    cq = f2u(QSCALE); t32 = 98; tb = 99
    f.e(f"""
    s_lshr_b32 s{sT0}, s{sXCD}, 1
    s_lshl_b32 s{sT0}, s{sT0}, 2
    s_lshr_b32 s{sT1}, s{sLOC}, 3
    s_add_u32 s{sJ}, s{sT0}, s{sT1}
    v_lshlrev_b32 v66, 4, v65
    v_lshlrev_b32 v67, 1, v64
    v_and_b32 v67, 4, v67
    v_xor_b32 v67, v65, v67
    v_lshlrev_b32 v67, 4, v67
    v_mul_u32_u24 v{vDQ}, 3840, v64
    v_add_u32 v{vDQ}, v{vDQ}, v67
    v_add_u32 v{vDQ+1}, {8*3840-1024}, v{vDQ}
    v_mul_u32_u24 v{vDG}, 3072, v64
    v_add_u32 v{vDG}, v{vDG}, v67
    v_add_u32 v{vDG+1}, {8*3072-1024}, v{vDG}
    v_lshrrev_b32 v67, 2, v{vLANE}
    v_mul_u32_u24 v67, 3072, v67
    v_and_b32 v68, 3, v{vLANE}
    {"v_mov_b32 v%d, v%d" % (vDH, vDG) if "--x_full" in sys.argv else "v_lshl_add_u32 v%d, v68, 4, v67" % vDH}
    v_add_u32 v{vDH+1}, {16*3072-1024}, v{vDH}
    s_mov_b32 s{sC10}, 0x00003F80
    s_mov_b32 s{sC01}, 0x3F800000
    s_mov_b32 s{sC11}, 0x3F803F80
    v_lshrrev_b32 v70, 5, v{vLANE}
    v_and_b32 v71, 31, v{vLANE}
    v_and_b32 v72, 7, v71
    v_lshrrev_b32 v73, 3, v71
    v_lshrrev_b32 v74, 1, v73
    v_xor_b32 v74, v72, v74
    v_lshlrev_b32 v74, 7, v74
    v_lshl_add_u32 v73, v73, 10, v74
    s_add_u32 s{sT0}, s{sWB}, 32768
    v_add_u32 v73, s{sT0}, v73
    """)
    for jj in range(4):
        f.e(f"""
        v_add_u32 v74, {2*jj}, v70
        v_xor_b32 v75, v72, v74
        v_lshl_add_u32 v{vXR+jj}, v75, 4, v73
        v_add_u32 v{vXR+4+jj}, 65536, v{vXR+jj}
        """)
    f.e(f"""
    v_mov_b32 v{vACC}, 0
    v_mov_b32 v{vACC+1}, 0
    v_mov_b32 v{vACC+2}, 0
    v_mov_b32 v{vACC+3}, 0
    v_and_b32 v74, 15, v{vLANE}
    v_lshrrev_b32 v75, 2, v74
    v_lshlrev_b32 v78, 6, v75
    v_lshl_add_u32 v78, v70, 9, v78
    v_lshlrev_b32 v75, 7, v75
    v_lshl_add_u32 v75, v70, 10, v75
    v_and_b32 v76, 3, v74
    v_lshlrev_b32 v76, 3, v76
    v_and_b32 v77, 16, v{vLANE}
    v_lshl_add_u32 v76, v77, 1, v76
    v_add_u32 v{vTH}, v78, v76
    v_add_u32 v{vTH+1}, 0x10000, v{vTH}
    v_and_b32 v77, 8, v74
    v_lshlrev_b32 v77, 3, v77
    v_xor_b32 v76, v76, v77
    v_add_u32 v{vTR}, v75, v76
    v_xor_b32 v{vTR+1}, 64, v{vTR}
    v_add_u32 v{vTR+2}, 0x10000, v{vTR}
    v_add_u32 v{vTR+3}, 0x10000, v{vTR+1}
    v_lshrrev_b32 v74, 4, v71
    v_mul_u32_u24 v74, 49152, v74
    v_and_b32 v75, 15, v71
    v_lshlrev_b32 v75, 4, v75
    v_lshl_add_u32 v75, v70, 8, v75
    v_add_u32 v{vH}, v74, v75
    s_lshl_b32 s{t32}, s{sMB}, 2
    s_add_u32 s{t32}, s{t32}, s{sWAVE}
    s_min_u32 s{sT0}, s{sJ}, 14
    s_lshl_b32 s{sT1}, s{sT0}, 8
    s_mul_i32 s{tb}, s{sWAVE}, {16*3840}
    s_add_u32 s{sT1}, s{sT1}, s{tb}
    s_add_u32 s{pW}, s{sP+2}, s{sT1}
    s_addc_u32 s{pW+1}, s{sP+3}, 0
    s_sub_u32 s{pW+2}, s{pW}, {2048-128}
    s_subb_u32 s{pW+3}, s{pW+1}, 0
    s_lshl_b32 s{sT1}, s{sT0}, 19
    s_cmp_lt_u32 s{sJ}, 10
    s_cselect_b32 s{tb}, 9, 8
    s_lshl_b32 s{tb}, s{t32}, s{tb}
    s_add_u32 s{sEB}, s{sT1}, s{tb}
    s_add_u32 s{sEB+1}, s{sEB}, {1<<18}
    s_cmp_lt_u32 s{sJ}, 5
    s_cselect_b32 s{sSC}, {cq}, 1.0
    s_and_b32 s{sT0}, s{sJ}, 3
    s_lshl_b32 s{sT0}, s{sT0}, 2
    s_lshr_b32 s{sT1}, s{sJ}, 2
    s_add_u32 s{sT1}, s{sT0}, s{sT1}
    {"s_mov_b32 s%d, s%d" % (sT1, sJ) if "--noperm" in sys.argv else ""}
    s_lshr_b32 s{sT0}, s{sT1}, 1
    s_mul_i32 s{sT0}, s{sT0}, 3
    s_and_b32 s{sT1}, s{sT1}, 1
    s_mul_i32 s{t32}, s{t32}, {96*1024}
    s_add_u32 s{t32}, s{t32}, {WS_H}
    s_add_u32 s{sTA}, s{sT0}, s{sT1}
    s_lshl_b32 s{sTB}, s{sTA}, 7
    s_mul_i32 s{tb}, s{sWAVE}, {16*3072}
    s_add_u32 s{sTB}, s{sTB}, s{tb}
    s_add_u32 s{pW+8}, s{sP+8}, s{sTB}
    s_addc_u32 s{pW+9}, s{sP+9}, 0
    s_add_u32 s{pW+10}, s{sP+10}, s{sTB}
    s_addc_u32 s{pW+11}, s{sP+11}, 0
    s_sub_u32 s{pW+10}, s{pW+10}, 2048
    s_subb_u32 s{pW+11}, s{pW+11}, 0
    s_lshl_b32 s{sTB}, s{sTA}, 11
    s_add_u32 s{sHB+1}, s{t32}, s{sTB}
    s_lshl_b32 s{sTA}, s{sT0}, 1
    s_add_u32 s{sTA}, s{sTA}, s{sT1}
    s_add_u32 s{sTA}, s{sTA}, 4
    s_lshl_b32 s{sTB}, s{sTA}, 6
    s_lshl_b32 s{tb}, s{tb}, 1
    s_add_u32 s{sTB}, s{sTB}, s{tb}
    s_add_u32 s{pW+4}, s{sP+8}, s{sTB}
    s_addc_u32 s{pW+5}, s{sP+9}, 0
    s_add_u32 s{pW+6}, s{sP+10}, s{sTB}
    s_addc_u32 s{pW+7}, s{sP+11}, 0
    s_sub_u32 s{pW+6}, s{pW+6}, 2048
    s_subb_u32 s{pW+7}, s{pW+7}, 0
    s_lshl_b32 s{sTB}, s{sTA}, 10
    s_add_u32 s{sHB}, s{t32}, s{sTB}
    v_lshrrev_b32 v74, 2, v71
    v_lshlrev_b32 v74, 14, v74
    v_and_b32 v75, 3, v71
    v_lshlrev_b32 v75, 4, v75
    v_lshl_add_u32 v75, v70, 6, v75
    v_add_u32 v74, v74, v75
    s_cmp_lt_u32 s{sJ}, 15
    s_cselect_b32 s{sT0}, 0, {OOB}
    v_add_u32 v74, s{sT0}, v74
    v_lshlrev_b32 v75, 4, v71
    v_lshl_add_u32 v75, v70, 15, v75
    s_cmp_lt_u32 s{sJ}, 10
    s_cselect_b64 s[100:101], -1, 0
    v_cndmask_b32 v{vEP}, v74, v75, s[100:101]
    """)
    f.e(f"""
    s_lshl_b32 s{sTA}, s2, 2
    s_add_u32 s{sTA}, s{sTA}, s{sWAVE}
    v_and_b32 v75, 3, v{vLANE}
    s_sub_u32 s{sT0}, s{sTA}, 720
    s_cmp_lt_u32 s{sT0}, 32
    s_cselect_b32 s{sT1}, 0, {OOB}
    s_and_b32 s{sT0}, s{sT0}, 31
    s_lshl_b32 s{sT0}, s{sT0}, 10
    s_add_u32 s{sT0}, s{sT0}, s{sT1}
    s_add_u32 s{sT0}, s{sT0}, {WS_C}
    v_lshlrev_b32 v{vCST}, 4, v{vLANE}
    v_add_u32 v{vCST}, s{sT0}, v{vCST}
    v_and_b32 v80, 3, v{vLANE}
    v_cmp_eq_u32 vcc, 0, v80
    v_mov_b32 v81, s{sC11}
    v_mov_b32 v79, 0
    v_cndmask_b32 v80, v79, v81, vcc
    v_mov_b32 v81, v80
    v_mov_b32 v82, v80
    v_mov_b32 v83, v80
    v_lshrrev_b32 v{vPA}, 2, v{vLANE}
    v_lshlrev_b32 v{vPA}, 8, v{vPA}
    v_lshl_add_u32 v{vPA}, v75, 4, v{vPA}
    v_add_u32 v{vPA}, {F_QKV}, v{vPA}
    s_lshr_b32 s{sT0}, s2, 4
    s_lshl_b32 s{sT0}, s{sT0}, 8
    s_and_b32 s{sT1}, s2, 15
    s_lshl_b32 s{sT1}, s{sT1}, 2
    s_add_u32 s{sT0}, s{sT0}, s{sT1}
    s_add_u32 s{sFLQ}, s{sT0}, {F_QKV}
    """)
    mix(g, xl[:4*LAG], f)
    g.e(f"""
    s_or_b32 s{sT0}, s2, s{sWAVE}
    s_cmp_lg_u32 s{sT0}, 0
    s_cbranch_scc1 L_non
    s_memrealtime s[6:7]
    """)
    g.append(W(lg=0))
    g.e(f"s_or_b32 s6, s6, 1\nv_mov_b32 v68, s6\nv_mov_b32 v69, 0")
    g.append(I(f"buffer_store_dword v68, v69, {SDBG}, 0 offen sc1", cond=True))
    g.e("L_non:")
    pf = Seg()
    if PF & 2:
        pf.e(f"""
        s_min_u32 s98, s{sTA}, 799
        s_mul_i32 s98, s98, 3072
        v_lshlrev_b32 v78, 4, v{vLANE}
        v_add_u32 v79, s98, v78
        """)
        for k_ in range(3): pf.append(I(f"global_load_dwordx4 a[204:207], v79, {sp(sP+2)} offset:{1024*k_}{PFM}", tag="pf"))
    if PF & 4:
        pf.e(f"""
        v_lshlrev_b32 v77, 21, v{vLANE}
        s_cmp_eq_u32 s{sWAVE}, 0
        s_cselect_b32 s98, 0x7ff, 0
        s_cselect_b32 s99, 3, 0
        s_mov_b32 exec_hi, 0
        s_mov_b32 exec_lo, s98
        """)
        pf.append(I(f"global_load_dword a211, v77, {sp(sP+18)}{PFM}", tag="pf"))
        pf.e("s_mov_b32 exec_lo, s99")
        pf.append(I(f"global_load_dword a212, v77, {sp(sP+14)}{PFM}", tag="pf"))
        pf.e("s_mov_b64 exec, -1")
    PFAT = opt("pfat", 0)
    stream = [xl[4*cb:4*cb+4] for cb in range(LAG, 10)]
    tails = []
    NW = opt("nw", 3)
    for sg in range(NW):
        gr, tl = groups(dma_stage(sg)); stream.append(gr); tails.append(tl)
    for b in range(11):
        if b == PFAT: g += pf
        item = Seg()
        if b < 10:
            item.append(W(vm=("x", b, 3)))
            if b == 0: stamp(item, 1)
            if "--xsx" in sys.argv: stamp(item, 18 + b)
            item += x_reads(b)
        if b >= 1:
            item.append(W(lg=("xr", b-1, 3)))
            item += dots(b-1)
        if b < len(stream):
            k = next(i for i, x in enumerate(item) if x.cls == "valu") if b >= 1 else len(item)
            g += item[:k]
            mix(g, stream[b], item[k:])
            if b >= 10 - LAG: g += tails[b - (10 - LAG)]
        else: g += item
        if b == 9: stamp(g, 2)
    assert len(stream) <= 11
    g.append(I(f"buffer_store_dwordx4 v[80:83], v{vCST}, {SWS}, 0 offen sc1", tag="cst"))
    inv = f2u(1.0/640.0)
    A0, A1, A2, A3 = vACC, vACC+1, vACC+2, vACC+3
    g.e(f"""
    s_mov_b32 s{sT0}, {inv}
    v_add_f32 v{A0}, v{A0}, v{A1}
    v_add_f32 v{A2}, v{A2}, v{A3}
    v_mov_b32 v{A1}, v{A0}
    v_mov_b32 v{A3}, v{A2}
    v_permlane32_swap_b32 v{A0}, v{A1}
    v_permlane32_swap_b32 v{A2}, v{A3}
    v_add_f32 v{A0}, v{A0}, v{A1}
    v_add_f32 v{A2}, v{A2}, v{A3}
    v_mul_f32 v{A0}, s{sT0}, v{A0}
    v_mul_f32 v{A2}, s{sT0}, v{A2}
    v_fma_f32 v{A2}, -v{A0}, v{A0}, v{A2}
    v_max_f32 v{A2}, 0, v{A2}
    v_cvt_pk_bf16_f32 v{A0}, v{A0}, v{A2}
    v_and_b32 v{A2}, 0xffff0000, v{A0}
    v_lshlrev_b32 v{A0}, 16, v{A0}
    v_sub_f32 v{vNM}, 0, v{A0}
    """)
    for ks in range(K0):
        if ks == max(K0 - 4, 0):
            g.append(W(vm=dma_tag(1))); g.e("s_barrier")
            for n in range(DIST): g += tr_reads(n)
        g += center_dot(ks)
    g.e(f"s_mov_b32 s{sC10}, 0xffff0000")
    stamp(g, 3)
    g.e(f"s_cmp_ge_u32 s{sJ}, 10")
    g.append(W(lg=("tr", 3, 1)))
    g.e("s_cbranch_scc1 L_clsV")
    return g, NW

def job_params():
    jp = Seg()
    jp.e(f"""
    s_lshl_b32 s{sTA}, s2, 2
    s_add_u32 s{sTA}, s{sTA}, s{sWAVE}
    s_mul_i32 s{sTB}, s{sTA}, 6554
    s_lshr_b32 s{sTB}, s{sTB}, 16
    s_mul_i32 s{sT0}, s{sTB}, 10
    s_sub_u32 s{sTC}, s{sTA}, s{sT0}
    s_cmp_lt_u32 s{sTB}, 48
    s_cselect_b32 s36, s{sP+12}, s{sP+4}
    s_cselect_b32 s37, s{sP+13}, s{sP+5}
    s_mov_b32 s38, {640*1280}
    s_cselect_b32 s38, {1536*1280}, s38
    s_mov_b32 s39, 0x00020000
    v_lshrrev_b32 v74, 2, v64
    v_and_b32 v75, 3, v64
    v_lshl_add_u32 v75, v74, 3, v75
    v_mul_u32_u24 v75, 1280, v75
    v_add_u32 v75, v75, v66
    v_lshlrev_b32 v74, 30, v74
    v_add_u32 v76, v75, v74
    s_cmp_lt_u32 s{sTA}, 720
    s_cselect_b32 s{sT0}, 0, {OOB}
    v_lshlrev_b32 v{vJST}, 4, v{vLANE}
    v_or_b32 v{vJST}, s{sT0}, v{vJST}
    v_or_b32 v75, s{sT0}, v75
    v_or_b32 v76, s{sT0}, v76
    """)
    for kg in range(4):
        jp.e(f"""
        s_lshl_b32 s{sT0}, s{sTB}, 2
        s_sub_u32 s{sT0}, s{sT0}, {192-kg}
        s_mul_i32 s{sT1}, s{sT0}, 171
        s_lshr_b32 s{sT1}, s{sT1}, 9
        s_mul_i32 s98, s{sT1}, 3
        s_sub_u32 s98, s{sT0}, s98
        s_mul_i32 s{sT1}, s{sT1}, 20
        s_lshl_b32 s99, s98, 2
        s_cmp_eq_u32 s98, 2
        s_cselect_b32 s99, 16, s99
        s_cselect_b64 s[100:101], -1, 0
        s_add_u32 s{sT1}, s{sT1}, s99
        s_lshl_b32 s{sT0}, s{sTB}, 5
        s_add_u32 s{sT0}, s{sT0}, {16*(kg//2)+4*(kg%2)}
        s_cmp_lt_u32 s{sTB}, 48
        s_cselect_b32 s{sT0}, s{sT0}, s{sT1}
        s_cselect_b64 s[100:101], 0, s[100:101]
        s_mul_i32 s{sT0}, s{sT0}, 1280
        s_lshl_b32 s{sT1}, s{sTC}, 7
        s_add_u32 s{sJS+kg}, s{sT0}, s{sT1}
        v_cndmask_b32 v{vJK+kg}, v75, v76, s[100:101]
        """)
    jp.e(f"""
    s_add_u32 s{sT0}, s{sWB}, {L_J}
    v_lshrrev_b32 v74, 4, v{vLANE}
    v_lshlrev_b32 v74, 10, v74
    v_and_b32 v75, 15, v{vLANE}
    v_lshrrev_b32 v76, 2, v75
    v_lshl_add_u32 v74, v76, 7, v74
    v_and_b32 v75, 3, v75
    v_lshl_add_u32 v74, v75, 3, v74
    v_add_u32 v{vJTR}, s{sT0}, v74
    """)
    return jp

def job_dma():
    jobdma = Seg()
    for kg in range(4):
        jobdma.e(f"s_add_u32 m0, s{sWB}, {L_J + kg*1024}")
        jobdma.append(I(f"buffer_load_dwordx4 v{vJK+kg}, {SJ}, s{sJS+kg} offen lds", tag=("job", kg)))
    return mark_m0(jobdma)
def job_par():
    jobdma = Seg()
    for tg in range(4):
        jobdma.e(f"""
        s_lshl_b32 s98, s{sTC}, 2
        s_add_u32 s98, s98, {tg}
        s_mul_i32 s99, s98, 52
        s_lshr_b32 s99, s99, 8
        s_mul_i32 s99, s99, 355
        s_add_u32 s98, s98, s99
        s_mul_i32 s99, s{sTB}, 5
        s_add_u32 s98, s98, s99
        s_lshl_b32 s98, s98, 10
        s_add_u32 s{sJO+tg}, s98, {WS_W}
        """)
    return jobdma

NTAIL = 4
def p1_order():
    o = []
    for ks in range(40): o += [(0, ks, u) for u in range(4)]
    for ks in range(40): o += [(1, ks, u) for u in range(2)]
    k1 = 40 - 4*NTAIL
    for ks in range(k1): o += [(2, ks, u) for u in range(4)]
    for ks in range(k1, 40): o += [(2, ks, 0), (2, ks, 2)]
    for ks in range(k1, 40): o += [(2, ks, 1), (2, ks, 3)]
    return o
ORDER = p1_order()
def stage_of(p, ks): return (ks//4, 10 + ks//8, 15 + ks//4)[p]
DIST = 8
def tr_reads(n):
    if n >= 400: return []
    p, ks, u = ORDER[n]
    slot = stage_of(p, ks) % NSLOT
    if p != 1: off = (ks % 4)*4096 + (u//2)*2048; reg = vTR + (u % 2); hi = 2; d = 512
    else: off = (ks % 8)//2*4096 + u*2048 + (ks % 2)*1024; reg = vTH; hi = 1; d = 256
    off += slot*16384
    if off >= 65536: off -= 65536; reg += hi
    f = aWF + 4*(n % NWF)
    return [I(f"ds_read_b64_tr_b16 {a(f,2)}, v{reg} offset:{off}", tag=("tr", n, 0)),
            I(f"ds_read_b64_tr_b16 {a(f+2,2)}, v{reg} offset:{off+d}", tag=("tr", n, 1))]
def p1_mfma(n, cls):
    p, ks, u = ORDER[n]
    acc = (aA, aB, aC)[p] + 16*u
    wf = a(aWF + 4*(n % NWF), 4); x = v(vX + 4*ks, 4)
    c = "0" if ks == 0 else a(acc, 16)
    if cls == 'V' and p == 0: return I(f"v_mfma_f32_32x32x16_bf16 {a(acc,16)}, {x}, {wf}, {c}")
    return I(f"v_mfma_f32_32x32x16_bf16 {a(acc,16)}, {wf}, {x}, {c}")

def center_dot(ks):
    out = Seg()
    for r in range(4):
        x = vX + 4*ks + r
        out.e(f"v_dot2_f32_bf16 v{vLN+2*r}, v{x}, s{sC10}, v{vNM}")
        out.e(f"v_dot2_f32_bf16 v{vLN+2*r+1}, v{x}, s{sC01}, v{vNM}")
    for r in range(4):
        out.e(f"v_cvt_pk_bf16_f32 v{vX+4*ks+r}, v{vLN+2*r}, v{vLN+2*r+1}")
    return out
def center5(ks):
    out = Seg()
    for r in range(4):
        x = vX + 4*ks + r
        out.e(f"v_lshlrev_b32 v{vLN+2*r}, 16, v{x}\nv_and_b32 v{vLN+2*r+1}, s{sC10}, v{x}")
        out.e(f"v_add_f32 v{vLN+2*r}, v{vNM}, v{vLN+2*r}\nv_add_f32 v{vLN+2*r+1}, v{vNM}, v{vLN+2*r+1}")
        out.e(f"v_cvt_pk_bf16_f32 v{vX+4*ks+r}, v{vLN+2*r}, v{vLN+2*r+1}")
    return out

tmpctr = [0]
def epi_qk(acc, t, sbase, vscale, tag):
    out = Seg()
    for pr in range(2):
        T = vTMP + 12*(tmpctr[0] % 2); tmpctr[0] += 1
        for e in range(8): out.e(f"v_accvgpr_read_b32 v{T+e}, a{acc+8*pr+e}")
        for e in range(8): out.e(f"v_mul_f32 v{T+e}, v{vscale}, v{T+e}")
        for e in (0, 2, 1, 3): out.e(f"v_cvt_pk_bf16_f32 v{T+8+e}, v{T+2*e}, v{T+2*e+1}")
        out.e(f"s_add_u32 s{sT0+pr}, s{sbase}, {(4*t+2*pr)*32768}")
        out.e(f"v_permlane32_swap_b32 v{T+8}, v{T+10}\nv_permlane32_swap_b32 v{T+9}, v{T+11}")
        out.append(I(f"buffer_store_dwordx4 {v(T+8,4)}, v{vEP}, {SWS}, s{sT0+pr} offen sc1", tag=tag))
    return out
def epi_v(acc, t, sbase, voff, tag):
    out = Seg()
    out.e(f"s_add_u32 s{sT0+t}, s{sbase}, {8*t*16384}")
    for m in range(2):
        T = vTMP + 12*(tmpctr[0] % 2); tmpctr[0] += 1
        for e in range(8): out.e(f"v_accvgpr_read_b32 v{T+e}, a{acc+8*m+e}")
        for e in range(8): out.e(f"v_mul_f32 v{T+e}, v{vR16+8*m+e}, v{T+e}")
        for e in range(4): out.e(f"v_cvt_pk_bf16_f32 v{T+8+e}, v{T+2*e}, v{T+2*e+1}")
        out.append(I(f"buffer_store_dwordx4 {v(T+8,4)}, v{voff}, {SWS}, s{sT0+t} offen offset:{128*m} sc1", tag=tag))
    return out
def epi_g(acc, t, shb, tag, ud=32):
    out = Seg()
    ag = acc + 16*t; au = acc + ud + 16*t
    for pp in range(2):
        P = vTMP + 24 + 4*(pp)
        for c4 in range(2):
            T = vTMP + 8*(tmpctr[0] % 3); tmpctr[0] += 1
            r0 = 8*pp + 4*c4
            for e in range(4): out.e(f"v_accvgpr_read_b32 v{T+e}, a{ag+r0+e}")
            for e in range(4): out.e(f"v_mul_f32 v{T+e}, v{vSG}, v{T+e}")
            for e in range(4): out.e(f"v_exp_f32 v{T+e}, v{T+e}")
            for e in range(4): out.e(f"v_accvgpr_read_b32 v{T+4+e}, a{au+r0+e}")
            for e in range(4): out.e(f"v_fma_f32 v{T+e}, v{T+e}, v{vS}, v{vS}")
            for e in range(4): out.e(f"v_rcp_f32 v{T+e}, v{T+e}")
            for e in range(4): out.e(f"v_mul_f32 v{T+4+e}, v{T+e}, v{T+4+e}")
            out.e(f"v_cvt_pk_bf16_f32 v{P+2*c4}, v{T+4}, v{T+5}\nv_cvt_pk_bf16_f32 v{P+2*c4+1}, v{T+6}, v{T+7}")
        out.append(I(f"buffer_store_dwordx4 {v(P,4)}, v{vH}, {SWS}, s{shb} offen offset:{t*1024+pp*512} sc1", tag=tag))
    return out

def job_process():
    out = Seg()
    out.append(W(vm=("job", 3)))
    for tg in range(4):
        T = vTMP + 4*tg
        out.append(I(f"ds_read_b64_tr_b16 {v(T,2)}, v{vJTR} offset:{tg*32}", tag=("jtr", tg, 0)))
        out.append(I(f"ds_read_b64_tr_b16 {v(T+2,2)}, v{vJTR} offset:{tg*32+512}", tag=("jtr", tg, 1)))
    out2 = Seg()
    out2.append(W(lg=("jtr", 3, 1)))
    for tg in range(4):
        out2.append(I(f"buffer_store_dwordx4 {v(vTMP+4*tg,4)}, v{vJST}, {SWS}, s{sJO+tg} offen sc1", tag="h1"))
    return out, out2

def spin(seg, name, addr, dst, width, srd_, cmp_lines):
    seg.e(f"s_mov_b32 s{sSPIN}, 0x40000")
    seg.e(f"L_sp{name}:")
    seg.e(cmp_lines)
    seg.e(f"s_cbranch_vccz L_ok{name}")
    seg.e(f"s_sub_u32 s{sSPIN}, s{sSPIN}, 1\ns_cbranch_scc1 L_ok{name}\ns_sleep 1")
    op = {1:"buffer_load_dword",4:"buffer_load_dwordx4"}[width]
    seg.append(I(f"{op} {v(dst,width)}, v{addr}, {srd_}, 0 offen sc1", cond=True))
    seg.e("s_waitcnt vmcnt(0)")
    seg.e(f"s_branch L_sp{name}")
    seg.e(f"L_ok{name}:")
def all4(d, non):
    return f"v_xor_b32 v{d}, {non}, v{d}\nv_xor_b32 v{d+1}, {non}, v{d+1}\nv_xor_b32 v{d+2}, {non}, v{d+2}\nv_xor_b32 v{d+3}, {non}, v{d+3}\nv_or3_b32 v{d}, v{d}, v{d+1}, v{d+2}\nv_or_b32 v{d}, v{d}, v{d+3}\nv_cmp_ne_u32 vcc, 0, v{d}"
def publish(seg, name, soff_reg, t):
    seg.e(f"s_cmp_lg_u32 s{sWAVE}, 0\ns_cbranch_scc1 L_fl{name}")
    seg.e(f"s_mov_b64 exec, 1\nv_mov_b32 v{t}, s{sNON}\nv_mov_b32 v{t+1}, 0")
    seg.append(I(f"buffer_store_dword v{t}, v{t+1}, {SWS}, s{soff_reg} offen sc1", cond=True))
    seg.e(f"s_mov_b64 exec, -1\nL_fl{name}:")

def wsbase(g, p, soff):
    g.e(f"s_add_u32 s{p}, s24, s{soff}\ns_addc_u32 s{p+1}, s25, 0")

def attn_addr_setup():
    g = Seg()
    T = vLN
    g.e(f"""
    s_lshl_b32 s{sHD}, s{sXCD}, 2
    s_lshr_b32 s{sTA}, s{sLOC}, 3
    s_add_u32 s{sHD}, s{sHD}, s{sTA}
    s_and_b32 s{sQB}, s{sLOC}, 7
    s_and_b32 s{sKH}, s{sWAVE}, 1
    s_lshr_b32 s{sTA}, s{sHD}, 1
    s_mul_i32 s{sTA}, s{sTA}, 5
    s_and_b32 s{sTB}, s{sHD}, 1
    s_mul_i32 s{sTC}, s{sTB}, 3
    s_add_u32 s{sTC}, s{sTC}, s{sTA}
    s_lshl_b32 s{sTC}, s{sTC}, 15
    s_add_u32 s{sTA}, s{sTA}, 2
    s_lshl_b32 s{sTA}, s{sTA}, 15
    s_lshl_b32 s{sTB}, s{sTB}, 3
    s_add_u32 s{sTB}, s{sTB}, s{sTA}
    s_mul_i32 s{sTA}, s{sHD}, {5*16384}
    v_lshrrev_b32 v{T}, 5, v{vLANE}
    v_and_b32 v{T+1}, 31, v{vLANE}
    v_lshlrev_b32 v{T+2}, 4, v{T+1}
    v_lshl_add_u32 v{vK1}, v{T}, 15, v{T+2}
    v_add_u32 v{vK1}, s{sTC}, v{vK1}
    v_add_u32 v{T+2}, s{sTB}, v{T+2}
    v_cmp_eq_u32 vcc, 0, v{T}
    v_mov_b32 v{T+3}, {WS_C-WS_K}
    v_mov_b32 v{vQ2}, {WS_C-WS_Q+16}
    v_cndmask_b32 v{vK2}, v{T+3}, v{T+2}, vcc
    v_cndmask_b32 v{vQ2}, v{vQ2}, v{T+2}, vcc
    v_lshrrev_b32 v{T+2}, 2, v{T+1}
    v_lshlrev_b32 v{T+2}, 14, v{T+2}
    v_add_u32 v{T+2}, s{sTA}, v{T+2}
    v_and_b32 v{T+3}, 3, v{T+1}
    v_lshlrev_b32 v{T+3}, 4, v{T+3}
    v_lshl_add_u32 v{T+3}, v{T}, 6, v{T+3}
    v_add_u32 v{T+2}, v{T+2}, v{T+3}
    v_mov_b32 v{T+3}, {WS_C-WS_V+16}
    v_cmp_gt_u32 vcc, 20, v{T+1}
    s_lshl_b32 s{sTA}, s{sKH}, 14
    s_add_u32 s{sTB}, s{sTA}, {WS_K+4096}
    s_lshr_b32 s{sTA}, s{sTA}, 1
    v_cndmask_b32 v{T+2}, v{T+3}, v{T+2}, vcc
    v_mov_b32 v{T+3}, {WS_C-WS_V}
    v_cmp_eq_u32 vcc, 20, v{T+1}
    """)
    wsbase(g, pK, sTB)
    g.e(f"""
    v_cndmask_b32 v{vVL}, v{T+2}, v{T+3}, vcc
    s_add_u32 s{sTB}, s{sTA}, {WS_V+4096}
    """)
    wsbase(g, pV, sTB)
    g.e(f"""
    s_lshl_b32 s{sTA}, s{sQB}, 1
    s_lshr_b32 s{sTB}, s{sWAVE}, 1
    s_add_u32 s{sTA}, s{sTA}, s{sTB}
    s_lshl_b32 s{sTA}, s{sTA}, 11
    s_lshl_b32 s{sTB}, s{sKH}, 10
    s_add_u32 s{sTC}, s{sTA}, s{sTB}
    """)
    wsbase(g, pQ, sTC)
    g.e(f"""
    s_xor_b32 s{sQHI}, s{sTC}, 1024
    s_mul_i32 s{sTB}, s{sHD}, {3*32768}
    s_add_u32 s{sOST}, s{sTC}, s{sTB}
    s_add_u32 s{sOST}, s{sOST}, {WS_O}
    """)
    wsbase(g, pTW, sQHI)
    g2 = Seg()
    g2.e(f"""
    s_lshr_b32 s{sTA}, s{sXCD}, 1
    s_lshl_b32 s{sTA}, s{sTA}, 3
    s_add_u32 s{sRB}, s{sTA}, s{sQB}
    s_and_b32 s{sTA}, s{sXCD}, 1
    s_lshl_b32 s{sTA}, s{sTA}, 2
    s_lshr_b32 s{sTB}, s{sLOC}, 3
    s_add_u32 s{sCB}, s{sTA}, s{sTB}
    v_lshlrev_b32 v{T+2}, 4, v{T+1}
    v_lshl_add_u32 v{vOSA}, v{T}, 15, v{T+2}
    v_lshl_add_u32 v{vOSC}, v{T}, 3, v{T+2}
    v_add_u32 v{vOSC}, 65536, v{vOSC}
    v_lshlrev_b32 v{vLIN}, 4, v{vLANE}
    v_add_u32 v{vH3}, 49152, v{vLIN}
    v_add_u32 v{vH3+1}, 98304, v{vLIN}
    v_add_u32 v{vH3+2}, 147456, v{vLIN}
    v_lshrrev_b32 v{T+2}, 4, v{vLANE}
    v_and_b32 v{T+3}, 15, v{vLANE}
    v_lshlrev_b32 v{T+3}, 4, v{T+3}
    v_lshl_add_u32 v{vO3}, v{T+2}, 15, v{T+3}
    s_mul_i32 s{sLW}, s{sWAVE}, {LW}
    v_add_u32 v{vRW}, s{sLW}, v{vLIN}
    s_xor_b32 s{sTB}, s{sWAVE}, 1
    s_mul_i32 s{sTA}, s{sTB}, {LW}
    v_add_u32 v{vRR}, s{sTA}, v{vLIN}
    v_add_u32 v{vFH}, {F_H-F_QKV}, v{vPA}
    s_lshr_b32 s{sTA}, s{sRB}, 2
    s_lshl_b32 s{sTA}, s{sTA}, 10
    s_add_u32 s{sTA}, s{sTA}, {F_O}
    v_lshrrev_b32 v{T+2}, 3, v{T+1}
    v_and_b32 v{T+3}, 7, v{T+1}
    v_lshlrev_b32 v{T+3}, 2, v{T+3}
    v_lshl_add_u32 v{T+3}, v{T+2}, 8, v{T+3}
    v_add_u32 v{vFO}, s{sTA}, v{T+3}
    s_mul_i32 s{sTA}, s{sCB}, {72*5*1024}
    s_mul_i32 s{sTB}, s{sWAVE}, {12*5*1024}
    s_add_u32 s{sWP}, s{sTA}, s{sTB}
    s_add_u32 s{sWP}, s{sWP}, {WS_W}
    s_mul_i32 s{sTB}, s{sWAVE}, {6*5*1024}
    s_add_u32 s{sWP2}, s{sTA}, s{sTB}
    s_add_u32 s{sWP2}, s{sWP2}, {WS_W + 48*5*1024}
    s_mul_i32 s{sTA}, s{sRB}, {4*48*1024}
    s_mul_i32 s{sTB}, s{sWAVE}, {12*1024}
    s_add_u32 s{sHP}, s{sTA}, s{sTB}
    s_add_u32 s{sHP}, s{sHP}, {WS_H}
    s_lshl_b32 s{sTA}, s{sRB}, 10
    s_mul_i32 s{sTB}, s{sWAVE}, {24*32768}
    s_add_u32 s{sOP}, s{sTA}, s{sTB}
    s_add_u32 s{sOP}, s{sOP}, {WS_O}
    s_mov_b32 s{sSAFE}, 0
    s_add_u32 s{sFL}, s{sFLQ}, {F_H-F_QKV}
    s_lshl_b32 s{sTA}, s{sQB}, 10
    s_lshr_b32 s{sTB}, s{sHD}, 3
    s_lshl_b32 s{sTB}, s{sTB}, 8
    s_add_u32 s{sTA}, s{sTA}, s{sTB}
    s_and_b32 s{sTB}, s{sHD}, 7
    s_lshl_b32 s{sTB}, s{sTB}, 2
    s_add_u32 s{sTA}, s{sTA}, s{sTB}
    s_add_u32 s{sFO}, s{sTA}, {F_O}
    """)
    return g, g2

def kv_set(t): return aKV + 14*(t % 4)
def k_loads(t):
    b = kv_set(t); off = (t % 16)*512 - 4096
    pre = list(Seg().e(f"s_add_u32 s{pK}, s{pK}, 8192\ns_addc_u32 s{pK+1}, s{pK+1}, 0")) if t == 16 else []
    return [pre + [I(f"global_load_dwordx4 {a(b,4)}, v{vK1}, {sp(pK)} offset:{off} sc1", tag=("k",t,1))],
            [I(f"global_load_dwordx2 {a(b+4,2)}, v{vK2}, {sp(pK)} offset:{off} sc1", tag=("k",t,2))]]
def flat(l): return [x for y in l for x in y]
def v_loads(t):
    b = kv_set(t) + 6; off = t*256 - 4096
    return [I(f"global_load_dwordx4 {a(b,4)}, v{vVL}, {sp(pV)} offset:{off} sc1", tag=("v",t,0)),
            I(f"global_load_dwordx4 {a(b+4,4)}, v{vVL}, {sp(pV)} offset:{off+128} sc1", tag=("v",t,1))]
def q_loads():
    out = []
    for u in range(4):
        b = aQ + 6*u; p = pQ if u < 2 else pTW; off = (u % 2)*512
        out.append(I(f"global_load_dwordx4 {a(b,4)}, v{vK1}, {sp(p)} offset:{off} sc1", tag=("q",u,1)))
        out.append(I(f"global_load_dwordx2 {a(b+4,2)}, v{vQ2}, {sp(p)} offset:{off} sc1", tag=("q",u,2)))
    return out

SPLIT = opt("split", 296)
def stage_barriers():
    seen = {0}; bg = {}
    for n in range(400):
        if n + DIST < 400:
            k = stage_of(*ORDER[n+DIST][:2]) // 2
            if k not in seen: seen.add(k); bg[k] = n
    return bg
BG = stage_barriers()
def base_gaps(cls, lo, hi, nw):
    gaps = [Gap(p1_mfma(n, cls)) if lo <= n < hi else None for n in range(400)]
    inv = {n: k for k, n in BG.items()}
    for n in range(lo, hi):
        if n in inv: gaps[n].sec[0] += [W(vm=[dma_tag(min(2*inv[n]+1, 24))]), I("s_barrier")]
        if n % 4 == 3 and n + 1 < 400: gaps[n].sec[0].append(W(lg=("tr", min(n+4, 399), 1)))
        gaps[n].sec[1] += tr_reads(n + DIST)
    dm = Stream(gaps, lo)
    EV = opt("dmaev", 3); EVH = opt("dmaevh", 4); LAND = opt("land", 22)
    for sg in range(nw if lo == 0 else 0, 25):
        k = sg // 2
        g0 = BG[k-2] + 1 if k >= 3 else 0
        if not (lo <= g0 < hi): continue
        dm.put(dma_stage(sg), g0, min(BG[k] - LAND, hi - 2), every=(EVH if 10 <= sg < 15 else EV))
        if sg == opt("jobsg", 17): dm.put(job_dma(), 0, hi - 2, every=EV); JD[0] = dm.k
    assert dm.k < hi
    return gaps
JD = [0]

def ren(i): return i
def phase1a(cls, nw):
    g = Seg()
    if cls == 'V': g.e("L_clsV:")
    gaps = base_gaps(cls, 0, SPLIT, nw)
    A2 = vACC + 2
    post = Seg()
    post.e(f"""
    v_add_f32 v{A2}, {f2u(1e-5)}, v{A2}
    v_cvt_pk_bf16_f32 v{A2}, v{A2}, v{A2}
    v_lshlrev_b32 v{A2}, 16, v{A2}
    v_sqrt_f32 v{A2}, v{A2}
    v_mov_b32 v{vZERO}, 0
    v_cvt_pk_bf16_f32 v{A2}, v{A2}, v{A2}
    v_lshlrev_b32 v{vS}, 16, v{A2}
    v_rcp_f32 v{vR}, v{vS}
    v_mul_f32 v{vSG}, {f2u(-LOG2E)}, v{vR}
    """)
    if cls != 'V':
        post.e(f"v_mul_f32 v{vSCL}, s{sSC}, v{vR}")
    else:
        post.e(f"""
        v_mov_b32 v{vSCL+2}, {L_X}
        v_add_u32 v{vSCL+2}, s{sWB}, v{vSCL+2}
        v_and_b32 v{vSCL}, 31, v{vLANE}
        v_lshl_add_u32 v{vSCL}, v{vSCL}, 2, v{vSCL+2}
        v_lshrrev_b32 v{vSCL+1}, 5, v{vLANE}
        v_lshl_add_u32 v{vSCL+1}, v{vSCL+1}, 4, v{vSCL+2}
        ds_write_b32 v{vSCL}, v{vR}
        """)
        for k in range(4):
            post.append(I(f"ds_read_b128 {v(vR16+4*k,4)}, v{vSCL+1} offset:{32*k}", tag=("r16", k)))
    post.append(I(f"buffer_load_dword v{vNON}, v{vZERO}, {SDBG}, 0 offen sc1", tag="non"))
    Stream.stores.clear()
    if opt("pf", 7) & 8:
        p2 = Seg()
        p2.e(f"""
        s_min_u32 s58, s{sTA}, 959
        s_lshl_b32 s58, s58, 11
        v_lshlrev_b32 v78, 4, v{vLANE}
        v_add_u32 v79, s58, v78
        """)
        for p_ in (sP+8, sP+10):
            for k_ in range(2): p2.append(I(f"global_load_dwordx4 a[204:207], v79, {sp(p_)} offset:{1024*k_}", tag="pf"))
        Stream(gaps).put(p2, opt("pf2at", 1), 60, every=3)
    jb = Stream(gaps)
    jb.put(job_params(), 0, 150, free=True)
    assert jb.k < JD[0] - 12
    jb.put(job_par(), 0, SPLIT - 2, free=True)
    ch = Stream(gaps)
    for ks in range(K0, 40): ch.put(center5(ks), 0, 4*ks - 2)
    ch.put(post, 0, 161)
    e0 = Seg()
    if cls == 'V':
        e0.append(W(lg=("r16", 3)))
        for u in range(4): e0 += epi_v(aA+16*u, u % 2, sEB + u//2, vEP, "qkv")
    else:
        for u in range(4): e0 += epi_qk(aA+16*u, u % 2, sEB + u//2, vSCL, "qkv")
    bg = opt("pub", 260)
    if bg in BG.values(): gaps[bg].sec[0][0].wvm += ["qkv", "non", "cst"]
    else: gaps[bg].sec[0][:0] = [W(vm=["qkv", "non", "cst"]), I("s_barrier")]
    pb = Seg()
    spin(pb, "N" + cls, vZERO, vNON, 1, SDBG, f"v_cmp_eq_u32 vcc, 0, v{vNON}")
    pb.e(f"v_readfirstlane_b32 s{sNON}, v{vNON}")
    publish(pb, "Q" + cls, sFLQ, vLN+2)
    Stream(gaps, bg).block(pb, bg)
    if "--x_plain" in sys.argv:
        e0 = [I(i.text.replace(" sc1", ""), tag=i.tag) if i.cls == "vmem" else i for i in e0]
    if "--x_lin" in sys.argv:
        n_ = [0]
        def lin(i):
            n_[0] += 1
            return I(f"buffer_store_dwordx4 {i.text.split()[1]} v{vCST}, {SWS}, s58 offen offset:{(n_[0]-1)%4*1024} sc1", tag=i.tag)
        e0 = list(Seg().e(f"s_lshl_b32 s58, s2, 2\ns_add_u32 s58, s58, s{sWAVE}\ns_lshl_b32 s58, s58, 12\nv_lshlrev_b32 v{vCST}, 4, v{vLANE}")) + [lin(i) if i.cls == "vmem" else i for i in e0]
    pieces, cur = [], []
    for i in e0:
        cur.append(i)
        if i.cls == "vmem": pieces.append(cur); cur = []
    e1 = epi_g(aB, 0, sHB, "h1", ud=16)
    STSP = opt("stsp", 7); E0END = bg - opt("stlat", 16)
    q1 = list(e1)
    for n, pc in enumerate(pieces):
        at = 161 + n * STSP
        if at > 241:
            while q1 and ch.k < at - 1:
                m = next((x for x in range(len(q1)) if q1[x].op == "v_cvt_pk_bf16_f32"), len(q1) - 2) + 2
                if m < len(q1) and q1[m].cls == "vmem": m += 1
                ch.put([ren(i) for i in q1[:m]], 241, SPLIT - 2); q1 = q1[m:]
        ch.put(pc, at, E0END)
    assert ch.k <= E0END + 1
    ch.put([ren(i) for i in q1], 241, SPLIT - 2)
    print("job ends", jb.k, "epilogue ends", ch.k, file=sys.stderr)
    report("pass0 " + cls, gaps, 0, 160); report("pass1 " + cls, gaps, 160, 240); report("pass2a " + cls, gaps, 240, SPLIT)
    for n in range(SPLIT):
        if n in XS: stamp(g, 18 + XS.index(n))
        if n == 160: stamp(g, 4)
        if n == 240: stamp(g, 5)
        g += gaps[n].flat()
    if cls != 'V': g.e("s_branch L_p1c")
    return g

def phase1c():
    g = Seg()
    g.e("L_p1c:")
    gaps = base_gaps('Q', SPLIT, 400, 0)
    Stream.stores.clear()
    ch = Stream(gaps, SPLIT)
    POLL = opt("poll", 332); CHK = opt("chk", 350)
    Stream(gaps, POLL).put([I(f"buffer_load_dwordx4 {v(44,4)}, v{vPA}, {SWS}, 0 offen sc1", tag="pollq")], POLL, POLL+1)
    ck = Seg(); ck.append(W(vm="pollq"))
    spin(ck, "Q", vPA, 44, 4, SWS, all4(44, f"s{sNON}"))
    stamp(ck, 7)
    Stream(gaps, CHK).block(ck, CHK)
    first = flat(k_loads(0)) + q_loads() + v_loads(0) + flat(k_loads(1)) + v_loads(1) + flat(k_loads(2)) + v_loads(2)
    Stream(gaps, CHK + 1).put(first, CHK + 1, 399, every=opt("ldev", 2))
    as1, as2 = attn_addr_setup()
    j1, j2 = job_process()
    ch.put(j1, 0, CHK - 1); k = ch.k
    ch.put(as1, 0, CHK - 1); ch.put(j2, k + 4, CHK - 1, stsp=opt("jstsp", 4))
    ch.put(as2, 0, CHK - 1)
    print("set-up ends", ch.k, file=sys.stderr)
    ch.put(epi_g(aC, 0, sHB+1, "h1"), 400 - 8*NTAIL + 1, 399)
    report("pass2", gaps, SPLIT, 400)
    for n in range(SPLIT, 400):
        if n in XS: stamp(g, 18 + XS.index(n))
        g += gaps[n].flat()
    stamp(g, 6)
    if STAMPS: g.e(f"v_accvgpr_mov_b32 a{aSTAMP}, a{aST[0]}"); aST[0] = aSTAMP
    return g

def s_mfma(n):
    t, u = n // 4, n % 4
    S = v(16*(n % 2), 16); k = kv_set(t); q = aQ + 6*u
    return (I(f"v_mfma_f32_32x32x16_bf16 {S}, {a(k,4)}, {a(q,4)}, 0"),
            I(f"v_mfma_f32_32x32x8_bf16 {S}, {a(k+4,2)}, {a(q+4,2)}, {S}"))
def pv_mfma(n):
    t, u = n // 4, n % 4
    O = a(aO + 16*u, 16); vv = kv_set(t) + 6; P = 32 + 8*(n % 2)
    return (I(f"v_mfma_f32_32x32x16_bf16 {O}, {a(vv,4)}, {v(P,4)}, {'0' if t == 0 else O}"),
            I(f"v_mfma_f32_32x32x16_bf16 {O}, {a(vv+4,4)}, {v(P+4,4)}, {O}"))
def softmax_valu(n):
    S = 16*(n % 2); P = 32 + 8*(n % 2)
    E = lambda i: I(f"v_exp_f32 v{S+i}, v{S+i}")
    C = lambda k: I(f"v_cvt_pk_bf16_f32 v{P+k}, v{S+2*k}, v{S+2*k+1}")
    return [E(0),E(1),E(2),C(0),E(3),E(4), C(1),E(5),E(6),C(2),E(7),E(8), C(3),E(9),E(10),C(4),E(11),E(12), C(5),E(13),E(14),E(15),C(6),C(7)]

def p3_frags():
    fr = []
    for ks in range(12):
        fr += [("w", ks, t) for t in range(5)] + [("h", ks, u) for u in range(4)]
    for ks in range(12, 18):
        fr += [("w", ks, t) for t in range(5)] + [("o", ks, u) for u in range(4)]
    return fr
FR = p3_frags()
PRE_SLOTS = [a(88+4*i,4) for i in range(27 if STAMPS else 28)] + [v(64+4*i,4) for i in range(48)]
KV_SLOTS = [a(aKV+4*i,4) for i in range(14)]
LDS_FR = [f for f in FR if f[0] == "w"][-NLPF:]
class Loader:
    def __init__(self): self.cur = {pTW: None, pTH: None}
    def base(self, p, sreg, hi):
        if self.cur[p] == (sreg, hi): return []
        self.cur[p] = (sreg, hi)
        o = Seg(); o.e(f"s_add_u32 s{p}, s{sreg}, {hi+4096}\ns_add_u32 s{p}, s24, s{p}\ns_addc_u32 s{p+1}, s25, 0"); return list(o)
    def addr(self, f):
        kind, ks, x = f
        if kind == "w":
            off = (ks*5 + x)*1024 if ks < 12 else ((ks-12)*5 + x)*1024
            return pTW, (sWP if ks < 12 else sWP2), off // 8192 * 8192, off % 8192 - 4096, vLIN
        if kind == "h":
            off = ks*1024
            return pTH, sHP, off // 8192 * 8192, off % 8192 - 4096, (vLIN if x == 0 else vH3 + x - 1)
        return pTH, sOP, (ks-12)*4*32768, x*256 - 4096, vO3
    def emit(self, f, reg):
        p, sreg, hi, lo, vr = self.addr(f)
        return self.base(p, sreg, hi) + [I(f"global_load_dwordx4 {reg}, v{vr}, {sp(p)} offset:{lo} sc1", tag=f)]
    def emit_lds(self, f, idx):
        kind, ks, x = f
        off = (ks*5 + x)*1024 if ks < 12 else ((ks-12)*5 + x)*1024
        sreg = sWP if ks < 12 else sWP2
        hi, lo = off // 4096 * 4096, off % 4096
        out = self.base(pTW, sreg, hi - 4096)
        m0 = L_PF + idx*1024 - lo
        if self.cur.get("m0") != m0:
            self.cur["m0"] = m0; out.append(I(f"s_add_u32 m0, s{sLW}, {m0}"))
        return out + [I(f"global_load_lds_dwordx4 v{vLIN}, {sp(pTW)} offset:{lo} sc1", tag=("L",)+f)]
vFT = 64

def attention(regmap, loader):
    g = Seg()
    g += epi_g(aC, 1, sHB+1, "h1")
    stamp(g, 8)
    g.e("L_att1:")
    g.append(W(vm=[("q",3,2), ("k",0,2)]))
    m = s_mfma(0); g.append(m[0]); g.append(m[1])
    free = [[] for _ in range(128*4)]
    for t in range(32):
        if t + 3 < 32:
            kl = k_loads(t+3); vl = v_loads(t+3)
            if len(kl[0]) > 1: free[16*t - 2].append(kl[0][0]); free[16*t - 1].append(kl[0][1])
            for i in range(2): free[16*t + i].append(kl[i][-1])
            for i in range(2): free[16*t + 4 + i].append(vl[i])
        if t + 1 < 32: free[16*t + 11].append(W(vm=[("k",t+1,2), ("v",t+1,1)]))
    free[3].append(W(vm=("v",0,1)))
    pub = Seg(); pub.append(W(vm="h1")); pub.e("s_barrier")
    publish(pub, "H", sFL, vFT)
    free[16*1 + 7] += pub
    HP = opt("hpoll", 7)
    free[16*HP + 7].append(I(f"buffer_load_dwordx4 {v(vFT+4,4)}, v{vFH}, {SWS}, 0 offen sc1", tag="pollh"))
    chk = Seg(); chk.append(W(vm="pollh"))
    spin(chk, "H", vFH, vFT+4, 4, SWS, all4(vFT+4, f"s{sNON}"))
    free[16*(HP+2) + 7] += chk
    pos = []
    for t in range(HP+3, 32):
        pos += [16*t + i for i in (2,3,6,7,8,9,10,12,13,14,15) if not (t == 12 and i >= 13)]
    q = []
    for i, f in enumerate(LDS_FR): q.append(loader.emit_lds(f, i))
    for i, reg in enumerate(PRE_SLOTS):
        regmap[FR[i]] = reg
        q.append(loader.emit(FR[i], reg))
    step = len(pos) / len(q)
    assert step >= 1.0
    for i, ins in enumerate(q):
        k = int(i*step)
        sal = ins[:-1]
        if sal and k > 0 and int((i-1)*step) < k - 1 and i > 0:
            free[pos[k-1]].append(sal[0]); sal = sal[1:]
        free[pos[k]] += sal + [ins[-1]]
    for n in range(128):
        va = softmax_valu(n)
        ms = [None]*4
        if n + 1 < 128: ms[0], ms[1] = s_mfma(n+1)
        if n >= 1: ms[2], ms[3] = pv_mfma(n-1)
        for p in range(4):
            if ms[p] is not None: g.append(ms[p])
            g += free[4*n + p]
            g += va[6*p:6*p+6]
    m = pv_mfma(127); g.append(m[0]); g.append(m[1])
    stamp(g, 9)
    for k in range(3): g.e(f"ds_write_b128 v{vRW}, {a(aO+32+4*k,4)} offset:{k*1024}")
    for u in range(2):
        for k in range(12): g.e(f"v_accvgpr_read_b32 v{12*u+k}, a{aO+16*u+k}")
    for k in range(3): g.e(f"ds_write_b128 v{vRW}, {a(aO+48+4*k,4)} offset:{(3+k)*1024}")
    g.append(W(lg=0)); g.e("s_barrier")
    for k in range(6): g.append(I(f"ds_read_b128 {v(24+4*k,4)}, v{vRR} offset:{k*1024}", tag=("red",k)))
    g.e(f"s_mov_b32 s{sTA}, {f2u(2.0**-60)}\ns_mov_b32 s{sTB}, {f2u(2.0**60)}\ns_mov_b32 s{sTC}, 0x7f000000")
    for u in range(2):
        g.append(W(lg=("red", 3*u+2)))
        for k in range(12): g.e(f"v_add_f32 v{12*u+k}, v{12*u+k}, v{24+12*u+k}")
    g.e(f"""
    v_mov_b32 v24, v8
    v_mov_b32 v26, v8
    v_mov_b32 v25, v20
    v_mov_b32 v27, v20
    v_add_f32 v28, |v0|, |v1|
    v_add_f32 v29, |v12|, |v13|
    v_permlane32_swap_b32 v26, v24
    v_permlane32_swap_b32 v27, v25
    v_add_f32 v28, v28, |v2|
    v_rcp_f32 v30, v24
    v_rcp_f32 v31, v25
    v_add_f32 v29, v29, |v14|
    """)
    for u in range(2):
        for k in range(8): g.e(f"v_mul_f32 v{32+8*u+k}, v{30+u}, v{12*u+k}")
        for k in range(4): g.e(f"v_cvt_pk_bf16_f32 v{32+8*u+k}, v{32+8*u+2*k}, v{32+8*u+2*k+1}")
        g.append(I(f"buffer_store_dwordx4 {v(32+8*u,4)}, v{vOSA}, {SWS}, s{sOST} offen offset:{512*u} sc1", tag="ost"))
    for u in range(2):
        for k in range(4): g.e(f"v_mul_f32 v{36+8*u+k}, v{30+u}, v{12*u+8+k}")
        for k in range(2): g.e(f"v_cvt_pk_bf16_f32 v{36+8*u+k}, v{36+8*u+2*k}, v{36+8*u+2*k+1}")
        g.append(I(f"buffer_store_dwordx2 {v(36+8*u,2)}, v{vOSC}, {SWS}, s{sOST} offen offset:{512*u} sc1", tag="ost"))
    for k in range(3, 12):
        g.e(f"v_add_f32 v28, v28, |v{k}|\nv_add_f32 v29, v29, |v{12+k}|")
    g.e(f"""
    v_min_f32 v26, v24, v25
    v_max_f32 v27, v24, v25
    v_add_f32 v28, v28, v29
    v_cmp_nge_f32 vcc, v26, s{sTA}
    v_cmp_nle_f32 s[98:99], v27, s{sTB}
    v_cmp_nlt_f32 s[100:101], v28, s{sTC}
    s_lshl_b32 s{sTB}, s{sWAVE}, 2
    s_add_u32 s{sTB}, s{sTB}, {L_VOTE}
    v_mov_b32 v25, s{sTB}
    s_or_b64 vcc, vcc, s[98:99]
    s_or_b64 vcc, vcc, s[100:101]
    s_cselect_b32 s{sTA}, 1, 0
    v_mov_b32 v24, s{sTA}
    ds_write_b32 v25, v24
    v_mov_b32 v25, {L_VOTE}
    """)
    stamp(g, 10)
    return g

vLA = 0; vGO = 5; vXD = 10; vW3 = 20; vLP = 21; vP3T = 22
R3ROW = 336
def phase3(regmap, loader):
    g = Seg()
    gaps = [Gap(None) for _ in range(360)]
    npre = len(PRE_SLOTS)
    freeq = collections.deque((0, r) for r in KV_SLOTS)
    released = set()
    def take(limit=None):
        while not freeq:
            ks = min(k for k in range(18) if k not in released); released.add(ks)
            for f in FR:
                if f[1] == ks: freeq.append((20*ks+20, regmap[f]))
        return freeq.popleft()
    rest = [f for f in FR[npre:] if f[0] != "o" and f not in LDS_FR]
    ofr = [f for f in FR if f[0] == "o"]
    ld = Chain(gaps)
    gpos = 1
    STEP = opt("p3step", 4)
    for f in rest:
        e, r = take(); gpos = max(gpos, e); regmap[f] = r
        assert gpos + 30 < 20*f[1], (f, gpos)
        ld.put(loader.emit(f, r), gpos, gpos+1); gpos += STEP
    OPOLL, OCHK = opt("opoll", 150), opt("ochk", 190)
    assert gpos < OPOLL
    ld.put([I(f"buffer_load_dword v{vP3T}, v{vFO}, {SWS}, 0 offen sc1", tag="pollo")], OPOLL, OPOLL+1)
    chk = Seg(); chk.append(W(vm="pollo"))
    spin(chk, "O", vFO, vP3T, 1, SWS, f"v_cmp_ne_u32 vcc, s{sNON}, v{vP3T}")
    stamp(chk, 12)
    ld.block(chk, OCHK)
    gpos = OCHK + 1
    for f in ofr:
        e, r = take(); assert e <= gpos + 10, (e, f, gpos)
        gpos = max(gpos, e); regmap[f] = r
        ld.put(loader.emit(f, r), gpos, gpos+1); gpos += 2
    lr = Chain(gaps)
    for i, f in enumerate(LDS_FR):
        e, r = take(); regmap[f] = r
        at = max(e, 20*f[1] - 24 + 3*f[2])
        assert at < 20*f[1] - 4, (f, at)
        lr.put([I(f"ds_read_b128 {r}, v{vLP} offset:{L_PF + i*1024}", tag=("R",)+f)], at, at+1)
    ch = Chain(gaps)
    v1 = Seg(); v1.append(W(lg=0)); v1.e("s_barrier"); v1.append(I("ds_read_b128 v[28:31], v25", tag="votes"))
    ch.put(v1, 2, 3)
    vt = Seg(); vt.append(W(lg="votes"))
    vt.e(f"""
    v_or3_b32 v28, v28, v29, v30
    v_or_b32 v28, v28, v31
    s_nop 0
    v_readfirstlane_b32 s{sTA}, v28
    s_andn2_b32 s{sTA}, s{sTA}, s{sSAFE}
    s_cbranch_scc1 L_fallback
    """)
    ch.block(vt, 10)
    pub = Seg(); pub.append(W(vm="ost")); pub.e("s_barrier")
    publish(pub, "O", sFO, 28)
    stamp(pub, 11)
    ch.block(pub, opt("opub", 24))
    ad = Seg()
    T = 23
    ad.e(f"""
    s_lshl_b32 s{sTA}, s{sWAVE}, 6
    v_lshrrev_b32 v{T}, 4, v{vLIN}
    v_add_u32 v{T}, s{sTA}, v{T}
    v_add_u32 v{vLP}, s{sLW}, v{vLIN}
    s_mul_i32 s{sTA}, s{sRB}, {64*1280}
    s_mul_i32 s{sTB}, s{sCB}, 160
    s_add_u32 s{sMBX}, s{sTA}, s{sTB}
    """)
    for k in range(5):
        ad.e(f"""
        v_add_u32 v24, {256*k}, v{T}
        v_mul_u32_u24 v26, 3277, v24
        v_lshrrev_b32 v26, 16, v26
        v_mul_u32_u24 v27, 20, v26
        v_sub_u32 v27, v24, v27
        v_mul_u32_u24 v24, {R3ROW}, v26
        v_lshl_add_u32 v24, v27, 4, v24
        v_add_u32 v{vLA+k}, {L_PF}, v24
        v_add_u32 v{32+k}, {L_PF+2*LW}, v24
        v_mul_u32_u24 v24, 1280, v26
        v_lshl_add_u32 v{vGO+k}, v27, 3, v24
        """)
        ad.append(I(f"buffer_load_dwordx2 {v(vXD+2*k,2)}, v{vGO+k}, {SX}, s{sMBX} offen", tag=("xres",k)))
    ad.e(f"""
    s_add_u32 s{sTA}, s{sLW}, {L_PF}
    v_lshrrev_b32 v{T}, 4, v{vLIN}
    v_and_b32 v24, 15, v{T}
    v_mul_u32_u24 v24, {R3ROW}, v24
    v_and_b32 v{T}, 48, v{T}
    v_add3_u32 v{vW3}, v{T}, v24, s{sTA}
    """)
    ch.put(ad, 30, 140)
    def tg(f): return ("R",)+f if f in LDS_FR else f
    for m in range(360):
        ks, u, t = m // 20, (m % 20) // 5, m % 5
        b = ("h" if ks < 12 else "o", ks, u)
        w = None
        if m % 20 == 0:
            ws_ = [("w", ks, tt) for tt in range(5)]
            vm = [f for f in ws_ if f not in LDS_FR] + ([("h", ks, uu) for uu in range(4)] if ks < 12 else [b])
            lg = [tg(f) for f in ws_ if f in LDS_FR]
            w = W(vm=vm, lg=(lg or None))
        elif ks >= 12 and t == 0: w = W(vm=b)
        if w is not None:
            if m == 0: g.append(w)
            else: gaps[m-1].sec[2].append(w)
        acc = a(4*(5*u+t), 4)
        gaps[m].mfma = I(f"v_mfma_f32_16x16x32_bf16 {acc}, {regmap[('w',ks,t)]}, {regmap[b]}, {'0' if ks == 0 else acc}")
        if ks == 17 and u >= 2:
            uu = u - 2
            gaps[m].sec[1].append(I(f"ds_write_b128 v{vW3}, {a(4*(5*uu+t),4)} offset:{uu*16*R3ROW + t*64}"))
    first_r = min(i for i, gp in enumerate(gaps) if any(x.tag and x.tag[0] == "R" for x in gp.sec[1] if isinstance(x.tag, tuple)))
    gaps[first_r].sec[0].insert(0, W(vm=("L",)+LDS_FR[-1]))
    for gp in gaps: g += gp.flat()
    for uu in (2, 3):
        for t in range(5): g.e(f"ds_write_b128 v{vW3}, {a(4*(5*uu+t),4)} offset:{uu*16*R3ROW + t*64}")
    stamp(g, 13)
    g.append(W(lg=0)); g.e("s_barrier")
    R = 64
    for k in range(5):
        for src in range(4):
            ar = vLA + k if src < 2 else 32 + k
            g.append(I(f"ds_read_b128 {v(R+16*k+4*src,4)}, v{ar} offset:{(src%2)*LW}", tag=("fr",k,src)))
    g.append(W(vm=("xres",4)))
    for k in range(5):
        b = R + 16*k; x = vXD + 2*k; T = 24
        g.e(f"""
        v_lshlrev_b32 v{T}, 16, v{x}
        v_and_b32 v{T+1}, 0xffff0000, v{x}
        v_lshlrev_b32 v{T+2}, 16, v{x+1}
        v_and_b32 v{T+3}, 0xffff0000, v{x+1}
        """)
        g.append(W(lg=("fr",k,3)))
        for e in range(4): g.e(f"v_add_f32 v{b+e}, v{b+e}, v{b+4+e}")
        for e in range(4): g.e(f"v_add_f32 v{b+8+e}, v{b+8+e}, v{b+12+e}")
        for e in range(4): g.e(f"v_add_f32 v{T+e}, v{T+e}, v{b+e}")
        for e in range(4): g.e(f"v_add_f32 v{T+e}, v{T+e}, v{b+8+e}")
        g.e(f"v_cvt_pk_bf16_f32 v{b}, v{T}, v{T+1}\nv_cvt_pk_bf16_f32 v{b+1}, v{T+2}, v{T+3}")
        g.e(f"buffer_store_dwordx2 {v(b,2)}, v{vGO+k}, {SOUT}, s{sMBX} offen")
    if STAMPS:
        g.e("s_waitcnt vmcnt(0)")
        stamp(g, 14)
        dump_stamps(g)
    g.e("L_end:\ns_endpgm")
    return g

def dump_stamps(g):
    g.e(f"""
    s_lshl_b32 s{sTA}, s2, 2
    s_add_u32 s{sTA}, s{sTA}, s{sWAVE}
    s_lshl_b32 s{sTA}, s{sTA}, 8
    s_add_u32 s{sTA}, s{sTA}, {WS_T}
    v_mbcnt_lo_u32_b32 v0, -1, 0
    v_mbcnt_hi_u32_b32 v0, -1, v0
    v_lshlrev_b32 v0, 2, v0
    v_accvgpr_read_b32 v1, a{aSTAMP}
    buffer_store_dword v1, v0, {SWS}, s{sTA} offen
    s_waitcnt vmcnt(0)
    """)

def fallback():
    g = Seg()
    g.e("L_fallback:")
    g.e(f"s_mov_b32 s{sSAFE}, 1\ns_waitcnt vmcnt(0) lgkmcnt(0)\ns_barrier")
    wsbase(g, pTW, sQHI)
    g += q_loads()
    for u in range(4): g.e(f"v_mov_b32 v{32+u}, 0xff800000")
    g.e(f"s_sub_u32 s{pK}, s{pK}, 8192\ns_subb_u32 s{pK+1}, s{pK+1}, 0")
    g.e(f"s_sub_u32 s{pTH}, s{pK}, 4096\ns_subb_u32 s{pTH+1}, s{pK+1}, 0\ns_mov_b32 s{sTB}, 32")
    g.e("L_fbloop:")
    b = aKV
    g.e(f"""
    global_load_dwordx4 {a(b,4)}, v{vK1}, {sp(pTH)} sc1
    global_load_dwordx2 {a(b+4,2)}, v{vK2}, {sp(pTH)} sc1
    s_waitcnt vmcnt(0)
    """)
    for u in range(4):
        q = aQ + 6*u
        g.e(f"v_mfma_f32_32x32x16_bf16 v[0:15], {a(b,4)}, {a(q,4)}, 0")
        g.e(f"v_mfma_f32_32x32x8_bf16 v[0:15], {a(b+4,2)}, {a(q+4,2)}, v[0:15]")
        for k in range(8): g.e(f"v_max3_f32 v{32+u}, v{2*k}, v{2*k+1}, v{32+u}")
    g.e(f"""
    s_add_u32 s{pTH}, s{pTH}, 512
    s_addc_u32 s{pTH+1}, s{pTH+1}, 0
    s_sub_u32 s{sTB}, s{sTB}, 1
    s_cmp_lg_u32 s{sTB}, 0
    s_cbranch_scc1 L_fbloop
    """)
    for u in range(4): g.e(f"v_mov_b32 v{36+u}, v{32+u}")
    for u in range(4): g.e(f"v_permlane32_swap_b32 v{32+u}, v{36+u}")
    for u in range(4): g.e(f"v_max_f32 v{32+u}, v{32+u}, v{36+u}")
    g.e(f"ds_write_b128 v{vRW}, v[32:35]\ns_waitcnt lgkmcnt(0)\ns_barrier\nds_read_b128 v[36:39], v{vRR}\ns_waitcnt lgkmcnt(0)")
    g.e(f"v_cmp_lt_u32 vcc, 511, v{vLIN}")
    for u in range(4):
        m = 32 + u; q2 = aQ + 6*u + 4
        g.e(f"""
        v_max_f32 v{m}, v{m}, v{36+(u+2)%4}
        v_sub_f32 v{m}, 0, v{m}
        v_cvt_pk_bf16_f32 v0, v{m}, v{m}
        v_lshlrev_b32 v1, 16, v0
        v_sub_f32 v{m}, v{m}, v1
        v_cvt_pk_bf16_f32 v2, v{m}, v{m}
        v_lshlrev_b32 v3, 16, v2
        v_sub_f32 v{m}, v{m}, v3
        v_cvt_pk_bf16_f32 v4, v1, v3
        v_mov_b32 v6, 0
        v_cvt_pk_bf16_f32 v5, v{m}, v6
        v_accvgpr_read_b32 v6, a{q2}
        v_accvgpr_read_b32 v7, a{q2+1}
        v_cndmask_b32 v6, v6, v4, vcc
        v_cndmask_b32 v7, v7, v5, vcc
        v_accvgpr_write_b32 a{q2}, v6
        v_accvgpr_write_b32 a{q2+1}, v7
        """)
    for t in range(3): g += flat(k_loads(t)) + v_loads(t)
    g.e("s_waitcnt vmcnt(0)\ns_barrier\ns_branch L_att1\nL_codeend:")
    return g

HEADER = open("header.txt").read()

def mark_m0(lst):
    last = None
    for i in lst:
        if ("s","m0") in i.wr: last = i
        if i.cls == "vmem" and ("s","m0") in i.rd and last is not None and not hasattr_keep(i): i.keep = last
    return lst
def check_m0(path):
    last = None
    for i in path:
        if ("s","m0") in i.wr: last = i
        if i.cls == "vmem" and ("s","m0") in i.rd and hasattr_keep(i): assert i.keep is last, ("m0", i.text, i.keep.text, last.text)
def check_centred(path):
    done = set()
    for i in path:
        if i.op == "v_cvt_pk_bf16_f32" and i.wr[0][1] >= vX: done.add(i.wr[0][1])
        if i.cls == "mfma":
            for r in i.rd:
                if r[0] == "v" and r[1] >= vX: assert r[1] in done, ("not centred", i.text)

def build():
    pro, nw = prologue()
    cls = {c: phase1a(c, nw) for c in "QV"}
    for c in "QV": check_centred(list(pro) + list(cls[c]))
    p1c = phase1c()
    regmap = {}; loader = Loader()
    att = attention(regmap, loader)
    p3 = phase3(regmap, loader)
    fb = fallback()
    tail = Seg(); tail += p1c; tail += att; tail += p3
    log = []
    tot = fix_hazards(pro, log=log)
    for c in "QV":
        ctx = list(pro[-30:]); n0 = len(ctx); path = ctx + list(cls[c]); tot += fix_hazards(path, log=log)
        assert all(x is y for x, y in zip(path[:n0], ctx)); cls[c][:] = path[n0:]
    for c in "QV":
        ctx = list(cls[c][-30:]); n0 = len(ctx); path = ctx + list(tail); tot += fix_hazards(path, log=log)
        assert all(x is y for x, y in zip(path[:n0], ctx)); tail[:] = path[n0:]
    tot += fix_hazards(fb, log=log)
    for c in "QV": resolve_waits(list(pro) + list(cls[c]) + list(tail))
    allins = list(pro) + list(cls['Q']) + list(cls['V']) + list(tail) + list(fb)
    finalize_waits(allins)
    for c in "QV":
        check_m0(list(pro) + list(cls[c]) + list(tail))
        errs = check_loads(list(pro) + list(cls[c]) + list(tail))
        for e in errs[:10]: print("LOAD HAZARD", c, e, file=sys.stderr)
        assert not errs
        errs = check_scc(list(pro) + list(cls[c]) + list(tail))
        for e in errs[:10]: print("SCC HAZARD", c, e, file=sys.stderr)
        assert not errs
    print(f"nop states inserted: {tot}", file=sys.stderr)
    if "--log" in sys.argv:
        for l in log: print(l, file=sys.stderr)
    body = "\n".join(("" if i.cls == "label" else "    ") + i.text for i in allins)
    return HEADER.replace("@@BODY@@", body)

if __name__ == "__main__":
    out = build()
    path = [x for x in sys.argv[1:] if not x.startswith("--")]
    open(path[0] if path else "out.s", "w").write(out)
```

```python
import sys, math, struct, collections
from asmlib import *

STAMPS = "--stamps" in sys.argv
def opt(name, default):
    for a_ in sys.argv:
        if a_.startswith(f"--{name}="): return type(default)(a_.split("=")[1])
    return default
STOP = opt("stop", "")
XS = [int(x) for x in opt("xs", "").split(",") if x]
K0 = opt("k0", 14)
LAG = opt("lag", 4)

def f2u(x): return struct.unpack("<I", struct.pack("<f", x))[0]

WS_Q = 0x000000; WS_K = 0x280000; WS_V = 0x500000; WS_C = 0x780000
WS_O = 0x800000
WS_H = 0xB00000
WS_W = 0x1100000
WS_F = 0x1400000
WS_T = 0x1410000
WS_SIZE = 0x1480000
F_QKV = WS_F; F_H = WS_F + 0x2000; F_O = WS_F + 0x4000
OOB = 0x40000000
LOG2E = 1.4426950408889634
QSCALE = (20 ** -0.5) * LOG2E

L_RING = 0; NSLOT = 8; L_X = 8*16384; L_J = 9*16384
XSLOT = [8, 9, 2, 3, 4, 5, 6, 7, 8, 9]
LW = 40960; L_PF = 6144; NLPF = 33; L_VOTE = LW - 1024

sWAVE=3; sXCD=4; sLOC=5; sT0=6; sT1=7
SX="s[8:11]"; SWS="s[24:27]"; SOUT="s[28:31]"; SDBG="s[32:35]"; SJ="s[36:39]"
pW=12
sMB=40; sJ=41; sWB=42; pX=44
sSL=[47,48,49,50,51,52,62,63]
sC10=53; sC01=54; sC11=55
sEB=56
sHB=59
sSC=61
sP=64
sNON=84; sTA=85; sTB=86; sTC=87
sHD=88; sQB=89; sKH=90; sJS=91
sFLQ=95; sJO=78
pK=64; pV=66; pQ=68; pTW=70; pTH=72
sWP=74; sHP=75; sOP=76; sOST=77; sFL=78; sMBX=79; sWP2=80; sRB=81; sCB=82; sFO=83
sSAFE=43; sSPIN=44; sLW=45; sQHI=46

vLANE=1; vXLD=84; vXR=88; vDH=4; vTH=6; vDQ=8; vDG=10; vTR=12; vEP=16; vH=18
vJK=19; vJST=23; vJTR=24; vCST=25; vNM=26; vR=27; vS=28; vSG=29; vSCL=30; vNON=33; vACC=34; vZERO=37; vPA=38
vLN=40; vR16=48; vTMP=64; vX=96
vK1=48; vK2=50; vQ2=51; vVL=52; vLIN=53; vH3=54; vO3=57; vOSA=58; vOSC=59; vRW=60; vRR=61; vFH=62; vFO=63
aA=0; aB=64; aC=96; aWF=160; NWF=10
aO=0; aQ=64; aKV=200; aSTAMP=199; aST=[255]

def v(n, k=1): return f"v{n}" if k == 1 else f"v[{n}:{n+k-1}]"
def a(n, k=1): return f"a{n}" if k == 1 else f"a[{n}:{n+k-1}]"
def sp(n): return f"s[{n}:{n+1}]"

class Seg(list):
    def e(self, text, **kw):
        for t in text.strip().split("\n"):
            t = t.strip()
            if t: self.append(I(t, **kw))
        mark_scc(self)
        return self

def stamp(seg, k):
    if not STAMPS: return
    seg.e(f"s_memrealtime s[96:97]" if "--rt" in sys.argv else f"s_memtime s[96:97]")
    seg.append(W(lg=0))
    seg.e(f"s_mov_b64 exec, {1<<k}\nv_accvgpr_write_b32 a{aST[0]}, s96\ns_mov_b64 exec, -1")
    if k in (0, 14):
        seg.e(f"s_memrealtime s[96:97]")
        seg.append(W(lg=0))
        seg.e(f"s_mov_b64 exec, {1<<(16 if k == 0 else 17)}\nv_accvgpr_write_b32 a{aST[0]}, s96\ns_mov_b64 exec, -1")

def srd(seg, S, ptr, size):
    b = int(S[2:].split(":")[0])
    seg.e(f"s_mov_b32 s{b}, s{ptr}\ns_mov_b32 s{b+1}, s{ptr+1}\ns_mov_b32 s{b+2}, {size}\ns_mov_b32 s{b+3}, 0x00020000")

class Gap:
    def __init__(self, mfma):
        self.mfma = mfma; self.sec = [[], [], []]
    def flat(self): return ([self.mfma] if self.mfma is not None else []) + self.sec[0] + self.sec[1] + self.sec[2]
def section(i):
    if i.cls in ("vmem", "lds"): return 1
    if i.cls in ("valu", "trans"): return 2
    return 0
class Chain:
    def __init__(self, gaps): self.gaps = gaps; self.k = 0; self.last = 0
    def put(self, group, g0, g1):
        tot = sum(i.cost() for i in group) or 1
        acc = 0
        for i in group:
            want = g0 + min(g1-g0-1, int(acc * (g1-g0) / tot))
            if want > self.k and not scc_reads(i): self.k = want; self.last = 0
            sec = section(i)
            if sec < self.last: self.k += 1
            self.gaps[self.k].sec[sec].append(i); self.last = sec
            acc += i.cost()
        return self.k
    def block(self, group, k):
        if k > self.k: self.k = k
        self.gaps[self.k].sec[2] += list(group); self.last = 2

def gap_cost(gp, base=8):
    c = base if gp.mfma is not None else 0
    ns = 0
    for i in gp.sec[0]:
        if i.cls == "barrier": c += 33
        else: ns += 1
    c += 4*max(0, ns - 1)
    for i in gp.sec[1]: c += mem_cost(i)
    for i in gp.sec[2]: c += (33 if i.cls == "barrier" else 16 if i.cls == "vmem" else 12 if i.cls == "branch" else i.cost())
    return c
def mem_cost(i):
    if i.cls == "lds": return 16 if "write" in i.op else 4
    if "store" in i.op: return 16
    return 4 if i.op.startswith("global") else 8
class Stream:
    stores = []
    def __init__(self, gaps, k=0, cap=32, base=8): self.gaps = gaps; self.k = k; self.last = 0; self.cap = cap; self.base = base
    def put(self, group, g0, dead, every=0, stsp=0, free=False):
        for i in group:
            sec = section(i); k = self.k
            if g0 > k: k = g0; self.last = 0
            if sec < self.last: k += 1
            if i.cls == "vmem":
                if every: k = max(k, getattr(self, "lastv", -99) + every)
                if stsp and "store" in i.op and Stream.stores: k = max(k, Stream.stores[-1] + stsp)
            d = dead(i) if callable(dead) else dead
            if sec < self.last and self.k >= d: sec = self.last
            k = max(min(k, d), self.k + (1 if sec < self.last else 0))
            while k < d:
                gp = self.gaps[k]; c0 = gap_cost(gp, self.base); gp.sec[sec].append(i); c = gap_cost(gp, self.base); gp.sec[sec].pop()
                if c <= self.cap and not (free and sec == 0 and c > c0): break
                k += 1
            if k != self.k: self.last = 0
            self.gaps[k].sec[sec].append(i); self.k = k; self.last = sec
            if i.cls == "vmem":
                self.lastv = k
                if "store" in i.op: Stream.stores.append(k)
        return self.k
    def block(self, group, k):
        if k > self.k: self.k = k
        self.gaps[self.k].sec[2] += list(group); self.last = 2
def report(name, gaps, lo, hi, cap=32, base=8):
    t = sum(max(cap, gap_cost(gaps[n], base)) for n in range(lo, hi)); u = sum(gap_cost(gaps[n], base) for n in range(lo, hi))
    print(f"model {name}: gaps {lo}..{hi} ideal {cap*(hi-lo)} predicted {t} issue {u}", file=sys.stderr)

def weave(main, fill, per):
    out = Seg(); fill = list(fill)
    for m in main:
        out.append(m); out += fill[:per]; fill = fill[per:]
    out += fill
    return out

def dma_stage(sig):
    if sig >= 25: return []
    p = 0 if sig < 10 else (1 if sig < 15 else 2)
    out = Seg()
    vd = (vDQ, vDH, vDG)[p]
    adv = (64*3840, 128*3072, 64*3072)[p]
    out.e(f"s_mov_b32 m0, s{sSL[sig % NSLOT]}")
    for src in range(2):
        for r in range(2):
            out.append(I(f"global_load_lds_dwordx4 v{vd+r}, {sp(pW+4*p+2*src)} offset:{src*2048+r*1024}", tag=("dma", sig, src, r)))
    if sig not in (9, 14, 24): out.e(f"v_add_u32 v{vd}, {adv}, v{vd}\nv_add_u32 v{vd+1}, {adv}, v{vd+1}")
    return mark_m0(out)
def dma_tag(sig): return ("dma", sig, 1, 1)

def dots(cb):
    out = Seg()
    for r in range(16):
        x = vX + 16*cb + r
        out.e(f"v_dot2_f32_bf16 v{vACC+(r%2)}, v{x}, s{sC11}, v{vACC+(r%2)}")
        out.e(f"v_dot2_f32_bf16 v{vACC+2+(r%2)}, v{x}, v{x}, v{vACC+2+(r%2)}")
    return out
def x_reads(cb):
    off = (XSLOT[cb] - 2)*16384; hi = off >= 65536
    return [I(f"ds_read_b128 {v(vX+16*cb+4*jj,4)}, v{vXR+jj+(4 if hi else 0)} offset:{off % 65536}", tag=("xr", cb, jj)) for jj in range(4)]
def mix(g, loads, fill):
    fill = list(fill); n = len(loads)
    for i, grp in enumerate(loads):
        g += grp[:-1]
        if grp[:-1] and grp[-2].wr == [("s","m0")] and fill and fill[0].cls in ("salu","valu") and not scc_live_before(fill, 0): g.append(fill.pop(0))
        k = len(fill) // (n - i)
        g.append(grp[-1])
        while 0 < k < len(fill) and scc_live_before(fill, k): k += 1
        if i + 1 < n and loads[i+1][:-1]:
            while k < len(fill) and scc_live_before(fill, k): k += 1
        g += fill[:k]; fill = fill[k:]
    g += fill
def groups(seg):
    out = []; cur = []
    for i in seg:
        cur.append(i)
        if i.cls == "vmem": out.append(cur); cur = []
    return out, cur

def prologue():
    g = Seg()
    g.e(f"""
    s_cmp_ge_u32 s2, 256
    s_cbranch_scc1 L_end
    s_load_dwordx16 s[64:79], s[0:1], 0
    s_load_dwordx4 s[80:83], s[0:1], 64
    s_getpc_b64 s[36:37]
    L_pc0:
    s_lshr_b32 s{sLOC}, s2, 3
    s_mov_b32 s38, L_codeend-L_pc0
    s_mov_b32 s39, 0x00020000
    s_lshl_b32 s{sT0}, s{sLOC}, 12
    v_lshlrev_b32 v64, 4, v0
    """)
    g.append(I(f"buffer_load_dwordx4 a[200:203], v64, {SJ}, s{sT0} offen", tag="code"))
    g.e(f"""
    v_and_b32 v{vLANE}, 63, v0
    v_lshrrev_b32 v0, 6, v0
    s_and_b32 s{sXCD}, s2, 7
    v_readfirstlane_b32 s{sWAVE}, v0
    s_and_b32 s{sT0}, s{sXCD}, 1
    s_lshl_b32 s{sT0}, s{sT0}, 3
    s_and_b32 s{sT1}, s{sLOC}, 7
    s_add_u32 s{sMB}, s{sT0}, s{sT1}
    v_lshrrev_b32 v64, 3, v{vLANE}
    v_and_b32 v65, 7, v{vLANE}
    v_xor_b32 v66, v64, v65
    v_lshlrev_b32 v66, 4, v66
    v_mul_u32_u24 v{vXLD}, 1280, v64
    v_add_u32 v{vXLD}, v{vXLD}, v66
    v_add_u32 v{vXLD+1}, {10240-1024}, v{vXLD}
    v_xor_b32 v67, 1, v64
    v_xor_b32 v66, 16, v66
    v_mul_u32_u24 v67, 1280, v67
    v_add_u32 v67, v67, v66
    v_add_u32 v{vXLD+2}, {20480-2048}, v67
    v_add_u32 v{vXLD+3}, {30720-3072}, v67
    s_lshl_b32 s{sWB}, s{sWAVE}, 12
    s_lshl_b32 s{sT0}, s{sMB}, 2
    s_add_u32 s{sT0}, s{sT0}, s{sWAVE}
    s_mul_i32 s{sT0}, s{sT0}, 40960
    """)
    if STAMPS: g.e(f"v_accvgpr_write_b32 a{aST[0]}, 0")
    g.append(W(lg=0))
    g.e(f"s_add_u32 s{pX}, s{sP}, s{sT0}\ns_addc_u32 s{pX+1}, s{sP+1}, 0")
    stamp(g, 0)
    PF = opt("pf", 11); PFM = opt("pfm", "")
    if PF & 1:
        XR = opt("xrep", 1)
        g.e(f"""
        s_lshr_b32 s{sT1}, s{sXCD}, {XR}
        s_lshl_b32 s{sT1}, s{sT1}, 5
        s_add_u32 s{sT1}, s{sT1}, s{sLOC}
        s_lshl_b32 s{sT1}, s{sT1}, 2
        s_add_u32 s{sT1}, s{sT1}, s{sWAVE}
        s_mul_i32 s{sT1}, s{sT1}, {2560*XR}
        s_and_b32 s98, s{sXCD}, 1
        s_mul_i32 s98, s98, 1310720
        s_add_u32 s{sT1}, s{sT1}, s98
        v_lshlrev_b32 v78, 4, v{vLANE}
        v_add_u32 v78, s{sT1}, v78
        """)
        if XR == 2: g.e("v_add_u32 v78, 1024, v78")
        for o_ in ((0, 1024, 1536) if XR == 1 else (-1024, 0, 1024, 2048, 3072)):
            g.append(I(f"global_load_dwordx4 a[204:207], v78, {sp(sP)} offset:{o_}{PFM}", tag="pf"))
    xl = []
    for cb in range(10):
        c8 = cb % 8
        for rg in range(4):
            pre = []
            if cb == 8 and rg == 0: pre += list(Seg().e(f"s_add_u32 s{pX}, s{pX}, 1024\ns_addc_u32 s{pX+1}, s{pX+1}, 0"))
            if rg == 0: pre.append(I(f"s_add_u32 m0, s{sWB}, {XSLOT[cb]*16384 - c8*128}"))
            ld = I(f"global_load_lds_dwordx4 v{vXLD+rg}, {sp(pX)} offset:{c8*128+rg*1024}", tag=("x", cb, rg))
            xl.append(pre + [ld])
    f = Seg()
    srd(f, SX, sP+0, 2621440)
    f.e("s_add_u32 s0, s36, L_p1c-L_pc0\ns_addc_u32 s1, s37, 0")
    for i in range(8): f.e(f"s_add_u32 s{sSL[i]}, s{sWB}, {L_RING + i*16384}")
    srd(f, SWS, sP+18, WS_SIZE); srd(f, SOUT, sP+14, 2621440); srd(f, SDBG, sP+16, 256)
    cq = f2u(QSCALE); t32 = 98; tb = 99
    f.e(f"""
    s_lshr_b32 s{sT0}, s{sXCD}, 1
    s_lshl_b32 s{sT0}, s{sT0}, 2
    s_lshr_b32 s{sT1}, s{sLOC}, 3
    s_add_u32 s{sJ}, s{sT0}, s{sT1}
    v_lshlrev_b32 v66, 4, v65
    v_lshlrev_b32 v67, 1, v64
    v_and_b32 v67, 4, v67
    v_xor_b32 v67, v65, v67
    v_lshlrev_b32 v67, 4, v67
    v_mul_u32_u24 v{vDQ}, 3840, v64
    v_add_u32 v{vDQ}, v{vDQ}, v67
    v_add_u32 v{vDQ+1}, {8*3840-1024}, v{vDQ}
    v_mul_u32_u24 v{vDG}, 3072, v64
    v_add_u32 v{vDG}, v{vDG}, v67
    v_add_u32 v{vDG+1}, {8*3072-1024}, v{vDG}
    v_lshrrev_b32 v67, 2, v{vLANE}
    v_mul_u32_u24 v67, 3072, v67
    v_and_b32 v68, 3, v{vLANE}
    {"v_mov_b32 v%d, v%d" % (vDH, vDG) if "--x_full" in sys.argv else "v_lshl_add_u32 v%d, v68, 4, v67" % vDH}
    v_add_u32 v{vDH+1}, {16*3072-1024}, v{vDH}
    s_mov_b32 s{sC10}, 0x00003F80
    s_mov_b32 s{sC01}, 0x3F800000
    s_mov_b32 s{sC11}, 0x3F803F80
    v_lshrrev_b32 v70, 5, v{vLANE}
    v_and_b32 v71, 31, v{vLANE}
    v_and_b32 v72, 7, v71
    v_lshrrev_b32 v73, 3, v71
    v_lshrrev_b32 v74, 1, v73
    v_xor_b32 v74, v72, v74
    v_lshlrev_b32 v74, 7, v74
    v_lshl_add_u32 v73, v73, 10, v74
    s_add_u32 s{sT0}, s{sWB}, 32768
    v_add_u32 v73, s{sT0}, v73
    """)
    for jj in range(4):
        f.e(f"""
        v_add_u32 v74, {2*jj}, v70
        v_xor_b32 v75, v72, v74
        v_lshl_add_u32 v{vXR+jj}, v75, 4, v73
        v_add_u32 v{vXR+4+jj}, 65536, v{vXR+jj}
        """)
    f.e(f"""
    v_mov_b32 v{vACC}, 0
    v_mov_b32 v{vACC+1}, 0
    v_mov_b32 v{vACC+2}, 0
    v_mov_b32 v{vACC+3}, 0
    v_and_b32 v74, 15, v{vLANE}
    v_lshrrev_b32 v75, 2, v74
    v_lshlrev_b32 v78, 6, v75
    v_lshl_add_u32 v78, v70, 9, v78
    v_lshlrev_b32 v75, 7, v75
    v_lshl_add_u32 v75, v70, 10, v75
    v_and_b32 v76, 3, v74
    v_lshlrev_b32 v76, 3, v76
    v_and_b32 v77, 16, v{vLANE}
    v_lshl_add_u32 v76, v77, 1, v76
    v_add_u32 v{vTH}, v78, v76
    v_add_u32 v{vTH+1}, 0x10000, v{vTH}
    v_and_b32 v77, 8, v74
    v_lshlrev_b32 v77, 3, v77
    v_xor_b32 v76, v76, v77
    v_add_u32 v{vTR}, v75, v76
    v_xor_b32 v{vTR+1}, 64, v{vTR}
    v_add_u32 v{vTR+2}, 0x10000, v{vTR}
    v_add_u32 v{vTR+3}, 0x10000, v{vTR+1}
    v_lshrrev_b32 v74, 4, v71
    v_mul_u32_u24 v74, 49152, v74
    v_and_b32 v75, 15, v71
    v_lshlrev_b32 v75, 4, v75
    v_lshl_add_u32 v75, v70, 8, v75
    v_add_u32 v{vH}, v74, v75
    s_lshl_b32 s{t32}, s{sMB}, 2
    s_add_u32 s{t32}, s{t32}, s{sWAVE}
    s_min_u32 s{sT0}, s{sJ}, 14
    s_lshl_b32 s{sT1}, s{sT0}, 8
    s_mul_i32 s{tb}, s{sWAVE}, {16*3840}
    s_add_u32 s{sT1}, s{sT1}, s{tb}
    s_add_u32 s{pW}, s{sP+2}, s{sT1}
    s_addc_u32 s{pW+1}, s{sP+3}, 0
    s_sub_u32 s{pW+2}, s{pW}, {2048-128}
    s_subb_u32 s{pW+3}, s{pW+1}, 0
    s_lshl_b32 s{sT1}, s{sT0}, 19
    s_cmp_lt_u32 s{sJ}, 10
    s_cselect_b32 s{tb}, 9, 8
    s_lshl_b32 s{tb}, s{t32}, s{tb}
    s_add_u32 s{sEB}, s{sT1}, s{tb}
    s_add_u32 s{sEB+1}, s{sEB}, {1<<18}
    s_cmp_lt_u32 s{sJ}, 5
    s_cselect_b32 s{sSC}, {cq}, 1.0
    s_and_b32 s{sT0}, s{sJ}, 3
    s_lshl_b32 s{sT0}, s{sT0}, 2
    s_lshr_b32 s{sT1}, s{sJ}, 2
    s_add_u32 s{sT1}, s{sT0}, s{sT1}
    {"s_mov_b32 s%d, s%d" % (sT1, sJ) if "--noperm" in sys.argv else ""}
    s_lshr_b32 s{sT0}, s{sT1}, 1
    s_mul_i32 s{sT0}, s{sT0}, 3
    s_and_b32 s{sT1}, s{sT1}, 1
    s_mul_i32 s{t32}, s{t32}, {96*1024}
    s_add_u32 s{t32}, s{t32}, {WS_H}
    s_add_u32 s{sTA}, s{sT0}, s{sT1}
    s_lshl_b32 s{sTB}, s{sTA}, 7
    s_mul_i32 s{tb}, s{sWAVE}, {16*3072}
    s_add_u32 s{sTB}, s{sTB}, s{tb}
    s_add_u32 s{pW+8}, s{sP+8}, s{sTB}
    s_addc_u32 s{pW+9}, s{sP+9}, 0
    s_add_u32 s{pW+10}, s{sP+10}, s{sTB}
    s_addc_u32 s{pW+11}, s{sP+11}, 0
    s_sub_u32 s{pW+10}, s{pW+10}, 2048
    s_subb_u32 s{pW+11}, s{pW+11}, 0
    s_lshl_b32 s{sTB}, s{sTA}, 11
    s_add_u32 s{sHB+1}, s{t32}, s{sTB}
    s_lshl_b32 s{sTA}, s{sT0}, 1
    s_add_u32 s{sTA}, s{sTA}, s{sT1}
    s_add_u32 s{sTA}, s{sTA}, 4
    s_lshl_b32 s{sTB}, s{sTA}, 6
    s_lshl_b32 s{tb}, s{tb}, 1
    s_add_u32 s{sTB}, s{sTB}, s{tb}
    s_add_u32 s{pW+4}, s{sP+8}, s{sTB}
    s_addc_u32 s{pW+5}, s{sP+9}, 0
    s_add_u32 s{pW+6}, s{sP+10}, s{sTB}
    s_addc_u32 s{pW+7}, s{sP+11}, 0
    s_sub_u32 s{pW+6}, s{pW+6}, 2048
    s_subb_u32 s{pW+7}, s{pW+7}, 0
    s_lshl_b32 s{sTB}, s{sTA}, 10
    s_add_u32 s{sHB}, s{t32}, s{sTB}
    v_lshrrev_b32 v74, 2, v71
    v_lshlrev_b32 v74, 14, v74
    v_and_b32 v75, 3, v71
    v_lshlrev_b32 v75, 4, v75
    v_lshl_add_u32 v75, v70, 6, v75
    v_add_u32 v74, v74, v75
    s_cmp_lt_u32 s{sJ}, 15
    s_cselect_b32 s{sT0}, 0, {OOB}
    v_add_u32 v74, s{sT0}, v74
    v_lshlrev_b32 v75, 4, v71
    v_lshl_add_u32 v75, v70, 15, v75
    s_cmp_lt_u32 s{sJ}, 10
    s_cselect_b64 s[100:101], -1, 0
    v_cndmask_b32 v{vEP}, v74, v75, s[100:101]
    """)
    f.e(f"""
    s_lshl_b32 s{sTA}, s2, 2
    s_add_u32 s{sTA}, s{sTA}, s{sWAVE}
    v_and_b32 v75, 3, v{vLANE}
    s_sub_u32 s{sT0}, s{sTA}, 720
    s_cmp_lt_u32 s{sT0}, 32
    s_cselect_b32 s{sT1}, 0, {OOB}
    s_and_b32 s{sT0}, s{sT0}, 31
    s_lshl_b32 s{sT0}, s{sT0}, 10
    s_add_u32 s{sT0}, s{sT0}, s{sT1}
    s_add_u32 s{sT0}, s{sT0}, {WS_C}
    v_lshlrev_b32 v{vCST}, 4, v{vLANE}
    v_add_u32 v{vCST}, s{sT0}, v{vCST}
    v_and_b32 v80, 3, v{vLANE}
    v_cmp_eq_u32 vcc, 0, v80
    v_mov_b32 v81, s{sC11}
    v_mov_b32 v79, 0
    v_cndmask_b32 v80, v79, v81, vcc
    v_mov_b32 v81, v80
    v_mov_b32 v82, v80
    v_mov_b32 v83, v80
    v_lshrrev_b32 v{vPA}, 2, v{vLANE}
    v_lshlrev_b32 v{vPA}, 8, v{vPA}
    v_lshl_add_u32 v{vPA}, v75, 4, v{vPA}
    v_add_u32 v{vPA}, {F_QKV}, v{vPA}
    s_lshr_b32 s{sT0}, s2, 4
    s_lshl_b32 s{sT0}, s{sT0}, 8
    s_and_b32 s{sT1}, s2, 15
    s_lshl_b32 s{sT1}, s{sT1}, 2
    s_add_u32 s{sT0}, s{sT0}, s{sT1}
    s_add_u32 s{sFLQ}, s{sT0}, {F_QKV}
    """)
    mix(g, xl[:4*LAG], f)
    g.e(f"""
    s_or_b32 s{sT0}, s2, s{sWAVE}
    s_cmp_lg_u32 s{sT0}, 0
    s_cbranch_scc1 L_non
    s_memrealtime s[6:7]
    """)
    g.append(W(lg=0))
    g.e(f"s_or_b32 s6, s6, 1\nv_mov_b32 v68, s6\nv_mov_b32 v69, 0")
    g.append(I(f"buffer_store_dword v68, v69, {SDBG}, 0 offen sc1", cond=True))
    g.e("L_non:")
    pf = Seg()
    if PF & 2:
        pf.e(f"""
        s_min_u32 s98, s{sTA}, 799
        s_mul_i32 s98, s98, 3072
        v_lshlrev_b32 v78, 4, v{vLANE}
        v_add_u32 v79, s98, v78
        """)
        for k_ in range(3): pf.append(I(f"global_load_dwordx4 a[204:207], v79, {sp(sP+2)} offset:{1024*k_}{PFM}", tag="pf"))
    if PF & 4:
        pf.e(f"""
        v_lshlrev_b32 v77, 21, v{vLANE}
        s_cmp_eq_u32 s{sWAVE}, 0
        s_cselect_b32 s98, 0x7ff, 0
        s_cselect_b32 s99, 3, 0
        s_mov_b32 exec_hi, 0
        s_mov_b32 exec_lo, s98
        """)
        pf.append(I(f"global_load_dword a211, v77, {sp(sP+18)}{PFM}", tag="pf"))
        pf.e("s_mov_b32 exec_lo, s99")
        pf.append(I(f"global_load_dword a212, v77, {sp(sP+14)}{PFM}", tag="pf"))
        pf.e("s_mov_b64 exec, -1")
    PFAT = opt("pfat", 6)
    stream = [xl[4*cb:4*cb+4] for cb in range(LAG, 10)]
    tails = []
    NW = opt("nw", 3)
    for sg in range(NW):
        gr, tl = groups(dma_stage(sg)); stream.append(gr); tails.append(tl)
    for b in range(11):
        if b == PFAT: g += pf
        item = Seg()
        if b < 10:
            item.append(W(vm=("x", b, 3)))
            if b == 0: stamp(item, 1)
            if "--xsx" in sys.argv: stamp(item, 18 + b)
            item += x_reads(b)
        if b >= 1:
            item.append(W(lg=("xr", b-1, 3)))
            item += dots(b-1)
        if b < len(stream):
            k = next(i for i, x in enumerate(item) if x.cls == "valu") if b >= 1 else len(item)
            g += item[:k]
            mix(g, stream[b], item[k:])
            if b >= 10 - LAG: g += tails[b - (10 - LAG)]
        else: g += item
        if b == 9: stamp(g, 2)
    assert len(stream) <= 11
    g.append(I(f"buffer_store_dwordx4 v[80:83], v{vCST}, {SWS}, 0 offen sc1", tag="cst"))
    inv = f2u(1.0/640.0)
    A0, A1, A2, A3 = vACC, vACC+1, vACC+2, vACC+3
    g.e(f"""
    s_mov_b32 s{sT0}, {inv}
    v_add_f32 v{A0}, v{A0}, v{A1}
    v_add_f32 v{A2}, v{A2}, v{A3}
    v_mov_b32 v{A1}, v{A0}
    v_mov_b32 v{A3}, v{A2}
    v_permlane32_swap_b32 v{A0}, v{A1}
    v_permlane32_swap_b32 v{A2}, v{A3}
    v_add_f32 v{A0}, v{A0}, v{A1}
    v_add_f32 v{A2}, v{A2}, v{A3}
    v_mul_f32 v{A0}, s{sT0}, v{A0}
    v_mul_f32 v{A2}, s{sT0}, v{A2}
    v_fma_f32 v{A2}, -v{A0}, v{A0}, v{A2}
    v_max_f32 v{A2}, 0, v{A2}
    v_cvt_pk_bf16_f32 v{A0}, v{A0}, v{A2}
    v_and_b32 v{A2}, 0xffff0000, v{A0}
    v_lshlrev_b32 v{A0}, 16, v{A0}
    v_sub_f32 v{vNM}, 0, v{A0}
    """)
    for ks in range(K0):
        if ks == max(K0 - 4, 0):
            g.append(W(vm=dma_tag(1))); g.e("s_barrier")
            for n in range(DIST): g += tr_reads(n)
        g += center_dot(ks)
    g.e(f"s_mov_b32 s{sC10}, 0xffff0000")
    stamp(g, 3)
    g.e(f"s_cmp_ge_u32 s{sJ}, 10")
    g.append(W(lg=("tr", 3, 1)))
    g.e("s_cbranch_scc1 L_clsV")
    return g, NW

def job_params():
    jp = Seg()
    jp.e(f"""
    s_lshl_b32 s{sTA}, s2, 2
    s_add_u32 s{sTA}, s{sTA}, s{sWAVE}
    s_mul_i32 s{sTB}, s{sTA}, 6554
    s_lshr_b32 s{sTB}, s{sTB}, 16
    s_mul_i32 s{sT0}, s{sTB}, 10
    s_sub_u32 s{sTC}, s{sTA}, s{sT0}
    s_cmp_lt_u32 s{sTB}, 48
    s_cselect_b32 s36, s{sP+12}, s{sP+4}
    s_cselect_b32 s37, s{sP+13}, s{sP+5}
    s_mov_b32 s38, {640*1280}
    s_cselect_b32 s38, {1536*1280}, s38
    s_mov_b32 s39, 0x00020000
    v_lshrrev_b32 v74, 2, v64
    v_and_b32 v75, 3, v64
    v_lshl_add_u32 v75, v74, 3, v75
    v_mul_u32_u24 v75, 1280, v75
    v_add_u32 v75, v75, v66
    v_lshlrev_b32 v74, 30, v74
    v_add_u32 v76, v75, v74
    s_cmp_lt_u32 s{sTA}, 720
    s_cselect_b32 s{sT0}, 0, {OOB}
    v_lshlrev_b32 v{vJST}, 4, v{vLANE}
    v_or_b32 v{vJST}, s{sT0}, v{vJST}
    v_or_b32 v75, s{sT0}, v75
    v_or_b32 v76, s{sT0}, v76
    """)
    for kg in range(4):
        jp.e(f"""
        s_lshl_b32 s{sT0}, s{sTB}, 2
        s_sub_u32 s{sT0}, s{sT0}, {192-kg}
        s_mul_i32 s{sT1}, s{sT0}, 171
        s_lshr_b32 s{sT1}, s{sT1}, 9
        s_mul_i32 s98, s{sT1}, 3
        s_sub_u32 s98, s{sT0}, s98
        s_mul_i32 s{sT1}, s{sT1}, 20
        s_lshl_b32 s99, s98, 2
        s_cmp_eq_u32 s98, 2
        s_cselect_b32 s99, 16, s99
        s_cselect_b64 s[100:101], -1, 0
        s_add_u32 s{sT1}, s{sT1}, s99
        s_lshl_b32 s{sT0}, s{sTB}, 5
        s_add_u32 s{sT0}, s{sT0}, {16*(kg//2)+4*(kg%2)}
        s_cmp_lt_u32 s{sTB}, 48
        s_cselect_b32 s{sT0}, s{sT0}, s{sT1}
        s_cselect_b64 s[100:101], 0, s[100:101]
        s_mul_i32 s{sT0}, s{sT0}, 1280
        s_lshl_b32 s{sT1}, s{sTC}, 7
        s_add_u32 s{sJS+kg}, s{sT0}, s{sT1}
        v_cndmask_b32 v{vJK+kg}, v75, v76, s[100:101]
        """)
    jp.e(f"""
    s_add_u32 s{sT0}, s{sWB}, {L_J}
    v_lshrrev_b32 v74, 4, v{vLANE}
    v_lshlrev_b32 v74, 10, v74
    v_and_b32 v75, 15, v{vLANE}
    v_lshrrev_b32 v76, 2, v75
    v_lshl_add_u32 v74, v76, 7, v74
    v_and_b32 v75, 3, v75
    v_lshl_add_u32 v74, v75, 3, v74
    v_add_u32 v{vJTR}, s{sT0}, v74
    """)
    return jp

def job_dma():
    jobdma = Seg()
    for kg in range(4):
        jobdma.e(f"s_add_u32 m0, s{sWB}, {L_J + kg*1024}")
        jobdma.append(I(f"buffer_load_dwordx4 v{vJK+kg}, {SJ}, s{sJS+kg} offen lds", tag=("job", kg)))
    return mark_m0(jobdma)
def job_par():
    jobdma = Seg()
    for tg in range(4):
        jobdma.e(f"""
        s_lshl_b32 s98, s{sTC}, 2
        s_add_u32 s98, s98, {tg}
        s_mul_i32 s99, s98, 52
        s_lshr_b32 s99, s99, 8
        s_mul_i32 s99, s99, 355
        s_add_u32 s98, s98, s99
        s_mul_i32 s99, s{sTB}, 5
        s_add_u32 s98, s98, s99
        s_lshl_b32 s98, s98, 10
        s_add_u32 s{sJO+tg}, s98, {WS_W}
        """)
    return jobdma

NTAIL = 4
def p1_order():
    o = []
    for ks in range(40): o += [(0, ks, u) for u in range(4)]
    for ks in range(40): o += [(1, ks, u) for u in range(2)]
    k1 = 40 - 4*NTAIL
    for ks in range(k1): o += [(2, ks, u) for u in range(4)]
    for ks in range(k1, 40): o += [(2, ks, 0), (2, ks, 2)]
    for ks in range(k1, 40): o += [(2, ks, 1), (2, ks, 3)]
    return o
ORDER = p1_order()
def stage_of(p, ks): return (ks//4, 10 + ks//8, 15 + ks//4)[p]
DIST = 8
def tr_reads(n):
    if n >= 400: return []
    p, ks, u = ORDER[n]
    slot = stage_of(p, ks) % NSLOT
    if p != 1: off = (ks % 4)*4096 + (u//2)*2048; reg = vTR + (u % 2); hi = 2; d = 512
    else: off = (ks % 8)//2*4096 + u*2048 + (ks % 2)*1024; reg = vTH; hi = 1; d = 256
    off += slot*16384
    if off >= 65536: off -= 65536; reg += hi
    f = aWF + 4*(n % NWF)
    return [I(f"ds_read_b64_tr_b16 {a(f,2)}, v{reg} offset:{off}", tag=("tr", n, 0)),
            I(f"ds_read_b64_tr_b16 {a(f+2,2)}, v{reg} offset:{off+d}", tag=("tr", n, 1))]
def p1_mfma(n, cls):
    p, ks, u = ORDER[n]
    acc = (aA, aB, aC)[p] + 16*u
    wf = a(aWF + 4*(n % NWF), 4); x = v(vX + 4*ks, 4)
    c = "0" if ks == 0 else a(acc, 16)
    if cls == 'V' and p == 0: return I(f"v_mfma_f32_32x32x16_bf16 {a(acc,16)}, {x}, {wf}, {c}")
    return I(f"v_mfma_f32_32x32x16_bf16 {a(acc,16)}, {wf}, {x}, {c}")

def center_dot(ks):
    out = Seg()
    for r in range(4):
        x = vX + 4*ks + r
        out.e(f"v_dot2_f32_bf16 v{vLN+2*r}, v{x}, s{sC10}, v{vNM}")
        out.e(f"v_dot2_f32_bf16 v{vLN+2*r+1}, v{x}, s{sC01}, v{vNM}")
    for r in range(4):
        out.e(f"v_cvt_pk_bf16_f32 v{vX+4*ks+r}, v{vLN+2*r}, v{vLN+2*r+1}")
    return out
def center5(ks):
    out = Seg()
    for r in range(4):
        x = vX + 4*ks + r
        out.e(f"v_lshlrev_b32 v{vLN+2*r}, 16, v{x}\nv_and_b32 v{vLN+2*r+1}, s{sC10}, v{x}")
        out.e(f"v_add_f32 v{vLN+2*r}, v{vNM}, v{vLN+2*r}\nv_add_f32 v{vLN+2*r+1}, v{vNM}, v{vLN+2*r+1}")
        out.e(f"v_cvt_pk_bf16_f32 v{vX+4*ks+r}, v{vLN+2*r}, v{vLN+2*r+1}")
    return out

tmpctr = [0]
def epi_qk(acc, t, sbase, vscale, tag):
    out = Seg()
    for pr in range(2):
        T = vTMP + 12*(tmpctr[0] % 2); tmpctr[0] += 1
        for e in range(8): out.e(f"v_accvgpr_read_b32 v{T+e}, a{acc+8*pr+e}")
        for e in range(8): out.e(f"v_mul_f32 v{T+e}, v{vscale}, v{T+e}")
        for e in (0, 2, 1, 3): out.e(f"v_cvt_pk_bf16_f32 v{T+8+e}, v{T+2*e}, v{T+2*e+1}")
        out.e(f"s_add_u32 s{sT0+pr}, s{sbase}, {(4*t+2*pr)*32768}")
        out.e(f"v_permlane32_swap_b32 v{T+8}, v{T+10}\nv_permlane32_swap_b32 v{T+9}, v{T+11}")
        out.append(I(f"buffer_store_dwordx4 {v(T+8,4)}, v{vEP}, {SWS}, s{sT0+pr} offen sc1", tag=tag))
    return out
def epi_v(acc, t, sbase, voff, tag):
    out = Seg()
    out.e(f"s_add_u32 s{sT0+t}, s{sbase}, {8*t*16384}")
    for m in range(2):
        T = vTMP + 12*(tmpctr[0] % 2); tmpctr[0] += 1
        for e in range(8): out.e(f"v_accvgpr_read_b32 v{T+e}, a{acc+8*m+e}")
        for e in range(8): out.e(f"v_mul_f32 v{T+e}, v{vR16+8*m+e}, v{T+e}")
        for e in range(4): out.e(f"v_cvt_pk_bf16_f32 v{T+8+e}, v{T+2*e}, v{T+2*e+1}")
        out.append(I(f"buffer_store_dwordx4 {v(T+8,4)}, v{voff}, {SWS}, s{sT0+t} offen offset:{128*m} sc1", tag=tag))
    return out
def epi_g(acc, t, shb, tag, ud=32):
    out = Seg()
    ag = acc + 16*t; au = acc + ud + 16*t
    for pp in range(2):
        P = vTMP + 24 + 4*(pp)
        for c4 in range(2):
            T = vTMP + 8*(tmpctr[0] % 3); tmpctr[0] += 1
            r0 = 8*pp + 4*c4
            for e in range(4): out.e(f"v_accvgpr_read_b32 v{T+e}, a{ag+r0+e}")
            for e in range(4): out.e(f"v_mul_f32 v{T+e}, v{vSG}, v{T+e}")
            for e in range(4): out.e(f"v_exp_f32 v{T+e}, v{T+e}")
            for e in range(4): out.e(f"v_accvgpr_read_b32 v{T+4+e}, a{au+r0+e}")
            for e in range(4): out.e(f"v_fma_f32 v{T+e}, v{T+e}, v{vS}, v{vS}")
            for e in range(4): out.e(f"v_rcp_f32 v{T+e}, v{T+e}")
            for e in range(4): out.e(f"v_mul_f32 v{T+4+e}, v{T+e}, v{T+4+e}")
            out.e(f"v_cvt_pk_bf16_f32 v{P+2*c4}, v{T+4}, v{T+5}\nv_cvt_pk_bf16_f32 v{P+2*c4+1}, v{T+6}, v{T+7}")
        out.append(I(f"buffer_store_dwordx4 {v(P,4)}, v{vH}, {SWS}, s{shb} offen offset:{t*1024+pp*512} sc1", tag=tag))
    return out

def job_process():
    out = Seg()
    out.append(W(vm=("job", 3)))
    for tg in range(4):
        T = vTMP + 4*tg
        out.append(I(f"ds_read_b64_tr_b16 {v(T,2)}, v{vJTR} offset:{tg*32}", tag=("jtr", tg, 0)))
        out.append(I(f"ds_read_b64_tr_b16 {v(T+2,2)}, v{vJTR} offset:{tg*32+512}", tag=("jtr", tg, 1)))
    out2 = Seg()
    out2.append(W(lg=("jtr", 3, 1)))
    for tg in range(4):
        out2.append(I(f"buffer_store_dwordx4 {v(vTMP+4*tg,4)}, v{vJST}, {SWS}, s{sJO+tg} offen sc1", tag="h1"))
    return out, out2

def spin(seg, name, addr, dst, width, srd_, cmp_lines):
    seg.e(f"s_mov_b32 s{sSPIN}, 0x40000")
    seg.e(f"L_sp{name}:")
    seg.e(cmp_lines)
    seg.e(f"s_cbranch_vccz L_ok{name}")
    seg.e(f"s_sub_u32 s{sSPIN}, s{sSPIN}, 1\ns_cbranch_scc1 L_ok{name}\ns_sleep 1")
    op = {1:"buffer_load_dword",4:"buffer_load_dwordx4"}[width]
    seg.append(I(f"{op} {v(dst,width)}, v{addr}, {srd_}, 0 offen sc1", cond=True))
    seg.e("s_waitcnt vmcnt(0)")
    seg.e(f"s_branch L_sp{name}")
    seg.e(f"L_ok{name}:")
def all4(d, non):
    return f"v_xor_b32 v{d}, {non}, v{d}\nv_xor_b32 v{d+1}, {non}, v{d+1}\nv_xor_b32 v{d+2}, {non}, v{d+2}\nv_xor_b32 v{d+3}, {non}, v{d+3}\nv_or3_b32 v{d}, v{d}, v{d+1}, v{d+2}\nv_or_b32 v{d}, v{d}, v{d+3}\nv_cmp_ne_u32 vcc, 0, v{d}"
def publish(seg, name, soff_reg, t):
    seg.e(f"s_cmp_lg_u32 s{sWAVE}, 0\ns_cbranch_scc1 L_fl{name}")
    seg.e(f"s_mov_b64 exec, 1\nv_mov_b32 v{t}, s{sNON}\nv_mov_b32 v{t+1}, 0")
    seg.append(I(f"buffer_store_dword v{t}, v{t+1}, {SWS}, s{soff_reg} offen sc1", cond=True))
    seg.e(f"s_mov_b64 exec, -1\nL_fl{name}:")

def wsbase(g, p, soff):
    g.e(f"s_add_u32 s{p}, s24, s{soff}\ns_addc_u32 s{p+1}, s25, 0")

def attn_addr_setup():
    g = Seg()
    T = vLN
    g.e(f"""
    s_lshl_b32 s{sHD}, s{sXCD}, 2
    s_lshr_b32 s{sTA}, s{sLOC}, 3
    s_add_u32 s{sHD}, s{sHD}, s{sTA}
    s_and_b32 s{sQB}, s{sLOC}, 7
    s_and_b32 s{sKH}, s{sWAVE}, 1
    s_lshr_b32 s{sTA}, s{sHD}, 1
    s_mul_i32 s{sTA}, s{sTA}, 5
    s_and_b32 s{sTB}, s{sHD}, 1
    s_mul_i32 s{sTC}, s{sTB}, 3
    s_add_u32 s{sTC}, s{sTC}, s{sTA}
    s_lshl_b32 s{sTC}, s{sTC}, 15
    s_add_u32 s{sTA}, s{sTA}, 2
    s_lshl_b32 s{sTA}, s{sTA}, 15
    s_lshl_b32 s{sTB}, s{sTB}, 3
    s_add_u32 s{sTB}, s{sTB}, s{sTA}
    s_mul_i32 s{sTA}, s{sHD}, {5*16384}
    v_lshrrev_b32 v{T}, 5, v{vLANE}
    v_and_b32 v{T+1}, 31, v{vLANE}
    v_lshlrev_b32 v{T+2}, 4, v{T+1}
    v_lshl_add_u32 v{vK1}, v{T}, 15, v{T+2}
    v_add_u32 v{vK1}, s{sTC}, v{vK1}
    v_add_u32 v{T+2}, s{sTB}, v{T+2}
    v_cmp_eq_u32 vcc, 0, v{T}
    v_mov_b32 v{T+3}, {WS_C-WS_K}
    v_mov_b32 v{vQ2}, {WS_C-WS_Q+16}
    v_cndmask_b32 v{vK2}, v{T+3}, v{T+2}, vcc
    v_cndmask_b32 v{vQ2}, v{vQ2}, v{T+2}, vcc
    v_lshrrev_b32 v{T+2}, 2, v{T+1}
    v_lshlrev_b32 v{T+2}, 14, v{T+2}
    v_add_u32 v{T+2}, s{sTA}, v{T+2}
    v_and_b32 v{T+3}, 3, v{T+1}
    v_lshlrev_b32 v{T+3}, 4, v{T+3}
    v_lshl_add_u32 v{T+3}, v{T}, 6, v{T+3}
    v_add_u32 v{T+2}, v{T+2}, v{T+3}
    v_mov_b32 v{T+3}, {WS_C-WS_V+16}
    v_cmp_gt_u32 vcc, 20, v{T+1}
    s_lshl_b32 s{sTA}, s{sKH}, 14
    s_add_u32 s{sTB}, s{sTA}, {WS_K+4096}
    s_lshr_b32 s{sTA}, s{sTA}, 1
    v_cndmask_b32 v{T+2}, v{T+3}, v{T+2}, vcc
    v_mov_b32 v{T+3}, {WS_C-WS_V}
    v_cmp_eq_u32 vcc, 20, v{T+1}
    """)
    wsbase(g, pK, sTB)
    g.e(f"""
    v_cndmask_b32 v{vVL}, v{T+2}, v{T+3}, vcc
    s_add_u32 s{sTB}, s{sTA}, {WS_V+4096}
    """)
    wsbase(g, pV, sTB)
    g.e(f"""
    s_lshl_b32 s{sTA}, s{sQB}, 1
    s_lshr_b32 s{sTB}, s{sWAVE}, 1
    s_add_u32 s{sTA}, s{sTA}, s{sTB}
    s_lshl_b32 s{sTA}, s{sTA}, 11
    s_lshl_b32 s{sTB}, s{sKH}, 10
    s_add_u32 s{sTC}, s{sTA}, s{sTB}
    """)
    wsbase(g, pQ, sTC)
    g.e(f"""
    s_xor_b32 s{sQHI}, s{sTC}, 1024
    s_mul_i32 s{sTB}, s{sHD}, {3*32768}
    s_add_u32 s{sOST}, s{sTC}, s{sTB}
    s_add_u32 s{sOST}, s{sOST}, {WS_O}
    """)
    wsbase(g, pTW, sQHI)
    g2 = Seg()
    g2.e(f"""
    s_lshr_b32 s{sTA}, s{sXCD}, 1
    s_lshl_b32 s{sTA}, s{sTA}, 3
    s_add_u32 s{sRB}, s{sTA}, s{sQB}
    s_and_b32 s{sTA}, s{sXCD}, 1
    s_lshl_b32 s{sTA}, s{sTA}, 2
    s_lshr_b32 s{sTB}, s{sLOC}, 3
    s_add_u32 s{sCB}, s{sTA}, s{sTB}
    v_lshlrev_b32 v{T+2}, 4, v{T+1}
    v_lshl_add_u32 v{vOSA}, v{T}, 15, v{T+2}
    v_lshl_add_u32 v{vOSC}, v{T}, 3, v{T+2}
    v_add_u32 v{vOSC}, 65536, v{vOSC}
    v_lshlrev_b32 v{vLIN}, 4, v{vLANE}
    v_add_u32 v{vH3}, 49152, v{vLIN}
    v_add_u32 v{vH3+1}, 98304, v{vLIN}
    v_add_u32 v{vH3+2}, 147456, v{vLIN}
    v_lshrrev_b32 v{T+2}, 4, v{vLANE}
    v_and_b32 v{T+3}, 15, v{vLANE}
    v_lshlrev_b32 v{T+3}, 4, v{T+3}
    v_lshl_add_u32 v{vO3}, v{T+2}, 15, v{T+3}
    s_mul_i32 s{sLW}, s{sWAVE}, {LW}
    v_add_u32 v{vRW}, s{sLW}, v{vLIN}
    s_xor_b32 s{sTB}, s{sWAVE}, 1
    s_mul_i32 s{sTA}, s{sTB}, {LW}
    v_add_u32 v{vRR}, s{sTA}, v{vLIN}
    v_add_u32 v{vFH}, {F_H-F_QKV}, v{vPA}
    s_lshr_b32 s{sTA}, s{sRB}, 2
    s_lshl_b32 s{sTA}, s{sTA}, 10
    s_add_u32 s{sTA}, s{sTA}, {F_O}
    v_lshrrev_b32 v{T+2}, 3, v{T+1}
    v_and_b32 v{T+3}, 7, v{T+1}
    v_lshlrev_b32 v{T+3}, 2, v{T+3}
    v_lshl_add_u32 v{T+3}, v{T+2}, 8, v{T+3}
    v_add_u32 v{vFO}, s{sTA}, v{T+3}
    s_mul_i32 s{sTA}, s{sCB}, {72*5*1024}
    s_mul_i32 s{sTB}, s{sWAVE}, {12*5*1024}
    s_add_u32 s{sWP}, s{sTA}, s{sTB}
    s_add_u32 s{sWP}, s{sWP}, {WS_W}
    s_mul_i32 s{sTB}, s{sWAVE}, {6*5*1024}
    s_add_u32 s{sWP2}, s{sTA}, s{sTB}
    s_add_u32 s{sWP2}, s{sWP2}, {WS_W + 48*5*1024}
    s_mul_i32 s{sTA}, s{sRB}, {4*48*1024}
    s_mul_i32 s{sTB}, s{sWAVE}, {12*1024}
    s_add_u32 s{sHP}, s{sTA}, s{sTB}
    s_add_u32 s{sHP}, s{sHP}, {WS_H}
    s_lshl_b32 s{sTA}, s{sRB}, 10
    s_mul_i32 s{sTB}, s{sWAVE}, {24*32768}
    s_add_u32 s{sOP}, s{sTA}, s{sTB}
    s_add_u32 s{sOP}, s{sOP}, {WS_O}
    s_mov_b32 s{sSAFE}, 0
    s_add_u32 s{sFL}, s{sFLQ}, {F_H-F_QKV}
    s_lshl_b32 s{sTA}, s{sQB}, 10
    s_lshr_b32 s{sTB}, s{sHD}, 3
    s_lshl_b32 s{sTB}, s{sTB}, 8
    s_add_u32 s{sTA}, s{sTA}, s{sTB}
    s_and_b32 s{sTB}, s{sHD}, 7
    s_lshl_b32 s{sTB}, s{sTB}, 2
    s_add_u32 s{sTA}, s{sTA}, s{sTB}
    s_add_u32 s{sFO}, s{sTA}, {F_O}
    """)
    return g, g2

def kv_set(t): return aKV + 14*(t % 4)
def k_loads(t):
    b = kv_set(t); off = (t % 16)*512 - 4096
    pre = list(Seg().e(f"s_add_u32 s{pK}, s{pK}, 8192\ns_addc_u32 s{pK+1}, s{pK+1}, 0")) if t == 16 else []
    return [pre + [I(f"global_load_dwordx4 {a(b,4)}, v{vK1}, {sp(pK)} offset:{off} sc1", tag=("k",t,1))],
            [I(f"global_load_dwordx2 {a(b+4,2)}, v{vK2}, {sp(pK)} offset:{off} sc1", tag=("k",t,2))]]
def flat(l): return [x for y in l for x in y]
def v_loads(t):
    b = kv_set(t) + 6; off = t*256 - 4096
    return [I(f"global_load_dwordx4 {a(b,4)}, v{vVL}, {sp(pV)} offset:{off} sc1", tag=("v",t,0)),
            I(f"global_load_dwordx4 {a(b+4,4)}, v{vVL}, {sp(pV)} offset:{off+128} sc1", tag=("v",t,1))]
def q_loads():
    out = []
    for u in range(4):
        b = aQ + 6*u; p = pQ if u < 2 else pTW; off = (u % 2)*512
        out.append(I(f"global_load_dwordx4 {a(b,4)}, v{vK1}, {sp(p)} offset:{off} sc1", tag=("q",u,1)))
        out.append(I(f"global_load_dwordx2 {a(b+4,2)}, v{vQ2}, {sp(p)} offset:{off} sc1", tag=("q",u,2)))
    return out

SPLIT = opt("split", 296)
def stage_barriers():
    seen = {0}; bg = {}
    for n in range(400):
        if n + DIST < 400:
            k = stage_of(*ORDER[n+DIST][:2]) // 2
            if k not in seen: seen.add(k); bg[k] = n
    return bg
BG = stage_barriers()
def base_gaps(cls, lo, hi, nw):
    gaps = [Gap(p1_mfma(n, cls)) if lo <= n < hi else None for n in range(400)]
    inv = {n: k for k, n in BG.items()}
    for n in range(lo, hi):
        if n in inv: gaps[n].sec[0] += [W(vm=[dma_tag(min(2*inv[n]+1, 24))]), I("s_barrier")]
        if n % 4 == 3 and n + 1 < 400: gaps[n].sec[0].append(W(lg=("tr", min(n+4, 399), 1)))
        gaps[n].sec[1] += tr_reads(n + DIST)
    dm = Stream(gaps, lo)
    EV = opt("dmaev", 3); EVH = opt("dmaevh", 4); LAND = opt("land", 22)
    for sg in range(nw if lo == 0 else 0, 25):
        k = sg // 2
        g0 = BG[k-2] + 1 if k >= 3 else 0
        if not (lo <= g0 < hi): continue
        dm.put(dma_stage(sg), g0, min(BG[k] - LAND, hi - 2), every=(EVH if 10 <= sg < 15 else EV))
        if sg == opt("jobsg", 17): dm.put(job_dma(), 0, hi - 2, every=EV); JD[0] = dm.k
    assert dm.k < hi
    return gaps
JD = [0]

def ren(i): return i
def phase1a(cls, nw):
    g = Seg()
    if cls == 'V': g.e("L_clsV:")
    gaps = base_gaps(cls, 0, SPLIT, nw)
    A2 = vACC + 2
    post = Seg()
    post.e(f"""
    v_add_f32 v{A2}, {f2u(1e-5)}, v{A2}
    v_cvt_pk_bf16_f32 v{A2}, v{A2}, v{A2}
    v_lshlrev_b32 v{A2}, 16, v{A2}
    v_sqrt_f32 v{A2}, v{A2}
    v_mov_b32 v{vZERO}, 0
    v_cvt_pk_bf16_f32 v{A2}, v{A2}, v{A2}
    v_lshlrev_b32 v{vS}, 16, v{A2}
    v_rcp_f32 v{vR}, v{vS}
    v_mul_f32 v{vSG}, {f2u(-LOG2E)}, v{vR}
    """)
    if cls != 'V':
        post.e(f"v_mul_f32 v{vSCL}, s{sSC}, v{vR}")
    else:
        post.e(f"""
        v_mov_b32 v{vSCL+2}, {L_X}
        v_add_u32 v{vSCL+2}, s{sWB}, v{vSCL+2}
        v_and_b32 v{vSCL}, 31, v{vLANE}
        v_lshl_add_u32 v{vSCL}, v{vSCL}, 2, v{vSCL+2}
        v_lshrrev_b32 v{vSCL+1}, 5, v{vLANE}
        v_lshl_add_u32 v{vSCL+1}, v{vSCL+1}, 4, v{vSCL+2}
        ds_write_b32 v{vSCL}, v{vR}
        """)
        for k in range(4):
            post.append(I(f"ds_read_b128 {v(vR16+4*k,4)}, v{vSCL+1} offset:{32*k}", tag=("r16", k)))
    post.append(I(f"buffer_load_dword v{vNON}, v{vZERO}, {SDBG}, 0 offen sc1", tag="non"))
    Stream.stores.clear()
    if opt("pf", 11) & 8:
        p2 = Seg()
        p2.e(f"""
        s_min_u32 s58, s{sTA}, 959
        s_lshl_b32 s58, s58, 11
        v_lshlrev_b32 v78, 4, v{vLANE}
        v_add_u32 v79, s58, v78
        """)
        for p_ in (sP+8, sP+10):
            for k_ in range(2): p2.append(I(f"global_load_dwordx4 a[204:207], v79, {sp(p_)} offset:{1024*k_}", tag="pf"))
        Stream(gaps).put(p2, opt("pf2at", 1), 60, every=3)
    jb = Stream(gaps)
    jb.put(job_params(), 0, 150, free=True)
    assert jb.k < JD[0] - 12
    jb.put(job_par(), 0, SPLIT - 2, free=True)
    ch = Stream(gaps)
    for ks in range(K0, 40): ch.put(center5(ks), 0, 4*ks - 2)
    ch.put(post, 0, 161)
    e0 = Seg()
    if cls == 'V':
        e0.append(W(lg=("r16", 3)))
        for u in range(4): e0 += epi_v(aA+16*u, u % 2, sEB + u//2, vEP, "qkv")
    else:
        for u in range(4): e0 += epi_qk(aA+16*u, u % 2, sEB + u//2, vSCL, "qkv")
    bg = opt("pub", 248)
    if bg in BG.values(): gaps[bg].sec[0][0].wvm += ["qkv", "non", "cst"]
    else: gaps[bg].sec[0][:0] = [W(vm=["qkv", "non", "cst"]), I("s_barrier")]
    pb = Seg()
    spin(pb, "N" + cls, vZERO, vNON, 1, SDBG, f"v_cmp_eq_u32 vcc, 0, v{vNON}")
    pb.e(f"v_readfirstlane_b32 s{sNON}, v{vNON}")
    publish(pb, "Q" + cls, sFLQ, vLN+2)
    Stream(gaps, bg).block(pb, bg)
    if "--x_plain" in sys.argv:
        e0 = [I(i.text.replace(" sc1", ""), tag=i.tag) if i.cls == "vmem" else i for i in e0]
    if "--x_lin" in sys.argv:
        n_ = [0]
        def lin(i):
            n_[0] += 1
            return I(f"buffer_store_dwordx4 {i.text.split()[1]} v{vCST}, {SWS}, s58 offen offset:{(n_[0]-1)%4*1024} sc1", tag=i.tag)
        e0 = list(Seg().e(f"s_lshl_b32 s58, s2, 2\ns_add_u32 s58, s58, s{sWAVE}\ns_lshl_b32 s58, s58, 12\nv_lshlrev_b32 v{vCST}, 4, v{vLANE}")) + [lin(i) if i.cls == "vmem" else i for i in e0]
    pieces, cur = [], []
    for i in e0:
        cur.append(i)
        if i.cls == "vmem": pieces.append(cur); cur = []
    e1 = epi_g(aB, 0, sHB, "h1", ud=16)
    STSP = opt("stsp", 5); E0END = bg - opt("stlat", 16)
    q1 = list(e1)
    for n, pc in enumerate(pieces):
        at = 161 + n * STSP
        if at > 241:
            while q1 and ch.k < at - 1:
                m = next((x for x in range(len(q1)) if q1[x].op == "v_cvt_pk_bf16_f32"), len(q1) - 2) + 2
                if m < len(q1) and q1[m].cls == "vmem": m += 1
                ch.put([ren(i) for i in q1[:m]], 241, SPLIT - 2); q1 = q1[m:]
        ch.put(pc, at, E0END)
    assert ch.k <= E0END + 1
    ch.put([ren(i) for i in q1], 241, SPLIT - 2)
    print("job ends", jb.k, "epilogue ends", ch.k, file=sys.stderr)
    report("pass0 " + cls, gaps, 0, 160); report("pass1 " + cls, gaps, 160, 240); report("pass2a " + cls, gaps, 240, SPLIT)
    for n in range(SPLIT):
        if n in XS: stamp(g, 18 + XS.index(n))
        if n == 160: stamp(g, 4)
        if n == 240: stamp(g, 5)
        g += gaps[n].flat()
    if cls != 'V': g.e("s_branch L_p1c")
    return g

def phase1c():
    g = Seg()
    g.e("L_p1c:")
    gaps = base_gaps('Q', SPLIT, 400, 0)
    Stream.stores.clear()
    ch = Stream(gaps, SPLIT)
    POLL = opt("poll", 332); CHK = opt("chk", 350)
    Stream(gaps, POLL).put([I(f"buffer_load_dwordx4 {v(44,4)}, v{vPA}, {SWS}, 0 offen sc1", tag="pollq")], POLL, POLL+1)
    ck = Seg(); ck.append(W(vm="pollq"))
    spin(ck, "Q", vPA, 44, 4, SWS, all4(44, f"s{sNON}"))
    stamp(ck, 7)
    Stream(gaps, CHK).block(ck, CHK)
    first = flat(k_loads(0)) + q_loads() + v_loads(0) + flat(k_loads(1)) + v_loads(1) + flat(k_loads(2)) + v_loads(2)
    Stream(gaps, CHK + 1).put(first, CHK + 1, 399, every=opt("ldev", 2))
    if opt("cpf", 1):
        cp = Seg()
        cp.e(f"""
        s_lshl_b32 s98, s{sLOC}, 2
        s_add_u32 s98, s98, s{sWAVE}
        s_lshl_b32 s98, s98, 10
        s_min_u32 s98, s98, L_codeend-L_p1c-1024
        v_lshlrev_b32 v{vLN}, 4, v{vLANE}
        v_add_u32 v{vLN}, s98, v{vLN}
        """)
        cp.append(I(f"global_load_dwordx4 a[248:251], v{vLN}, s[0:1]", tag="pf"))
        ch.put(cp, 0, CHK - 1)
    as1, as2 = attn_addr_setup()
    j1, j2 = job_process()
    ch.put(j1, 0, CHK - 1); k = ch.k
    ch.put(as1, 0, CHK - 1); ch.put(j2, k + 4, CHK - 1, stsp=opt("jstsp", 4))
    ch.put(as2, 0, CHK - 1)
    print("set-up ends", ch.k, file=sys.stderr)
    ch.put(epi_g(aC, 0, sHB+1, "h1"), 400 - 8*NTAIL + 1, 399)
    report("pass2", gaps, SPLIT, 400)
    for n in range(SPLIT, 400):
        if n in XS: stamp(g, 18 + XS.index(n))
        g += gaps[n].flat()
    stamp(g, 6)
    if STAMPS: g.e(f"v_accvgpr_mov_b32 a{aSTAMP}, a{aST[0]}"); aST[0] = aSTAMP
    return g

def s_mfma(n):
    t, u = n // 4, n % 4
    S = v(16*(n % 2), 16); k = kv_set(t); q = aQ + 6*u
    return (I(f"v_mfma_f32_32x32x16_bf16 {S}, {a(k,4)}, {a(q,4)}, 0"),
            I(f"v_mfma_f32_32x32x8_bf16 {S}, {a(k+4,2)}, {a(q+4,2)}, {S}"))
def pv_mfma(n):
    t, u = n // 4, n % 4
    O = a(aO + 16*u, 16); vv = kv_set(t) + 6; P = 32 + 8*(n % 2)
    return (I(f"v_mfma_f32_32x32x16_bf16 {O}, {a(vv,4)}, {v(P,4)}, {'0' if t == 0 else O}"),
            I(f"v_mfma_f32_32x32x16_bf16 {O}, {a(vv+4,4)}, {v(P+4,4)}, {O}"))
def softmax_valu(n):
    S = 16*(n % 2); P = 32 + 8*(n % 2)
    E = lambda i: I(f"v_exp_f32 v{S+i}, v{S+i}")
    C = lambda k: I(f"v_cvt_pk_bf16_f32 v{P+k}, v{S+2*k}, v{S+2*k+1}")
    return [E(0),E(1),E(2),C(0),E(3),E(4), C(1),E(5),E(6),C(2),E(7),E(8), C(3),E(9),E(10),C(4),E(11),E(12), C(5),E(13),E(14),E(15),C(6),C(7)]

def p3_frags():
    fr = []
    for ks in range(12):
        fr += [("w", ks, t) for t in range(5)] + [("h", ks, u) for u in range(4)]
    for ks in range(12, 18):
        fr += [("w", ks, t) for t in range(5)] + [("o", ks, u) for u in range(4)]
    return fr
FR = p3_frags()
PRE_SLOTS = [a(88+4*i,4) for i in range(27 if STAMPS else 28)] + [v(64+4*i,4) for i in range(48)]
KV_SLOTS = [a(aKV+4*i,4) for i in range(14)]
LDS_FR = [f for f in FR if f[0] == "w"][-NLPF:]
class Loader:
    def __init__(self): self.cur = {pTW: None, pTH: None}
    def base(self, p, sreg, hi):
        if self.cur[p] == (sreg, hi): return []
        self.cur[p] = (sreg, hi)
        o = Seg(); o.e(f"s_add_u32 s{p}, s{sreg}, {hi+4096}\ns_add_u32 s{p}, s24, s{p}\ns_addc_u32 s{p+1}, s25, 0"); return list(o)
    def addr(self, f):
        kind, ks, x = f
        if kind == "w":
            off = (ks*5 + x)*1024 if ks < 12 else ((ks-12)*5 + x)*1024
            return pTW, (sWP if ks < 12 else sWP2), off // 8192 * 8192, off % 8192 - 4096, vLIN
        if kind == "h":
            off = ks*1024
            return pTH, sHP, off // 8192 * 8192, off % 8192 - 4096, (vLIN if x == 0 else vH3 + x - 1)
        return pTH, sOP, (ks-12)*4*32768, x*256 - 4096, vO3
    def emit(self, f, reg):
        p, sreg, hi, lo, vr = self.addr(f)
        return self.base(p, sreg, hi) + [I(f"global_load_dwordx4 {reg}, v{vr}, {sp(p)} offset:{lo} sc1", tag=f)]
    def emit_lds(self, f, idx):
        kind, ks, x = f
        off = (ks*5 + x)*1024 if ks < 12 else ((ks-12)*5 + x)*1024
        sreg = sWP if ks < 12 else sWP2
        hi, lo = off // 4096 * 4096, off % 4096
        out = self.base(pTW, sreg, hi - 4096)
        m0 = L_PF + idx*1024 - lo
        if self.cur.get("m0") != m0:
            self.cur["m0"] = m0; out.append(I(f"s_add_u32 m0, s{sLW}, {m0}"))
        return out + [I(f"global_load_lds_dwordx4 v{vLIN}, {sp(pTW)} offset:{lo} sc1", tag=("L",)+f)]
vFT = 64

def attention(regmap, loader):
    g = Seg()
    g += epi_g(aC, 1, sHB+1, "h1")
    stamp(g, 8)
    g.e("L_att1:")
    g.append(W(vm=[("q",3,2), ("k",0,2)]))
    m = s_mfma(0); g.append(m[0]); g.append(m[1])
    free = [[] for _ in range(128*4)]
    for t in range(32):
        if t + 3 < 32:
            kl = k_loads(t+3); vl = v_loads(t+3)
            if len(kl[0]) > 1: free[16*t - 2].append(kl[0][0]); free[16*t - 1].append(kl[0][1])
            for i in range(2): free[16*t + i].append(kl[i][-1])
            for i in range(2): free[16*t + 4 + i].append(vl[i])
        if t + 1 < 32: free[16*t + 11].append(W(vm=[("k",t+1,2), ("v",t+1,1)]))
    free[3].append(W(vm=("v",0,1)))
    pub = Seg(); pub.append(W(vm="h1")); pub.e("s_barrier")
    publish(pub, "H", sFL, vFT)
    free[16*1 + 7] += pub
    HP = opt("hpoll", 7)
    free[16*HP + 7].append(I(f"buffer_load_dwordx4 {v(vFT+4,4)}, v{vFH}, {SWS}, 0 offen sc1", tag="pollh"))
    chk = Seg(); chk.append(W(vm="pollh"))
    spin(chk, "H", vFH, vFT+4, 4, SWS, all4(vFT+4, f"s{sNON}"))
    free[16*(HP+2) + 7] += chk
    pos = []
    for t in range(HP+3, 32):
        pos += [16*t + i for i in (2,3,6,7,8,9,10,12,13,14,15) if not (t == 12 and i >= 13)]
    q = []
    for i, f in enumerate(LDS_FR): q.append(loader.emit_lds(f, i))
    for i, reg in enumerate(PRE_SLOTS):
        regmap[FR[i]] = reg
        q.append(loader.emit(FR[i], reg))
    step = len(pos) / len(q)
    assert step >= 1.0
    for i, ins in enumerate(q):
        k = int(i*step)
        sal = ins[:-1]
        if sal and k > 0 and int((i-1)*step) < k - 1 and i > 0:
            free[pos[k-1]].append(sal[0]); sal = sal[1:]
        free[pos[k]] += sal + [ins[-1]]
    for n in range(128):
        va = softmax_valu(n)
        ms = [None]*4
        if n + 1 < 128: ms[0], ms[1] = s_mfma(n+1)
        if n >= 1: ms[2], ms[3] = pv_mfma(n-1)
        for p in range(4):
            if ms[p] is not None: g.append(ms[p])
            g += free[4*n + p]
            g += va[6*p:6*p+6]
    m = pv_mfma(127); g.append(m[0]); g.append(m[1])
    stamp(g, 9)
    for k in range(3): g.e(f"ds_write_b128 v{vRW}, {a(aO+32+4*k,4)} offset:{k*1024}")
    for u in range(2):
        for k in range(12): g.e(f"v_accvgpr_read_b32 v{12*u+k}, a{aO+16*u+k}")
    for k in range(3): g.e(f"ds_write_b128 v{vRW}, {a(aO+48+4*k,4)} offset:{(3+k)*1024}")
    g.append(W(lg=0)); g.e("s_barrier")
    for k in range(6): g.append(I(f"ds_read_b128 {v(24+4*k,4)}, v{vRR} offset:{k*1024}", tag=("red",k)))
    g.e(f"s_mov_b32 s{sTA}, {f2u(2.0**-60)}\ns_mov_b32 s{sTB}, {f2u(2.0**60)}\ns_mov_b32 s{sTC}, 0x7f000000")
    for u in range(2):
        g.append(W(lg=("red", 3*u+2)))
        for k in range(12): g.e(f"v_add_f32 v{12*u+k}, v{12*u+k}, v{24+12*u+k}")
    g.e(f"""
    v_mov_b32 v24, v8
    v_mov_b32 v26, v8
    v_mov_b32 v25, v20
    v_mov_b32 v27, v20
    v_add_f32 v28, |v0|, |v1|
    v_add_f32 v29, |v12|, |v13|
    v_permlane32_swap_b32 v26, v24
    v_permlane32_swap_b32 v27, v25
    v_add_f32 v28, v28, |v2|
    v_rcp_f32 v30, v24
    v_rcp_f32 v31, v25
    v_add_f32 v29, v29, |v14|
    """)
    for u in range(2):
        for k in range(8): g.e(f"v_mul_f32 v{32+8*u+k}, v{30+u}, v{12*u+k}")
        for k in range(4): g.e(f"v_cvt_pk_bf16_f32 v{32+8*u+k}, v{32+8*u+2*k}, v{32+8*u+2*k+1}")
        g.append(I(f"buffer_store_dwordx4 {v(32+8*u,4)}, v{vOSA}, {SWS}, s{sOST} offen offset:{512*u} sc1", tag="ost"))
    for u in range(2):
        for k in range(4): g.e(f"v_mul_f32 v{36+8*u+k}, v{30+u}, v{12*u+8+k}")
        for k in range(2): g.e(f"v_cvt_pk_bf16_f32 v{36+8*u+k}, v{36+8*u+2*k}, v{36+8*u+2*k+1}")
        g.append(I(f"buffer_store_dwordx2 {v(36+8*u,2)}, v{vOSC}, {SWS}, s{sOST} offen offset:{512*u} sc1", tag="ost"))
    for k in range(3, 12):
        g.e(f"v_add_f32 v28, v28, |v{k}|\nv_add_f32 v29, v29, |v{12+k}|")
    g.e(f"""
    v_min_f32 v26, v24, v25
    v_max_f32 v27, v24, v25
    v_add_f32 v28, v28, v29
    v_cmp_nge_f32 vcc, v26, s{sTA}
    v_cmp_nle_f32 s[98:99], v27, s{sTB}
    v_cmp_nlt_f32 s[100:101], v28, s{sTC}
    s_lshl_b32 s{sTB}, s{sWAVE}, 2
    s_add_u32 s{sTB}, s{sTB}, {L_VOTE}
    v_mov_b32 v25, s{sTB}
    s_or_b64 vcc, vcc, s[98:99]
    s_or_b64 vcc, vcc, s[100:101]
    s_cselect_b32 s{sTA}, 1, 0
    v_mov_b32 v24, s{sTA}
    ds_write_b32 v25, v24
    v_mov_b32 v25, {L_VOTE}
    """)
    stamp(g, 10)
    return g

vLA = 0; vGO = 5; vXD = 10; vW3 = 20; vLP = 21; vP3T = 22
R3ROW = 336
def phase3(regmap, loader):
    g = Seg()
    gaps = [Gap(None) for _ in range(360)]
    npre = len(PRE_SLOTS)
    freeq = collections.deque((0, r) for r in KV_SLOTS)
    released = set()
    def take(limit=None):
        while not freeq:
            ks = min(k for k in range(18) if k not in released); released.add(ks)
            for f in FR:
                if f[1] == ks: freeq.append((20*ks+20, regmap[f]))
        return freeq.popleft()
    rest = [f for f in FR[npre:] if f[0] != "o" and f not in LDS_FR]
    ofr = [f for f in FR if f[0] == "o"]
    ld = Chain(gaps)
    gpos = 1
    STEP = opt("p3step", 4)
    for f in rest:
        e, r = take(); gpos = max(gpos, e); regmap[f] = r
        assert gpos + 30 < 20*f[1], (f, gpos)
        ld.put(loader.emit(f, r), gpos, gpos+1); gpos += STEP
    OPOLL, OCHK = opt("opoll", 150), opt("ochk", 190)
    assert gpos < OPOLL
    ld.put([I(f"buffer_load_dword v{vP3T}, v{vFO}, {SWS}, 0 offen sc1", tag="pollo")], OPOLL, OPOLL+1)
    chk = Seg(); chk.append(W(vm="pollo"))
    spin(chk, "O", vFO, vP3T, 1, SWS, f"v_cmp_ne_u32 vcc, s{sNON}, v{vP3T}")
    stamp(chk, 12)
    ld.block(chk, OCHK)
    gpos = OCHK + 1
    for f in ofr:
        e, r = take(); assert e <= gpos + 10, (e, f, gpos)
        gpos = max(gpos, e); regmap[f] = r
        ld.put(loader.emit(f, r), gpos, gpos+1); gpos += 2
    lr = Chain(gaps)
    for i, f in enumerate(LDS_FR):
        e, r = take(); regmap[f] = r
        at = max(e, 20*f[1] - 24 + 3*f[2])
        assert at < 20*f[1] - 4, (f, at)
        lr.put([I(f"ds_read_b128 {r}, v{vLP} offset:{L_PF + i*1024}", tag=("R",)+f)], at, at+1)
    ch = Chain(gaps)
    v1 = Seg(); v1.append(W(lg=0)); v1.e("s_barrier"); v1.append(I("ds_read_b128 v[28:31], v25", tag="votes"))
    ch.put(v1, 2, 3)
    vt = Seg(); vt.append(W(lg="votes"))
    vt.e(f"""
    v_or3_b32 v28, v28, v29, v30
    v_or_b32 v28, v28, v31
    s_nop 0
    v_readfirstlane_b32 s{sTA}, v28
    s_andn2_b32 s{sTA}, s{sTA}, s{sSAFE}
    s_cbranch_scc1 L_fallback
    """)
    ch.block(vt, 10)
    pub = Seg(); pub.append(W(vm="ost")); pub.e("s_barrier")
    publish(pub, "O", sFO, 28)
    stamp(pub, 11)
    ch.block(pub, opt("opub", 24))
    ad = Seg()
    T = 23
    ad.e(f"""
    s_lshl_b32 s{sTA}, s{sWAVE}, 6
    v_lshrrev_b32 v{T}, 4, v{vLIN}
    v_add_u32 v{T}, s{sTA}, v{T}
    v_add_u32 v{vLP}, s{sLW}, v{vLIN}
    s_mul_i32 s{sTA}, s{sRB}, {64*1280}
    s_mul_i32 s{sTB}, s{sCB}, 160
    s_add_u32 s{sMBX}, s{sTA}, s{sTB}
    """)
    for k in range(5):
        ad.e(f"""
        v_add_u32 v24, {256*k}, v{T}
        v_mul_u32_u24 v26, 3277, v24
        v_lshrrev_b32 v26, 16, v26
        v_mul_u32_u24 v27, 20, v26
        v_sub_u32 v27, v24, v27
        v_mul_u32_u24 v24, {R3ROW}, v26
        v_lshl_add_u32 v24, v27, 4, v24
        v_add_u32 v{vLA+k}, {L_PF}, v24
        v_add_u32 v{32+k}, {L_PF+2*LW}, v24
        v_mul_u32_u24 v24, 1280, v26
        v_lshl_add_u32 v{vGO+k}, v27, 3, v24
        """)
        ad.append(I(f"buffer_load_dwordx2 {v(vXD+2*k,2)}, v{vGO+k}, {SX}, s{sMBX} offen", tag=("xres",k)))
    ad.e(f"""
    s_add_u32 s{sTA}, s{sLW}, {L_PF}
    v_lshrrev_b32 v{T}, 4, v{vLIN}
    v_and_b32 v24, 15, v{T}
    v_mul_u32_u24 v24, {R3ROW}, v24
    v_and_b32 v{T}, 48, v{T}
    v_add3_u32 v{vW3}, v{T}, v24, s{sTA}
    """)
    ch.put(ad, 30, 140)
    def tg(f): return ("R",)+f if f in LDS_FR else f
    for m in range(360):
        ks, u, t = m // 20, (m % 20) // 5, m % 5
        b = ("h" if ks < 12 else "o", ks, u)
        w = None
        if m % 20 == 0:
            ws_ = [("w", ks, tt) for tt in range(5)]
            vm = [f for f in ws_ if f not in LDS_FR] + ([("h", ks, uu) for uu in range(4)] if ks < 12 else [b])
            lg = [tg(f) for f in ws_ if f in LDS_FR]
            w = W(vm=vm, lg=(lg or None))
        elif ks >= 12 and t == 0: w = W(vm=b)
        if w is not None:
            if m == 0: g.append(w)
            else: gaps[m-1].sec[2].append(w)
        acc = a(4*(5*u+t), 4)
        gaps[m].mfma = I(f"v_mfma_f32_16x16x32_bf16 {acc}, {regmap[('w',ks,t)]}, {regmap[b]}, {'0' if ks == 0 else acc}")
        if ks == 17 and u >= 2:
            uu = u - 2
            gaps[m].sec[1].append(I(f"ds_write_b128 v{vW3}, {a(4*(5*uu+t),4)} offset:{uu*16*R3ROW + t*64}"))
    first_r = min(i for i, gp in enumerate(gaps) if any(x.tag and x.tag[0] == "R" for x in gp.sec[1] if isinstance(x.tag, tuple)))
    gaps[first_r].sec[0].insert(0, W(vm=("L",)+LDS_FR[-1]))
    for gp in gaps: g += gp.flat()
    for uu in (2, 3):
        for t in range(5): g.e(f"ds_write_b128 v{vW3}, {a(4*(5*uu+t),4)} offset:{uu*16*R3ROW + t*64}")
    stamp(g, 13)
    g.append(W(lg=0)); g.e("s_barrier")
    R = 64
    for k in range(5):
        for src in range(4):
            ar = vLA + k if src < 2 else 32 + k
            g.append(I(f"ds_read_b128 {v(R+16*k+4*src,4)}, v{ar} offset:{(src%2)*LW}", tag=("fr",k,src)))
    g.append(W(vm=("xres",4)))
    for k in range(5):
        b = R + 16*k; x = vXD + 2*k; T = 24
        g.e(f"""
        v_lshlrev_b32 v{T}, 16, v{x}
        v_and_b32 v{T+1}, 0xffff0000, v{x}
        v_lshlrev_b32 v{T+2}, 16, v{x+1}
        v_and_b32 v{T+3}, 0xffff0000, v{x+1}
        """)
        g.append(W(lg=("fr",k,3)))
        for e in range(4): g.e(f"v_add_f32 v{b+e}, v{b+e}, v{b+4+e}")
        for e in range(4): g.e(f"v_add_f32 v{b+8+e}, v{b+8+e}, v{b+12+e}")
        for e in range(4): g.e(f"v_add_f32 v{T+e}, v{T+e}, v{b+e}")
        for e in range(4): g.e(f"v_add_f32 v{T+e}, v{T+e}, v{b+8+e}")
        g.e(f"v_cvt_pk_bf16_f32 v{b}, v{T}, v{T+1}\nv_cvt_pk_bf16_f32 v{b+1}, v{T+2}, v{T+3}")
        g.e(f"buffer_store_dwordx2 {v(b,2)}, v{vGO+k}, {SOUT}, s{sMBX} offen")
    if STAMPS:
        g.e("s_waitcnt vmcnt(0)")
        stamp(g, 14)
        dump_stamps(g)
    g.e("L_end:\ns_endpgm")
    return g

def dump_stamps(g):
    g.e(f"""
    s_lshl_b32 s{sTA}, s2, 2
    s_add_u32 s{sTA}, s{sTA}, s{sWAVE}
    s_lshl_b32 s{sTA}, s{sTA}, 8
    s_add_u32 s{sTA}, s{sTA}, {WS_T}
    v_mbcnt_lo_u32_b32 v0, -1, 0
    v_mbcnt_hi_u32_b32 v0, -1, v0
    v_lshlrev_b32 v0, 2, v0
    v_accvgpr_read_b32 v1, a{aSTAMP}
    s_nop 1
    v_writelane_b32 v1, s0, 40
    v_writelane_b32 v1, s1, 41
    s_nop 1
    buffer_store_dword v1, v0, {SWS}, s{sTA} offen
    s_waitcnt vmcnt(0)
    """)

def fallback():
    g = Seg()
    g.e("L_fallback:")
    g.e(f"s_mov_b32 s{sSAFE}, 1\ns_waitcnt vmcnt(0) lgkmcnt(0)\ns_barrier")
    wsbase(g, pTW, sQHI)
    g += q_loads()
    for u in range(4): g.e(f"v_mov_b32 v{32+u}, 0xff800000")
    g.e(f"s_sub_u32 s{pK}, s{pK}, 8192\ns_subb_u32 s{pK+1}, s{pK+1}, 0")
    g.e(f"s_sub_u32 s{pTH}, s{pK}, 4096\ns_subb_u32 s{pTH+1}, s{pK+1}, 0\ns_mov_b32 s{sTB}, 32")
    g.e("L_fbloop:")
    b = aKV
    g.e(f"""
    global_load_dwordx4 {a(b,4)}, v{vK1}, {sp(pTH)} sc1
    global_load_dwordx2 {a(b+4,2)}, v{vK2}, {sp(pTH)} sc1
    s_waitcnt vmcnt(0)
    """)
    for u in range(4):
        q = aQ + 6*u
        g.e(f"v_mfma_f32_32x32x16_bf16 v[0:15], {a(b,4)}, {a(q,4)}, 0")
        g.e(f"v_mfma_f32_32x32x8_bf16 v[0:15], {a(b+4,2)}, {a(q+4,2)}, v[0:15]")
        for k in range(8): g.e(f"v_max3_f32 v{32+u}, v{2*k}, v{2*k+1}, v{32+u}")
    g.e(f"""
    s_add_u32 s{pTH}, s{pTH}, 512
    s_addc_u32 s{pTH+1}, s{pTH+1}, 0
    s_sub_u32 s{sTB}, s{sTB}, 1
    s_cmp_lg_u32 s{sTB}, 0
    s_cbranch_scc1 L_fbloop
    """)
    for u in range(4): g.e(f"v_mov_b32 v{36+u}, v{32+u}")
    for u in range(4): g.e(f"v_permlane32_swap_b32 v{32+u}, v{36+u}")
    for u in range(4): g.e(f"v_max_f32 v{32+u}, v{32+u}, v{36+u}")
    g.e(f"ds_write_b128 v{vRW}, v[32:35]\ns_waitcnt lgkmcnt(0)\ns_barrier\nds_read_b128 v[36:39], v{vRR}\ns_waitcnt lgkmcnt(0)")
    g.e(f"v_cmp_lt_u32 vcc, 511, v{vLIN}")
    for u in range(4):
        m = 32 + u; q2 = aQ + 6*u + 4
        g.e(f"""
        v_max_f32 v{m}, v{m}, v{36+(u+2)%4}
        v_sub_f32 v{m}, 0, v{m}
        v_cvt_pk_bf16_f32 v0, v{m}, v{m}
        v_lshlrev_b32 v1, 16, v0
        v_sub_f32 v{m}, v{m}, v1
        v_cvt_pk_bf16_f32 v2, v{m}, v{m}
        v_lshlrev_b32 v3, 16, v2
        v_sub_f32 v{m}, v{m}, v3
        v_cvt_pk_bf16_f32 v4, v1, v3
        v_mov_b32 v6, 0
        v_cvt_pk_bf16_f32 v5, v{m}, v6
        v_accvgpr_read_b32 v6, a{q2}
        v_accvgpr_read_b32 v7, a{q2+1}
        v_cndmask_b32 v6, v6, v4, vcc
        v_cndmask_b32 v7, v7, v5, vcc
        v_accvgpr_write_b32 a{q2}, v6
        v_accvgpr_write_b32 a{q2+1}, v7
        """)
    for t in range(3): g += flat(k_loads(t)) + v_loads(t)
    g.e("s_waitcnt vmcnt(0)\ns_barrier\ns_branch L_att1\nL_codeend:")
    return g

HEADER = open("header.txt").read()

def mark_m0(lst):
    last = None
    for i in lst:
        if ("s","m0") in i.wr: last = i
        if i.cls == "vmem" and ("s","m0") in i.rd and last is not None and not hasattr_keep(i): i.keep = last
    return lst
def check_m0(path):
    last = None
    for i in path:
        if ("s","m0") in i.wr: last = i
        if i.cls == "vmem" and ("s","m0") in i.rd and hasattr_keep(i): assert i.keep is last, ("m0", i.text, i.keep.text, last.text)
def check_centred(path):
    done = set()
    for i in path:
        if i.op == "v_cvt_pk_bf16_f32" and i.wr[0][1] >= vX: done.add(i.wr[0][1])
        if i.cls == "mfma":
            for r in i.rd:
                if r[0] == "v" and r[1] >= vX: assert r[1] in done, ("not centred", i.text)

def build():
    pro, nw = prologue()
    cls = {c: phase1a(c, nw) for c in "QV"}
    for c in "QV": check_centred(list(pro) + list(cls[c]))
    p1c = phase1c()
    regmap = {}; loader = Loader()
    att = attention(regmap, loader)
    p3 = phase3(regmap, loader)
    fb = fallback()
    tail = Seg(); tail += p1c; tail += att; tail += p3
    log = []
    tot = fix_hazards(pro, log=log)
    for c in "QV":
        ctx = list(pro[-30:]); n0 = len(ctx); path = ctx + list(cls[c]); tot += fix_hazards(path, log=log)
        assert all(x is y for x, y in zip(path[:n0], ctx)); cls[c][:] = path[n0:]
    for c in "QV":
        ctx = list(cls[c][-30:]); n0 = len(ctx); path = ctx + list(tail); tot += fix_hazards(path, log=log)
        assert all(x is y for x, y in zip(path[:n0], ctx)); tail[:] = path[n0:]
    tot += fix_hazards(fb, log=log)
    for c in "QV": resolve_waits(list(pro) + list(cls[c]) + list(tail))
    allins = list(pro) + list(cls['Q']) + list(cls['V']) + list(tail) + list(fb)
    finalize_waits(allins)
    for c in "QV":
        check_m0(list(pro) + list(cls[c]) + list(tail))
        errs = check_loads(list(pro) + list(cls[c]) + list(tail))
        for e in errs[:10]: print("LOAD HAZARD", c, e, file=sys.stderr)
        assert not errs
        errs = check_scc(list(pro) + list(cls[c]) + list(tail))
        for e in errs[:10]: print("SCC HAZARD", c, e, file=sys.stderr)
        assert not errs
    print(f"nop states inserted: {tot}", file=sys.stderr)
    if "--log" in sys.argv:
        for l in log: print(l, file=sys.stderr)
    body = "\n".join(("" if i.cls == "label" else "    ") + i.text for i in allins)
    return HEADER.replace("@@BODY@@", body)

if __name__ == "__main__":
    out = build()
    path = [x for x in sys.argv[1:] if not x.startswith("--")]
    open(path[0] if path else "out.s", "w").write(out)
```

```python
import sys, math, struct, collections
from asmlib import *

STAMPS = "--stamps" in sys.argv
def opt(name, default):
    for a_ in sys.argv:
        if a_.startswith(f"--{name}="): return type(default)(a_.split("=")[1])
    return default
STOP = opt("stop", "")
XS = [int(x) for x in opt("xs", "").split(",") if x]
K0 = opt("k0", 14)
LAG = opt("lag", 4)

def f2u(x): return struct.unpack("<I", struct.pack("<f", x))[0]

WS_Q = 0x000000; WS_K = 0x280000; WS_V = 0x500000; WS_C = 0x780000
WS_O = 0x800000
WS_H = 0xB00000
WS_W = 0x1100000
WS_F = 0x1400000
WS_T = 0x1410000
WS_SIZE = 0x1480000
F_QKV = WS_F; F_H = WS_F + 0x2000; F_O = WS_F + 0x4000
OOB = 0x40000000
LOG2E = 1.4426950408889634
QSCALE = (20 ** -0.5) * LOG2E

L_RING = 0; NSLOT = 8; L_X = 8*16384; L_J = 9*16384
XSLOT = [8, 9, 2, 3, 4, 5, 6, 7, 8, 9]
LW = 40960; L_PF = 6144; NLPF = 33; L_VOTE = LW - 1024

sWAVE=3; sXCD=4; sLOC=5; sT0=6; sT1=7
SX="s[8:11]"; SWS="s[24:27]"; SOUT="s[28:31]"; SDBG="s[32:35]"; SJ="s[36:39]"
pW=12
sMB=40; sJ=41; sWB=42; pX=44
sSL=[47,48,49,50,51,52,62,63]
sC10=53; sC01=54; sC11=55
sEB=56
sHB=59
sSC=61
sP=64
sNON=84; sTA=85; sTB=86; sTC=87
sHD=88; sQB=89; sKH=90; sJS=91
sFLQ=95; sJO=78
pK=64; pV=66; pQ=68; pTW=70; pTH=72
sWPG=[74,17,18,19]; sHPG=[75,56,57,61]
sOPU=12; sOS2=16
sWP=74; sHP=75; sOP=76; sOST=77; sFL=78; sMBX=79; sWP2=80; sRB=81; sCB=82; sFO=83
sSAFE=43; sSPIN=44; sLW=45; sQHI=46

vLANE=1; vXLD=84; vXR=88; vDH=4; vTH=6; vDQ=8; vDG=10; vTR=12; vEP=16; vH=18
vJK=19; vJST=23; vJTR=24; vCST=25; vNM=26; vR=27; vS=28; vSG=29; vSCL=30; vNON=33; vACC=34; vZERO=37; vPA=38
vLN=40; vR16=48; vTMP=64; vX=96
vK1=48; vO3=49; vK2=50; vQ2=51; vVL=52; vLIN=53; vH3=54; vOSA=58; vRW=60; vRR=61; vFH=62; vFO=63
aA=0; aB=64; aC=96; aWF=160; NWF=10
aO=0; aQ=64; aKV=200; aSTAMP=199; aST=[255]

def v(n, k=1): return f"v{n}" if k == 1 else f"v[{n}:{n+k-1}]"
def a(n, k=1): return f"a{n}" if k == 1 else f"a[{n}:{n+k-1}]"
def sp(n): return f"s[{n}:{n+1}]"

class Seg(list):
    def e(self, text, **kw):
        for t in text.strip().split("\n"):
            t = t.strip()
            if t: self.append(I(t, **kw))
        mark_scc(self)
        return self

def stamp(seg, k):
    if not STAMPS: return
    seg.e(f"s_memrealtime s[96:97]" if "--rt" in sys.argv else f"s_memtime s[96:97]")
    seg.append(W(lg=0))
    seg.e(f"s_mov_b64 exec, {1<<k}\nv_accvgpr_write_b32 a{aST[0]}, s96\ns_mov_b64 exec, -1")
    if k in (0, 14):
        seg.e(f"s_memrealtime s[96:97]")
        seg.append(W(lg=0))
        seg.e(f"s_mov_b64 exec, {1<<(16 if k == 0 else 17)}\nv_accvgpr_write_b32 a{aST[0]}, s96\ns_mov_b64 exec, -1")

def srd(seg, S, ptr, size):
    b = int(S[2:].split(":")[0])
    seg.e(f"s_mov_b32 s{b}, s{ptr}\ns_mov_b32 s{b+1}, s{ptr+1}\ns_mov_b32 s{b+2}, {size}\ns_mov_b32 s{b+3}, 0x00020000")

class Gap:
    def __init__(self, mfma):
        self.mfma = mfma; self.sec = [[], [], []]
    def flat(self): return ([self.mfma] if self.mfma is not None else []) + self.sec[0] + self.sec[1] + self.sec[2]
def section(i):
    if i.cls in ("vmem", "lds"): return 1
    if i.cls in ("valu", "trans"): return 2
    return 0
class Chain:
    def __init__(self, gaps): self.gaps = gaps; self.k = 0; self.last = 0
    def put(self, group, g0, g1):
        tot = sum(i.cost() for i in group) or 1
        acc = 0
        for i in group:
            want = g0 + min(g1-g0-1, int(acc * (g1-g0) / tot))
            if want > self.k and not scc_reads(i): self.k = want; self.last = 0
            sec = section(i)
            if sec < self.last: self.k += 1
            self.gaps[self.k].sec[sec].append(i); self.last = sec
            acc += i.cost()
        return self.k
    def block(self, group, k):
        if k > self.k: self.k = k
        self.gaps[self.k].sec[2] += list(group); self.last = 2

def gap_cost(gp, base=8):
    c = base if gp.mfma is not None else 0
    ns = 0
    for i in gp.sec[0]:
        if i.cls == "barrier": c += 33
        else: ns += 1
    c += 4*max(0, ns - 1)
    for i in gp.sec[1]: c += mem_cost(i)
    for i in gp.sec[2]: c += (33 if i.cls == "barrier" else 16 if i.cls == "vmem" else 12 if i.cls == "branch" else i.cost())
    return c
def mem_cost(i):
    if i.cls == "lds": return 16 if "write" in i.op else 4
    if "store" in i.op: return 16
    return 4 if i.op.startswith("global") else 8
class Stream:
    stores = []
    def __init__(self, gaps, k=0, cap=32, base=8): self.gaps = gaps; self.k = k; self.last = 0; self.cap = cap; self.base = base
    def put(self, group, g0, dead, every=0, stsp=0, free=False):
        for i in group:
            sec = section(i); k = self.k
            if g0 > k: k = g0; self.last = 0
            if sec < self.last: k += 1
            if i.cls == "vmem":
                if every: k = max(k, getattr(self, "lastv", -99) + every)
                if stsp and "store" in i.op and Stream.stores: k = max(k, Stream.stores[-1] + stsp)
            d = dead(i) if callable(dead) else dead
            if sec < self.last and self.k >= d: sec = self.last
            k = max(min(k, d), self.k + (1 if sec < self.last else 0))
            while k < d:
                gp = self.gaps[k]; c0 = gap_cost(gp, self.base); gp.sec[sec].append(i); c = gap_cost(gp, self.base); gp.sec[sec].pop()
                if (c <= self.cap or c0 <= self.base) and not (free and sec == 0 and c > c0): break
                k += 1
            if k != self.k: self.last = 0
            self.gaps[k].sec[sec].append(i); self.k = k; self.last = sec
            if i.cls == "vmem":
                self.lastv = k
                if "store" in i.op: Stream.stores.append(k)
        return self.k
    def block(self, group, k):
        if k > self.k: self.k = k
        self.gaps[self.k].sec[2] += list(group); self.last = 2
def report(name, gaps, lo, hi, cap=32, base=8):
    t = sum(max(cap, gap_cost(gaps[n], base)) for n in range(lo, hi)); u = sum(gap_cost(gaps[n], base) for n in range(lo, hi))
    print(f"model {name}: gaps {lo}..{hi} ideal {cap*(hi-lo)} predicted {t} issue {u}", file=sys.stderr)

def weave(main, fill, per):
    out = Seg(); fill = list(fill)
    for m in main:
        out.append(m); out += fill[:per]; fill = fill[per:]
    out += fill
    return out

def dma_stage(sig):
    if sig >= 25: return []
    p = 0 if sig < 10 else (1 if sig < 15 else 2)
    out = Seg()
    vd = (vDQ, vDH, vDG)[p]
    adv = (64*3840, 128*3072, 64*3072)[p]
    out.e(f"s_mov_b32 m0, s{sSL[sig % NSLOT]}")
    for src in range(2):
        for r in range(2):
            out.append(I(f"global_load_lds_dwordx4 v{vd+r}, {sp(pW+4*p+2*src)} offset:{src*2048+r*1024}", tag=("dma", sig, src, r)))
    if sig not in (9, 14, 24): out.e(f"v_add_u32 v{vd}, {adv}, v{vd}\nv_add_u32 v{vd+1}, {adv}, v{vd+1}")
    return mark_m0(out)
def dma_tag(sig): return ("dma", sig, 1, 1)

def dots(cb):
    out = Seg()
    for r in range(16):
        x = vX + 16*cb + r
        out.e(f"v_dot2_f32_bf16 v{vACC+(r%2)}, v{x}, s{sC11}, v{vACC+(r%2)}")
        out.e(f"v_dot2_f32_bf16 v{vACC+2+(r%2)}, v{x}, v{x}, v{vACC+2+(r%2)}")
    return out
def x_reads(cb):
    off = (XSLOT[cb] - 2)*16384; hi = off >= 65536
    return [I(f"ds_read_b128 {v(vX+16*cb+4*jj,4)}, v{vXR+jj+(4 if hi else 0)} offset:{off % 65536}", tag=("xr", cb, jj)) for jj in range(4)]
def mix(g, loads, fill):
    fill = list(fill); n = len(loads)
    for i, grp in enumerate(loads):
        g += grp[:-1]
        if grp[:-1] and grp[-2].wr == [("s","m0")] and fill and fill[0].cls in ("salu","valu") and not scc_live_before(fill, 0): g.append(fill.pop(0))
        k = len(fill) // (n - i)
        g.append(grp[-1])
        while 0 < k < len(fill) and scc_live_before(fill, k): k += 1
        if i + 1 < n and loads[i+1][:-1]:
            while k < len(fill) and scc_live_before(fill, k): k += 1
        g += fill[:k]; fill = fill[k:]
    g += fill
def groups(seg):
    out = []; cur = []
    for i in seg:
        cur.append(i)
        if i.cls == "vmem": out.append(cur); cur = []
    return out, cur

def prologue():
    g = Seg()
    g.e(f"""
    s_cmp_ge_u32 s2, 256
    s_cbranch_scc1 L_end
    s_load_dwordx16 s[64:79], s[0:1], 0
    s_load_dwordx4 s[80:83], s[0:1], 64
    s_getpc_b64 s[36:37]
    L_pc0:
    s_lshr_b32 s{sLOC}, s2, 3
    s_mov_b32 s38, L_codeend-L_pc0
    s_mov_b32 s39, 0x00020000
    s_lshl_b32 s{sT0}, s{sLOC}, 12
    v_lshlrev_b32 v64, 4, v0
    """)
    g.append(I(f"buffer_load_dwordx4 a[200:203], v64, {SJ}, s{sT0} offen", tag="code"))
    g.e(f"""
    v_and_b32 v{vLANE}, 63, v0
    v_lshrrev_b32 v0, 6, v0
    s_and_b32 s{sXCD}, s2, 7
    v_readfirstlane_b32 s{sWAVE}, v0
    s_and_b32 s{sT0}, s{sXCD}, 1
    s_lshl_b32 s{sT0}, s{sT0}, 3
    s_and_b32 s{sT1}, s{sLOC}, 7
    s_add_u32 s{sMB}, s{sT0}, s{sT1}
    v_lshrrev_b32 v64, 3, v{vLANE}
    v_and_b32 v65, 7, v{vLANE}
    v_xor_b32 v66, v64, v65
    v_lshlrev_b32 v66, 4, v66
    v_mul_u32_u24 v{vXLD}, 1280, v64
    v_add_u32 v{vXLD}, v{vXLD}, v66
    v_add_u32 v{vXLD+1}, {10240-1024}, v{vXLD}
    v_xor_b32 v67, 1, v64
    v_xor_b32 v66, 16, v66
    v_mul_u32_u24 v67, 1280, v67
    v_add_u32 v67, v67, v66
    v_add_u32 v{vXLD+2}, {20480-2048}, v67
    v_add_u32 v{vXLD+3}, {30720-3072}, v67
    s_lshl_b32 s{sWB}, s{sWAVE}, 12
    s_lshl_b32 s{sT0}, s{sMB}, 2
    s_add_u32 s{sT0}, s{sT0}, s{sWAVE}
    s_mul_i32 s{sT0}, s{sT0}, 40960
    """)
    if STAMPS: g.e(f"v_accvgpr_write_b32 a{aST[0]}, 0")
    g.append(W(lg=0))
    g.e(f"s_add_u32 s{pX}, s{sP}, s{sT0}\ns_addc_u32 s{pX+1}, s{sP+1}, 0")
    stamp(g, 0)
    PF = opt("pf", 15); PFM = opt("pfm", "")
    if PF & 1:
        XR = opt("xrep", 1)
        g.e(f"""
        s_lshr_b32 s{sT1}, s{sXCD}, {XR}
        s_lshl_b32 s{sT1}, s{sT1}, 5
        s_add_u32 s{sT1}, s{sT1}, s{sLOC}
        s_lshl_b32 s{sT1}, s{sT1}, 2
        s_add_u32 s{sT1}, s{sT1}, s{sWAVE}
        s_mul_i32 s{sT1}, s{sT1}, {2560*XR}
        s_and_b32 s98, s{sXCD}, 1
        s_mul_i32 s98, s98, 1310720
        s_add_u32 s{sT1}, s{sT1}, s98
        v_lshlrev_b32 v78, 4, v{vLANE}
        v_add_u32 v78, s{sT1}, v78
        """)
        if XR == 2: g.e("v_add_u32 v78, 1024, v78")
        for o_ in ((0, 1024, 1536) if XR == 1 else (-1024, 0, 1024, 2048, 3072)):
            g.append(I(f"global_load_dwordx4 a[204:207], v78, {sp(sP)} offset:{o_}{PFM}", tag="pf"))
    if PF & 4:
        pt = Seg()
        pt.e(f"""
        v_lshlrev_b32 v77, 21, v{vLANE}
        s_cmp_eq_u32 s{sWAVE}, 1
        s_cselect_b32 s12, s{sP+8}, s{sP+18}
        s_cselect_b32 s13, s{sP+9}, s{sP+19}
        s_cselect_b32 s14, s{sP+10}, s{sP+14}
        s_cselect_b32 s15, s{sP+11}, s{sP+15}
        s_cselect_b32 s98, 1, 0x7ff
        s_cselect_b32 s99, 1, 3
        s_cmp_eq_u32 s{sWAVE}, 2
        s_cselect_b32 s12, s{sP+12}, s12
        s_cselect_b32 s13, s{sP+13}, s13
        s_cselect_b32 s14, s{sP+4}, s14
        s_cselect_b32 s15, s{sP+5}, s15
        s_cselect_b32 s98, 1, s98
        s_cselect_b32 s99, 1, s99
        s_cmp_eq_u32 s{sWAVE}, 3
        s_cselect_b32 s12, s{sP+2}, s12
        s_cselect_b32 s13, s{sP+3}, s13
        s_cselect_b32 s14, s{sP+16}, s14
        s_cselect_b32 s15, s{sP+17}, s15
        s_cselect_b32 s98, 3, s98
        s_cselect_b32 s99, 1, s99
        s_mov_b32 exec_hi, 0
        s_mov_b32 exec_lo, s98
        """)
        pt.append(I(f"global_load_dword a211, v77, s[12:13]", tag="pf"))
        pt.e("s_mov_b32 exec_lo, s99")
        pt.append(I(f"global_load_dword a212, v77, s[14:15]", tag="pf"))
        pt.e("s_mov_b64 exec, -1")
        pt = Seg([I(i.text.replace('s12', 's100').replace('s13', 's101').replace('s14', 's6').replace('s15', 's7').replace('s[12:13]', 's[100:101]').replace('s[14:15]', 's[6:7]'), tag=i.tag) for i in pt]); mark_scc(pt)
    xl = []
    for cb in range(10):
        c8 = cb % 8
        for rg in range(4):
            pre = []
            if cb == 8 and rg == 0: pre += list(Seg().e(f"s_add_u32 s{pX}, s{pX}, 1024\ns_addc_u32 s{pX+1}, s{pX+1}, 0"))
            if rg == 0: pre.append(I(f"s_add_u32 m0, s{sWB}, {XSLOT[cb]*16384 - c8*128}"))
            ld = I(f"global_load_lds_dwordx4 v{vXLD+rg}, {sp(pX)} offset:{c8*128+rg*1024}", tag=("x", cb, rg))
            xl.append(pre + [ld])
    f = Seg()
    srd(f, SX, sP+0, 2621440)
    f.e("s_add_u32 s0, s36, L_p1c-L_pc0\ns_addc_u32 s1, s37, 0")
    for i in range(8): f.e(f"s_add_u32 s{sSL[i]}, s{sWB}, {L_RING + i*16384}")
    srd(f, SWS, sP+18, WS_SIZE); srd(f, SOUT, sP+14, 2621440); srd(f, SDBG, sP+16, 256)
    cq = f2u(QSCALE); t32 = 98; tb = 99
    f.e(f"""
    s_lshr_b32 s{sT0}, s{sXCD}, 1
    s_lshl_b32 s{sT0}, s{sT0}, 2
    s_lshr_b32 s{sT1}, s{sLOC}, 3
    s_add_u32 s{sJ}, s{sT0}, s{sT1}
    v_lshlrev_b32 v66, 4, v65
    v_lshlrev_b32 v67, 1, v64
    v_and_b32 v67, 4, v67
    v_xor_b32 v67, v65, v67
    v_lshlrev_b32 v67, 4, v67
    v_mul_u32_u24 v{vDQ}, 3840, v64
    v_add_u32 v{vDQ}, v{vDQ}, v67
    v_add_u32 v{vDQ+1}, {8*3840-1024}, v{vDQ}
    v_mul_u32_u24 v{vDG}, 3072, v64
    v_add_u32 v{vDG}, v{vDG}, v67
    v_add_u32 v{vDG+1}, {8*3072-1024}, v{vDG}
    v_lshrrev_b32 v67, 2, v{vLANE}
    v_mul_u32_u24 v67, 3072, v67
    v_and_b32 v68, 3, v{vLANE}
    {"v_mov_b32 v%d, v%d" % (vDH, vDG) if "--x_full" in sys.argv else "v_lshl_add_u32 v%d, v68, 4, v67" % vDH}
    v_add_u32 v{vDH+1}, {16*3072-1024}, v{vDH}
    s_mov_b32 s{sC10}, 0x00003F80
    s_mov_b32 s{sC01}, 0x3F800000
    s_mov_b32 s{sC11}, 0x3F803F80
    v_lshrrev_b32 v70, 5, v{vLANE}
    v_and_b32 v71, 31, v{vLANE}
    v_and_b32 v72, 7, v71
    v_lshrrev_b32 v73, 3, v71
    v_lshrrev_b32 v74, 1, v73
    v_xor_b32 v74, v72, v74
    v_lshlrev_b32 v74, 7, v74
    v_lshl_add_u32 v73, v73, 10, v74
    s_add_u32 s{sT0}, s{sWB}, 32768
    v_add_u32 v73, s{sT0}, v73
    """)
    for jj in range(4):
        f.e(f"""
        v_add_u32 v74, {2*jj}, v70
        v_xor_b32 v75, v72, v74
        v_lshl_add_u32 v{vXR+jj}, v75, 4, v73
        v_add_u32 v{vXR+4+jj}, 65536, v{vXR+jj}
        """)
    f.e(f"""
    v_mov_b32 v{vACC}, 0
    v_mov_b32 v{vACC+1}, 0
    v_mov_b32 v{vACC+2}, 0
    v_mov_b32 v{vACC+3}, 0
    v_and_b32 v74, 15, v{vLANE}
    v_lshrrev_b32 v75, 2, v74
    v_lshlrev_b32 v78, 6, v75
    v_lshl_add_u32 v78, v70, 9, v78
    v_lshlrev_b32 v75, 7, v75
    v_lshl_add_u32 v75, v70, 10, v75
    v_and_b32 v76, 3, v74
    v_lshlrev_b32 v76, 3, v76
    v_and_b32 v77, 16, v{vLANE}
    v_lshl_add_u32 v76, v77, 1, v76
    v_add_u32 v{vTH}, v78, v76
    v_add_u32 v{vTH+1}, 0x10000, v{vTH}
    v_and_b32 v77, 8, v74
    v_lshlrev_b32 v77, 3, v77
    v_xor_b32 v76, v76, v77
    v_add_u32 v{vTR}, v75, v76
    v_xor_b32 v{vTR+1}, 64, v{vTR}
    v_add_u32 v{vTR+2}, 0x10000, v{vTR}
    v_add_u32 v{vTR+3}, 0x10000, v{vTR+1}
    v_lshrrev_b32 v74, 4, v71
    v_mul_u32_u24 v74, 49152, v74
    v_and_b32 v75, 15, v71
    v_lshlrev_b32 v75, 4, v75
    v_lshl_add_u32 v75, v70, 8, v75
    v_add_u32 v{vH}, v74, v75
    s_lshl_b32 s{t32}, s{sMB}, 2
    s_add_u32 s{t32}, s{t32}, s{sWAVE}
    s_min_u32 s{sT0}, s{sJ}, 14
    s_lshl_b32 s{sT1}, s{sT0}, 8
    s_mul_i32 s{tb}, s{sWAVE}, {16*3840}
    s_add_u32 s{sT1}, s{sT1}, s{tb}
    s_add_u32 s{pW}, s{sP+2}, s{sT1}
    s_addc_u32 s{pW+1}, s{sP+3}, 0
    s_sub_u32 s{pW+2}, s{pW}, {2048-128}
    s_subb_u32 s{pW+3}, s{pW+1}, 0
    s_lshl_b32 s{sT1}, s{sT0}, 19
    s_cmp_lt_u32 s{sJ}, 10
    s_cselect_b32 s{tb}, 9, 8
    s_lshl_b32 s{tb}, s{t32}, s{tb}
    s_add_u32 s{sEB}, s{sT1}, s{tb}
    s_add_u32 s{sEB+1}, s{sEB}, {1<<18}
    s_cmp_lt_u32 s{sJ}, 5
    s_cselect_b32 s{sSC}, {cq}, 1.0
    s_and_b32 s{sT0}, s{sJ}, 3
    s_lshl_b32 s{sT0}, s{sT0}, 2
    s_lshr_b32 s{sT1}, s{sJ}, 2
    s_add_u32 s{sT1}, s{sT0}, s{sT1}
    {"s_mov_b32 s%d, s%d" % (sT1, sJ) if "--noperm" in sys.argv else ""}
    s_lshr_b32 s{sT0}, s{sT1}, 1
    s_mul_i32 s{sT0}, s{sT0}, 3
    s_and_b32 s{sT1}, s{sT1}, 1
    s_mul_i32 s{t32}, s{t32}, {96*1024}
    s_add_u32 s{t32}, s{t32}, {WS_H}
    s_add_u32 s{sTA}, s{sT0}, s{sT1}
    s_lshl_b32 s{sTB}, s{sTA}, 7
    s_mul_i32 s{tb}, s{sWAVE}, {16*3072}
    s_add_u32 s{sTB}, s{sTB}, s{tb}
    s_add_u32 s{pW+8}, s{sP+8}, s{sTB}
    s_addc_u32 s{pW+9}, s{sP+9}, 0
    s_add_u32 s{pW+10}, s{sP+10}, s{sTB}
    s_addc_u32 s{pW+11}, s{sP+11}, 0
    s_sub_u32 s{pW+10}, s{pW+10}, 2048
    s_subb_u32 s{pW+11}, s{pW+11}, 0
    s_lshl_b32 s{sTB}, s{sTA}, 11
    s_add_u32 s{sHB+1}, s{t32}, s{sTB}
    s_lshl_b32 s{sTA}, s{sT0}, 1
    s_add_u32 s{sTA}, s{sTA}, s{sT1}
    s_add_u32 s{sTA}, s{sTA}, 4
    s_lshl_b32 s{sTB}, s{sTA}, 6
    s_lshl_b32 s{tb}, s{tb}, 1
    s_add_u32 s{sTB}, s{sTB}, s{tb}
    s_add_u32 s{pW+4}, s{sP+8}, s{sTB}
    s_addc_u32 s{pW+5}, s{sP+9}, 0
    s_add_u32 s{pW+6}, s{sP+10}, s{sTB}
    s_addc_u32 s{pW+7}, s{sP+11}, 0
    s_sub_u32 s{pW+6}, s{pW+6}, 2048
    s_subb_u32 s{pW+7}, s{pW+7}, 0
    s_lshl_b32 s{sTB}, s{sTA}, 10
    s_add_u32 s{sHB}, s{t32}, s{sTB}
    v_lshrrev_b32 v74, 2, v71
    v_lshlrev_b32 v74, 14, v74
    v_and_b32 v75, 3, v71
    v_lshlrev_b32 v75, 4, v75
    v_lshl_add_u32 v75, v70, 6, v75
    v_add_u32 v74, v74, v75
    s_cmp_lt_u32 s{sJ}, 15
    s_cselect_b32 s{sT0}, 0, {OOB}
    v_add_u32 v74, s{sT0}, v74
    v_lshlrev_b32 v75, 4, v71
    v_lshl_add_u32 v75, v70, 15, v75
    s_cmp_lt_u32 s{sJ}, 10
    s_cselect_b64 s[100:101], -1, 0
    v_cndmask_b32 v{vEP}, v74, v75, s[100:101]
    """)
    f.e(f"""
    s_lshl_b32 s{sTA}, s2, 2
    s_add_u32 s{sTA}, s{sTA}, s{sWAVE}
    v_and_b32 v75, 3, v{vLANE}
    s_sub_u32 s{sT0}, s{sTA}, 720
    s_cmp_lt_u32 s{sT0}, 32
    s_cselect_b32 s{sT1}, 0, {OOB}
    s_and_b32 s{sT0}, s{sT0}, 31
    s_lshl_b32 s{sT0}, s{sT0}, 10
    s_add_u32 s{sT0}, s{sT0}, s{sT1}
    s_add_u32 s{sT0}, s{sT0}, {WS_C}
    v_lshlrev_b32 v{vCST}, 4, v{vLANE}
    v_add_u32 v{vCST}, s{sT0}, v{vCST}
    v_and_b32 v80, 3, v{vLANE}
    v_cmp_eq_u32 vcc, 0, v80
    v_mov_b32 v81, s{sC11}
    v_mov_b32 v79, 0
    v_cndmask_b32 v80, v79, v81, vcc
    v_mov_b32 v81, v80
    v_mov_b32 v82, v80
    v_mov_b32 v83, v80
    v_lshrrev_b32 v{vPA}, 2, v{vLANE}
    v_lshlrev_b32 v{vPA}, 8, v{vPA}
    v_lshl_add_u32 v{vPA}, v75, 4, v{vPA}
    v_add_u32 v{vPA}, {F_QKV}, v{vPA}
    s_lshr_b32 s{sT0}, s2, 4
    s_lshl_b32 s{sT0}, s{sT0}, 8
    s_and_b32 s{sT1}, s2, 15
    s_lshl_b32 s{sT1}, s{sT1}, 2
    s_add_u32 s{sT0}, s{sT0}, s{sT1}
    s_add_u32 s{sFLQ}, s{sT0}, {F_QKV}
    """)
    mix(g, xl[:4*LAG], f)
    g.e(f"""
    s_or_b32 s{sT0}, s2, s{sWAVE}
    s_cmp_lg_u32 s{sT0}, 0
    s_cbranch_scc1 L_non
    s_memrealtime s[6:7]
    """)
    g.append(W(lg=0))
    g.e(f"s_or_b32 s6, s6, 1\nv_mov_b32 v68, s6\nv_mov_b32 v69, 0")
    g.append(I(f"buffer_store_dword v68, v69, {SDBG}, 0 offen sc1", cond=True))
    g.e("L_non:")
    pf = Seg()
    if PF & 2:
        pf.e(f"""
        s_min_u32 s98, s{sTA}, 799
        s_mul_i32 s98, s98, 3072
        v_lshlrev_b32 v78, 4, v{vLANE}
        v_add_u32 v79, s98, v78
        """)
        for k_ in range(3): pf.append(I(f"global_load_dwordx4 a[204:207], v79, {sp(sP+2)} offset:{1024*k_}{PFM}", tag="pf"))
    PFAT = opt("pfat", 6)
    stream = [xl[4*cb:4*cb+4] for cb in range(LAG, 10)]
    tails = []
    NW = opt("nw", 3)
    for sg in range(NW):
        gr, tl = groups(dma_stage(sg)); stream.append(gr); tails.append(tl)
    for b in range(11):
        if b == PFAT: g += pf
        if b == opt("ptat", 9) and PF & 4: g += pt
        item = Seg()
        if b < 10:
            item.append(W(vm=("x", b, 3)))
            if b == 0: stamp(item, 1)
            if "--xsx" in sys.argv: stamp(item, 18 + b)
            item += x_reads(b)
        if b >= 1:
            item.append(W(lg=("xr", b-1, 3)))
            item += dots(b-1)
        if b < len(stream):
            k = next(i for i, x in enumerate(item) if x.isdot()) if b >= 1 else len(item)
            g += item[:k]
            mix(g, stream[b], item[k:])
            if b >= 10 - LAG: g += tails[b - (10 - LAG)]
        else: g += item
        if b == 9: stamp(g, 2)
    assert len(stream) <= 11
    g.append(I(f"buffer_store_dwordx4 v[80:83], v{vCST}, {SWS}, 0 offen sc1", tag="cst"))
    inv = f2u(1.0/640.0)
    A0, A1, A2, A3 = vACC, vACC+1, vACC+2, vACC+3
    g.e(f"""
    s_mov_b32 s{sT0}, {inv}
    v_add_f32 v{A0}, v{A0}, v{A1}
    v_add_f32 v{A2}, v{A2}, v{A3}
    v_mov_b32 v{A1}, v{A0}
    v_mov_b32 v{A3}, v{A2}
    v_permlane32_swap_b32 v{A0}, v{A1}
    v_permlane32_swap_b32 v{A2}, v{A3}
    v_add_f32 v{A0}, v{A0}, v{A1}
    v_add_f32 v{A2}, v{A2}, v{A3}
    v_mul_f32 v{A0}, s{sT0}, v{A0}
    v_mul_f32 v{A2}, s{sT0}, v{A2}
    v_fma_f32 v{A2}, -v{A0}, v{A0}, v{A2}
    v_max_f32 v{A2}, 0, v{A2}
    v_cvt_pk_bf16_f32 v{A0}, v{A0}, v{A2}
    v_and_b32 v{A2}, 0xffff0000, v{A0}
    v_lshlrev_b32 v{A0}, 16, v{A0}
    v_sub_f32 v{vNM}, 0, v{A0}
    """)
    for ks in range(K0):
        if ks == max(K0 - 4, 0):
            g.append(W(vm=dma_tag(1))); g.e("s_barrier")
            for n in range(DIST): g += tr_reads(n)
        g += center_dot(ks)
    g.e(f"s_mov_b32 s{sC10}, 0xffff0000")
    stamp(g, 3)
    g.e(f"s_cmp_ge_u32 s{sJ}, 10")
    g.append(W(lg=("tr", 3, 1)))
    g.e("s_cbranch_scc1 L_clsV")
    return g, NW

def job_params():
    jp = Seg()
    jp.e(f"""
    s_mul_i32 s{sTB}, s{sTA}, 6554
    s_lshr_b32 s{sTB}, s{sTB}, 16
    s_mul_i32 s{sT0}, s{sTB}, 10
    s_sub_u32 s{sTC}, s{sTA}, s{sT0}
    s_cmp_lt_u32 s{sTB}, 48
    s_cselect_b32 s36, s{sP+12}, s{sP+4}
    s_cselect_b32 s37, s{sP+13}, s{sP+5}
    s_mov_b32 s38, {640*1280}
    s_cselect_b32 s38, {1536*1280}, s38
    s_mov_b32 s39, 0x00020000
    v_lshrrev_b32 v74, 2, v64
    v_and_b32 v75, 3, v64
    v_lshl_add_u32 v75, v74, 3, v75
    v_mul_u32_u24 v75, 1280, v75
    v_add_u32 v75, v75, v66
    v_lshlrev_b32 v74, 30, v74
    v_add_u32 v76, v75, v74
    s_cmp_lt_u32 s{sTA}, 720
    s_cselect_b32 s{sT0}, 0, {OOB}
    v_lshlrev_b32 v{vJST}, 4, v{vLANE}
    v_or_b32 v{vJST}, s{sT0}, v{vJST}
    v_or_b32 v75, s{sT0}, v75
    v_or_b32 v76, s{sT0}, v76
    """)
    for kg in range(4):
        jp.e(f"""
        s_lshl_b32 s{sT0}, s{sTB}, 2
        s_sub_u32 s{sT0}, s{sT0}, {192-kg}
        s_mul_i32 s{sT1}, s{sT0}, 171
        s_lshr_b32 s{sT1}, s{sT1}, 9
        s_mul_i32 s98, s{sT1}, 3
        s_sub_u32 s98, s{sT0}, s98
        s_mul_i32 s{sT1}, s{sT1}, 20
        s_lshl_b32 s99, s98, 2
        s_cmp_eq_u32 s98, 2
        s_cselect_b32 s99, 16, s99
        s_cselect_b64 s[100:101], -1, 0
        s_add_u32 s{sT1}, s{sT1}, s99
        s_lshl_b32 s{sT0}, s{sTB}, 5
        s_add_u32 s{sT0}, s{sT0}, {16*(kg//2)+4*(kg%2)}
        s_cmp_lt_u32 s{sTB}, 48
        s_cselect_b32 s{sT0}, s{sT0}, s{sT1}
        s_cselect_b64 s[100:101], 0, s[100:101]
        s_mul_i32 s{sT0}, s{sT0}, 1280
        s_lshl_b32 s{sT1}, s{sTC}, 7
        s_add_u32 s{sJS+kg}, s{sT0}, s{sT1}
        v_cndmask_b32 v{vJK+kg}, v75, v76, s[100:101]
        """)
    jp.e(f"""
    s_add_u32 s{sT0}, s{sWB}, {L_J}
    v_lshrrev_b32 v74, 4, v{vLANE}
    v_lshlrev_b32 v74, 10, v74
    v_and_b32 v75, 15, v{vLANE}
    v_lshrrev_b32 v76, 2, v75
    v_lshl_add_u32 v74, v76, 7, v74
    v_and_b32 v75, 3, v75
    v_lshl_add_u32 v74, v75, 3, v74
    v_add_u32 v{vJTR}, s{sT0}, v74
    """)
    return jp

def job_dma():
    jobdma = Seg()
    for kg in range(4):
        jobdma.e(f"s_add_u32 m0, s{sWB}, {L_J + kg*1024}")
        jobdma.append(I(f"buffer_load_dwordx4 v{vJK+kg}, {SJ}, s{sJS+kg} offen lds", tag=("job", kg)))
    return mark_m0(jobdma)
def job_par():
    jobdma = Seg()
    for tg in range(4):
        jobdma.e(f"""
        s_lshl_b32 s98, s{sTC}, 2
        s_add_u32 s98, s98, {tg}
        s_mul_i32 s99, s98, 52
        s_lshr_b32 s99, s99, 8
        s_mul_i32 s99, s99, 355
        s_add_u32 s98, s98, s99
        s_mul_i32 s99, s{sTB}, 5
        s_add_u32 s98, s98, s99
        s_lshl_b32 s98, s98, 10
        s_add_u32 s{sJO+tg}, s98, {WS_W}
        """)
    return jobdma

NTAIL = 4
def p1_order():
    o = []
    for ks in range(40): o += [(0, ks, u) for u in range(4)]
    for ks in range(40): o += [(1, ks, u) for u in range(2)]
    k1 = 40 - 4*NTAIL
    for ks in range(k1): o += [(2, ks, u) for u in range(4)]
    for ks in range(k1, 40): o += [(2, ks, 0), (2, ks, 2)]
    for ks in range(k1, 40): o += [(2, ks, 1), (2, ks, 3)]
    return o
ORDER = p1_order()
def stage_of(p, ks): return (ks//4, 10 + ks//8, 15 + ks//4)[p]
DIST = 8
def tr_reads(n):
    if n >= 400: return []
    p, ks, u = ORDER[n]
    slot = stage_of(p, ks) % NSLOT
    if p != 1: off = (ks % 4)*4096 + (u//2)*2048; reg = vTR + (u % 2); hi = 2; d = 512
    else: off = (ks % 8)//2*4096 + u*2048 + (ks % 2)*1024; reg = vTH; hi = 1; d = 256
    off += slot*16384
    if off >= 65536: off -= 65536; reg += hi
    f = aWF + 4*(n % NWF)
    return [I(f"ds_read_b64_tr_b16 {a(f,2)}, v{reg} offset:{off}", tag=("tr", n, 0)),
            I(f"ds_read_b64_tr_b16 {a(f+2,2)}, v{reg} offset:{off+d}", tag=("tr", n, 1))]
def p1_mfma(n, cls):
    p, ks, u = ORDER[n]
    acc = (aA, aB, aC)[p] + 16*u
    wf = a(aWF + 4*(n % NWF), 4); x = v(vX + 4*ks, 4)
    c = "0" if ks == 0 else a(acc, 16)
    if cls == 'V' and p == 0: return I(f"v_mfma_f32_32x32x16_bf16 {a(acc,16)}, {x}, {wf}, {c}")
    return I(f"v_mfma_f32_32x32x16_bf16 {a(acc,16)}, {wf}, {x}, {c}")

def center_dot(ks):
    out = Seg()
    for r in range(4):
        x = vX + 4*ks + r
        out.e(f"v_dot2_f32_bf16 v{vLN+2*r}, v{x}, s{sC10}, v{vNM}")
        out.e(f"v_dot2_f32_bf16 v{vLN+2*r+1}, v{x}, s{sC01}, v{vNM}")
    for r in range(4):
        out.e(f"v_cvt_pk_bf16_f32 v{vX+4*ks+r}, v{vLN+2*r}, v{vLN+2*r+1}")
    return out
def center5(ks):
    out = Seg()
    for r in range(4):
        x = vX + 4*ks + r
        out.e(f"v_lshlrev_b32 v{vLN+2*r}, 16, v{x}\nv_and_b32 v{vLN+2*r+1}, s{sC10}, v{x}")
        out.e(f"v_add_f32 v{vLN+2*r}, v{vNM}, v{vLN+2*r}\nv_add_f32 v{vLN+2*r+1}, v{vNM}, v{vLN+2*r+1}")
        out.e(f"v_cvt_pk_bf16_f32 v{vX+4*ks+r}, v{vLN+2*r}, v{vLN+2*r+1}")
    return out

tmpctr = [0]
def epi_qk(acc, t, sbase, vscale, tag):
    out = Seg()
    for pr in range(2):
        T = vTMP + 12*(tmpctr[0] % 2); tmpctr[0] += 1
        for e in range(8): out.e(f"v_accvgpr_read_b32 v{T+e}, a{acc+8*pr+e}")
        for e in range(8): out.e(f"v_mul_f32 v{T+e}, v{vscale}, v{T+e}")
        for e in (0, 2, 1, 3): out.e(f"v_cvt_pk_bf16_f32 v{T+8+e}, v{T+2*e}, v{T+2*e+1}")
        out.e(f"s_add_u32 s{sT0+pr}, s{sbase}, {(4*t+2*pr)*32768}")
        out.e(f"v_permlane32_swap_b32 v{T+8}, v{T+10}\nv_permlane32_swap_b32 v{T+9}, v{T+11}")
        out.append(I(f"buffer_store_dwordx4 {v(T+8,4)}, v{vEP}, {SWS}, s{sT0+pr} offen sc1", tag=tag))
    return out
def epi_v(acc, t, sbase, voff, tag):
    out = Seg()
    out.e(f"s_add_u32 s{sT0+t}, s{sbase}, {8*t*16384}")
    for m in range(2):
        T = vTMP + 12*(tmpctr[0] % 2); tmpctr[0] += 1
        for e in range(8): out.e(f"v_accvgpr_read_b32 v{T+e}, a{acc+8*m+e}")
        for e in range(8): out.e(f"v_mul_f32 v{T+e}, v{vR16+8*m+e}, v{T+e}")
        for e in range(4): out.e(f"v_cvt_pk_bf16_f32 v{T+8+e}, v{T+2*e}, v{T+2*e+1}")
        out.append(I(f"buffer_store_dwordx4 {v(T+8,4)}, v{voff}, {SWS}, s{sT0+t} offen offset:{128*m} sc1", tag=tag))
    return out
def epi_g(acc, t, shb, tag, ud=32):
    out = Seg()
    ag = acc + 16*t; au = acc + ud + 16*t
    for pp in range(2):
        P = vTMP + 24 + 4*(pp)
        for c4 in range(2):
            T = vTMP + 8*(tmpctr[0] % 3); tmpctr[0] += 1
            r0 = 8*pp + 4*c4
            for e in range(4): out.e(f"v_accvgpr_read_b32 v{T+e}, a{ag+r0+e}")
            for e in range(4): out.e(f"v_mul_f32 v{T+e}, v{vSG}, v{T+e}")
            for e in range(4): out.e(f"v_exp_f32 v{T+e}, v{T+e}")
            for e in range(4): out.e(f"v_accvgpr_read_b32 v{T+4+e}, a{au+r0+e}")
            for e in range(4): out.e(f"v_fma_f32 v{T+e}, v{T+e}, v{vS}, v{vS}")
            for e in range(4): out.e(f"v_rcp_f32 v{T+e}, v{T+e}")
            for e in range(4): out.e(f"v_mul_f32 v{T+4+e}, v{T+e}, v{T+4+e}")
            out.e(f"v_cvt_pk_bf16_f32 v{P+2*c4}, v{T+4}, v{T+5}\nv_cvt_pk_bf16_f32 v{P+2*c4+1}, v{T+6}, v{T+7}")
        out.append(I(f"buffer_store_dwordx4 {v(P,4)}, v{vH}, {SWS}, s{shb} offen offset:{t*1024+pp*512} sc1", tag=tag))
    return out

def job_process():
    out = Seg()
    out.append(W(vm=("job", 3)))
    for tg in range(4):
        T = vTMP + 4*tg
        out.append(I(f"ds_read_b64_tr_b16 {v(T,2)}, v{vJTR} offset:{tg*32}", tag=("jtr", tg, 0)))
        out.append(I(f"ds_read_b64_tr_b16 {v(T+2,2)}, v{vJTR} offset:{tg*32+512}", tag=("jtr", tg, 1)))
    out2 = Seg()
    out2.append(W(lg=("jtr", 3, 1)))
    for tg in range(4):
        out2.append(I(f"buffer_store_dwordx4 {v(vTMP+4*tg,4)}, v{vJST}, {SWS}, s{sJO+tg} offen sc1", tag="h1"))
    return out, out2

def spin(seg, name, addr, dst, width, srd_, cmp_lines):
    seg.e(f"s_mov_b32 s{sSPIN}, 0x40000")
    seg.e(f"L_sp{name}:")
    seg.e(cmp_lines)
    seg.e(f"s_cbranch_vccz L_ok{name}")
    seg.e(f"s_sub_u32 s{sSPIN}, s{sSPIN}, 1\ns_cbranch_scc1 L_ok{name}\ns_sleep 1")
    op = {1:"buffer_load_dword",4:"buffer_load_dwordx4"}[width]
    seg.append(I(f"{op} {v(dst,width)}, v{addr}, {srd_}, 0 offen sc1", cond=True))
    seg.e("s_waitcnt vmcnt(0)")
    seg.e(f"s_branch L_sp{name}")
    seg.e(f"L_ok{name}:")
def all4(d, non):
    return f"v_xor_b32 v{d}, {non}, v{d}\nv_xor_b32 v{d+1}, {non}, v{d+1}\nv_xor_b32 v{d+2}, {non}, v{d+2}\nv_xor_b32 v{d+3}, {non}, v{d+3}\nv_or3_b32 v{d}, v{d}, v{d+1}, v{d+2}\nv_or_b32 v{d}, v{d}, v{d+3}\nv_cmp_ne_u32 vcc, 0, v{d}"
def publish(seg, name, soff_reg, t):
    seg.e(f"s_cmp_lg_u32 s{sWAVE}, 0\ns_cbranch_scc1 L_fl{name}")
    seg.e(f"s_mov_b64 exec, 1\nv_mov_b32 v{t}, s{sNON}\nv_mov_b32 v{t+1}, 0")
    seg.append(I(f"buffer_store_dword v{t}, v{t+1}, {SWS}, s{soff_reg} offen sc1", cond=True))
    seg.e(f"s_mov_b64 exec, -1\nL_fl{name}:")

def wsbase(g, p, soff):
    g.e(f"s_add_u32 s{p}, s24, s{soff}\ns_addc_u32 s{p+1}, s25, 0")

def attn_addr_setup():
    g = Seg()
    T = vLN
    g.e(f"""
    s_lshl_b32 s{sHD}, s{sXCD}, 2
    s_lshr_b32 s{sTA}, s{sLOC}, 3
    s_add_u32 s{sHD}, s{sHD}, s{sTA}
    s_and_b32 s{sQB}, s{sLOC}, 7
    s_and_b32 s{sKH}, s{sWAVE}, 1
    s_lshr_b32 s{sTA}, s{sHD}, 1
    s_mul_i32 s{sTA}, s{sTA}, 5
    s_and_b32 s{sTB}, s{sHD}, 1
    s_mul_i32 s{sTC}, s{sTB}, 3
    s_add_u32 s{sTC}, s{sTC}, s{sTA}
    s_lshl_b32 s{sTC}, s{sTC}, 15
    s_add_u32 s{sTA}, s{sTA}, 2
    s_lshl_b32 s{sTA}, s{sTA}, 15
    s_lshl_b32 s{sTB}, s{sTB}, 3
    s_add_u32 s{sTB}, s{sTB}, s{sTA}
    s_mul_i32 s{sTA}, s{sHD}, {5*16384}
    v_lshrrev_b32 v{T}, 5, v{vLANE}
    v_and_b32 v{T+1}, 31, v{vLANE}
    v_lshlrev_b32 v{T+2}, 4, v{T+1}
    v_lshl_add_u32 v{vK1}, v{T}, 15, v{T+2}
    v_add_u32 v{vK1}, s{sTC}, v{vK1}
    v_add_u32 v{T+2}, s{sTB}, v{T+2}
    v_cmp_eq_u32 vcc, 0, v{T}
    v_mov_b32 v{T+3}, {WS_C-WS_K}
    v_mov_b32 v{vQ2}, {WS_C-WS_Q+16}
    v_cndmask_b32 v{vK2}, v{T+3}, v{T+2}, vcc
    v_cndmask_b32 v{vQ2}, v{vQ2}, v{T+2}, vcc
    v_lshrrev_b32 v{T+2}, 2, v{T+1}
    v_lshlrev_b32 v{T+2}, 14, v{T+2}
    v_add_u32 v{T+2}, s{sTA}, v{T+2}
    v_and_b32 v{T+3}, 3, v{T+1}
    v_lshlrev_b32 v{T+3}, 4, v{T+3}
    v_lshl_add_u32 v{T+3}, v{T}, 6, v{T+3}
    v_add_u32 v{T+2}, v{T+2}, v{T+3}
    v_mov_b32 v{T+3}, {WS_C-WS_V+16}
    v_cmp_gt_u32 vcc, 20, v{T+1}
    s_lshl_b32 s{sTA}, s{sKH}, 14
    s_add_u32 s{sTB}, s{sTA}, {WS_K+4096}
    s_lshr_b32 s{sTA}, s{sTA}, 1
    v_cndmask_b32 v{T+2}, v{T+3}, v{T+2}, vcc
    v_mov_b32 v{T+3}, {WS_C-WS_V}
    v_cmp_eq_u32 vcc, 20, v{T+1}
    """)
    wsbase(g, pK, sTB)
    g.e(f"""
    v_cndmask_b32 v{vVL}, v{T+2}, v{T+3}, vcc
    s_add_u32 s{sTB}, s{sTA}, {WS_V+4096}
    """)
    wsbase(g, pV, sTB)
    g.e(f"""
    s_lshl_b32 s{sTA}, s{sQB}, 1
    s_lshr_b32 s{sTB}, s{sWAVE}, 1
    s_add_u32 s{sTA}, s{sTA}, s{sTB}
    s_lshl_b32 s{sTA}, s{sTA}, 11
    s_lshl_b32 s{sTB}, s{sKH}, 10
    s_add_u32 s{sTC}, s{sTA}, s{sTB}
    """)
    wsbase(g, pQ, sTC)
    g.e(f"""
    s_xor_b32 s{sQHI}, s{sTC}, 1024
    s_mul_i32 s{sTB}, s{sHD}, {3*32768}
    s_add_u32 s{sOST}, s{sTC}, s{sTB}
    s_add_u32 s{sOST}, s{sOST}, {WS_O}
    """)
    wsbase(g, pTW, sQHI)
    g2 = Seg()
    g2.e(f"""
    s_lshr_b32 s{sTA}, s{sXCD}, 1
    s_lshl_b32 s{sTA}, s{sTA}, 3
    s_add_u32 s{sRB}, s{sTA}, s{sQB}
    s_and_b32 s{sTA}, s{sXCD}, 1
    s_lshl_b32 s{sTA}, s{sTA}, 2
    s_lshr_b32 s{sTB}, s{sLOC}, 3
    s_add_u32 s{sCB}, s{sTA}, s{sTB}
    v_lshlrev_b32 v{T+2}, 4, v{T+1}
    v_lshl_add_u32 v{vOSA}, v{T}, 15, v{T+2}
    v_lshlrev_b32 v{vLIN}, 4, v{vLANE}
    v_lshrrev_b32 v{T+2}, 4, v{vLANE}
    v_and_b32 v{T+3}, 15, v{vLANE}
    v_lshlrev_b32 v{T+3}, 4, v{T+3}
    v_lshl_add_u32 v{vO3}, v{T+2}, 15, v{T+3}
    s_mul_i32 s{sLW}, s{sWAVE}, {LW}
    v_add_u32 v{vRW}, s{sLW}, v{vLIN}
    s_xor_b32 s{sTB}, s{sWAVE}, 1
    s_mul_i32 s{sTA}, s{sTB}, {LW}
    v_add_u32 v{vRR}, s{sTA}, v{vLIN}
    v_add_u32 v{vFH}, {F_H-F_QKV}, v{vPA}
    s_mul_i32 s{sTA}, s{sCB}, {72*5*1024}
    s_mul_i32 s{sTB}, s{sWAVE}, {12*5*1024}
    s_add_u32 s{sWP}, s{sTA}, s{sTB}
    s_add_u32 s{sWP}, s{sWP}, {WS_W}
    s_mul_i32 s{sTB}, s{sWAVE}, {6*5*1024}
    s_add_u32 s{sWP2}, s{sTA}, s{sTB}
    s_add_u32 s{sWP2}, s{sWP2}, {WS_W + 48*5*1024}
    s_mul_i32 s{sTA}, s{sRB}, {4*48*1024}
    s_mul_i32 s{sTB}, s{sWAVE}, {12*1024}
    s_add_u32 s{sHP}, s{sTA}, s{sTB}
    s_add_u32 s{sHP}, s{sHP}, {WS_H}
    s_lshl_b32 s{sTA}, s{sRB}, 10
    s_mul_i32 s{sTB}, s{sWAVE}, {24*32768}
    s_add_u32 s{sOP}, s{sTA}, s{sTB}
    s_add_u32 s{sOP}, s{sOP}, {WS_O}
    s_add_u32 s{sOS2}, s{sOST}, 65536
    s_mov_b32 s{sSAFE}, 0
    s_add_u32 s{sFL}, s{sFLQ}, {F_H-F_QKV}
    """)
    ROT = opt("rot", 1)
    for gi in (3, 2, 1, 0):
        g2.e(f"""
        s_add_u32 s{sTA}, s{sQB}, s{sCB}
        s_mul_i32 s{sTA}, s{sTA}, {ROT}
        s_add_u32 s{sTA}, s{sTA}, {gi}
        s_and_b32 s{sTA}, s{sTA}, 3
        s_mul_i32 s{sTB}, s{sTA}, {15*1024}
        s_mul_i32 s{sTA}, s{sTA}, {3*1024}
        s_add_u32 s{sWPG[gi]}, s{sWP}, s{sTB}
        s_add_u32 s{sHPG[gi]}, s{sHP}, s{sTA}
        """)
    for u in range(4):
        g2.e(f"""
        s_add_u32 s{sTA}, s{sWAVE}, {u+1}
        s_and_b32 s{sTA}, s{sTA}, 3
        s_mul_i32 s{sTB}, s{sTA}, 49152
        s_lshl_b32 s{sTA}, s{sTA}, 8
        s_add_u32 s{sOPU+u}, s{sOP}, s{sTA}
        v_add_u32 v{vH3+u}, s{sTB}, v{vLIN}
        """)
    return g, g2

def kv_set(t): return aKV + 14*(t % 4)
def k_loads(t):
    b = kv_set(t); off = (t % 16)*512 - 4096
    pre = list(Seg().e(f"s_add_u32 s{pK}, s{pK}, 8192\ns_addc_u32 s{pK+1}, s{pK+1}, 0")) if t == 16 else []
    return [pre + [I(f"global_load_dwordx4 {a(b,4)}, v{vK1}, {sp(pK)} offset:{off} sc1", tag=("k",t,1))],
            [I(f"global_load_dwordx2 {a(b+4,2)}, v{vK2}, {sp(pK)} offset:{off} sc1", tag=("k",t,2))]]
def flat(l): return [x for y in l for x in y]
def v_loads(t):
    b = kv_set(t) + 6; off = t*256 - 4096
    return [I(f"global_load_dwordx4 {a(b,4)}, v{vVL}, {sp(pV)} offset:{off} sc1", tag=("v",t,0)),
            I(f"global_load_dwordx4 {a(b+4,4)}, v{vVL}, {sp(pV)} offset:{off+128} sc1", tag=("v",t,1))]
def q_loads():
    out = []
    for u in range(4):
        b = aQ + 6*u; p = pQ if u < 2 else pTW; off = (u % 2)*512
        out.append(I(f"global_load_dwordx4 {a(b,4)}, v{vK1}, {sp(p)} offset:{off} sc1", tag=("q",u,1)))
        out.append(I(f"global_load_dwordx2 {a(b+4,2)}, v{vQ2}, {sp(p)} offset:{off} sc1", tag=("q",u,2)))
    return out

SPLIT = opt("split", 296)
def stage_barriers():
    seen = {0}; bg = {}
    for n in range(400):
        if n + DIST < 400:
            k = stage_of(*ORDER[n+DIST][:2]) // 2
            if k not in seen: seen.add(k); bg[k] = n
    return bg
BG = stage_barriers()
def base_gaps(cls, lo, hi, nw):
    gaps = [Gap(p1_mfma(n, cls)) if lo <= n < hi else None for n in range(400)]
    inv = {n: k for k, n in BG.items()}
    for n in range(lo, hi):
        if n in inv: gaps[n].sec[0] += [W(vm=[dma_tag(min(2*inv[n]+1, 24))]), I("s_barrier")]
        if n % 4 == 3 and n + 1 < 400: gaps[n].sec[0].append(W(lg=("tr", min(n+4, 399), 1)))
        gaps[n].sec[1] += tr_reads(n + DIST)
    dm = Stream(gaps, lo)
    EV = opt("dmaev", 3); EVH = opt("dmaevh", 4); LAND = opt("land", 22)
    for sg in range(nw if lo == 0 else 0, 25):
        k = sg // 2
        g0 = BG[k-2] + 1 if k >= 3 else 0
        if not (lo <= g0 < hi): continue
        dm.put(dma_stage(sg), g0, min(BG[k] - LAND, hi - 2), every=(EVH if 10 <= sg < 15 else EV))
        if sg == opt("jobsg", 17): dm.put(job_dma(), 0, hi - 2, every=EV); JD[0] = dm.k
    assert dm.k < hi
    return gaps
JD = [0]

def ren(i): return i
def phase1a(cls, nw):
    g = Seg()
    if cls == 'V': g.e("L_clsV:")
    gaps = base_gaps(cls, 0, SPLIT, nw)
    A2 = vACC + 2
    post = Seg()
    post.e(f"""
    v_add_f32 v{A2}, {f2u(1e-5)}, v{A2}
    v_cvt_pk_bf16_f32 v{A2}, v{A2}, v{A2}
    v_lshlrev_b32 v{A2}, 16, v{A2}
    v_sqrt_f32 v{A2}, v{A2}
    v_mov_b32 v{vZERO}, 0
    v_cvt_pk_bf16_f32 v{A2}, v{A2}, v{A2}
    v_lshlrev_b32 v{vS}, 16, v{A2}
    v_rcp_f32 v{vR}, v{vS}
    v_mul_f32 v{vSG}, {f2u(-LOG2E)}, v{vR}
    """)
    if cls != 'V':
        post.e(f"v_mul_f32 v{vSCL}, s{sSC}, v{vR}")
    else:
        post.e(f"""
        v_mov_b32 v{vSCL+2}, {L_X}
        v_add_u32 v{vSCL+2}, s{sWB}, v{vSCL+2}
        v_and_b32 v{vSCL}, 31, v{vLANE}
        v_lshl_add_u32 v{vSCL}, v{vSCL}, 2, v{vSCL+2}
        v_lshrrev_b32 v{vSCL+1}, 5, v{vLANE}
        v_lshl_add_u32 v{vSCL+1}, v{vSCL+1}, 4, v{vSCL+2}
        ds_write_b32 v{vSCL}, v{vR}
        """)
        for k in range(4):
            post.append(I(f"ds_read_b128 {v(vR16+4*k,4)}, v{vSCL+1} offset:{32*k}", tag=("r16", k)))
    post.append(I(f"buffer_load_dword v{vNON}, v{vZERO}, {SDBG}, 0 offen sc1", tag="non"))
    Stream.stores.clear()
    if opt("pf", 15) & 8:
        p2 = Seg()
        p2.e(f"""
        s_min_u32 s58, s{sTA}, 959
        s_lshl_b32 s58, s58, 11
        v_lshlrev_b32 v78, 4, v{vLANE}
        v_add_u32 v79, s58, v78
        """)
        for p_ in (sP+8, sP+10):
            for k_ in range(2): p2.append(I(f"global_load_dwordx4 a[204:207], v79, {sp(p_)} offset:{1024*k_}", tag="pf"))
        Stream(gaps).put(p2, opt("pf2at", 1), 60, every=3)
    jb = Stream(gaps)
    jb.put(job_params(), 0, 150, free=True)
    assert jb.k < JD[0] - 12
    jb.put(job_par(), 0, SPLIT - 2, free=True)
    ch = Stream(gaps)
    for ks in range(K0, 40): ch.put(center5(ks), 0, 4*ks - 2)
    ch.put(post, 0, 161)
    e0 = Seg()
    if cls == 'V':
        e0.append(W(lg=("r16", 3)))
        for u in range(4): e0 += epi_v(aA+16*u, u % 2, sEB + u//2, vEP, "qkv")
    else:
        for u in range(4): e0 += epi_qk(aA+16*u, u % 2, sEB + u//2, vSCL, "qkv")
    bg = opt("pub", 248)
    if bg in BG.values(): gaps[bg].sec[0][0].wvm += ["qkv", "non", "cst"]
    else: gaps[bg].sec[0][:0] = [W(vm=["qkv", "non", "cst"]), I("s_barrier")]
    pb = Seg()
    spin(pb, "N" + cls, vZERO, vNON, 1, SDBG, f"v_cmp_eq_u32 vcc, 0, v{vNON}")
    pb.e(f"v_readfirstlane_b32 s{sNON}, v{vNON}")
    publish(pb, "Q" + cls, sFLQ, vLN+2)
    Stream(gaps, bg).block(pb, bg)
    if "--x_plain" in sys.argv:
        e0 = [I(i.text.replace(" sc1", ""), tag=i.tag) if i.cls == "vmem" else i for i in e0]
    if "--x_lin" in sys.argv:
        n_ = [0]
        def lin(i):
            n_[0] += 1
            return I(f"buffer_store_dwordx4 {i.text.split()[1]} v{vCST}, {SWS}, s58 offen offset:{(n_[0]-1)%4*1024} sc1", tag=i.tag)
        e0 = list(Seg().e(f"s_lshl_b32 s58, s2, 2\ns_add_u32 s58, s58, s{sWAVE}\ns_lshl_b32 s58, s58, 12\nv_lshlrev_b32 v{vCST}, 4, v{vLANE}")) + [lin(i) if i.cls == "vmem" else i for i in e0]
    pieces, cur = [], []
    for i in e0:
        cur.append(i)
        if i.cls == "vmem": pieces.append(cur); cur = []
    e1 = epi_g(aB, 0, sHB, "h1", ud=16)
    STSP = opt("stsp", 5); E0END = bg - opt("stlat", 16)
    q1 = list(e1)
    for n, pc in enumerate(pieces):
        at = 161 + n * STSP
        if at > 241:
            while q1 and ch.k < at - 1:
                m = next((x for x in range(len(q1)) if q1[x].op == "v_cvt_pk_bf16_f32"), len(q1) - 2) + 2
                if m < len(q1) and q1[m].cls == "vmem": m += 1
                ch.put([ren(i) for i in q1[:m]], 241, SPLIT - 2); q1 = q1[m:]
        ch.put(pc, at, E0END)
    assert ch.k <= E0END + 1
    ch.put([ren(i) for i in q1], 241, SPLIT - 2)
    print("job ends", jb.k, "epilogue ends", ch.k, file=sys.stderr)
    report("pass0 " + cls, gaps, 0, 160); report("pass1 " + cls, gaps, 160, 240); report("pass2a " + cls, gaps, 240, SPLIT)
    for n in range(SPLIT):
        if n in XS: stamp(g, 18 + XS.index(n))
        if n == 160: stamp(g, 4)
        if n == 240: stamp(g, 5)
        g += gaps[n].flat()
    if cls != 'V': g.e("s_branch L_p1c")
    return g

def phase1c():
    g = Seg()
    g.e("L_p1c:")
    gaps = base_gaps('Q', SPLIT, 400, 0)
    Stream.stores.clear()
    ch = Stream(gaps, SPLIT)
    POLL = opt("poll", 332); CHK = opt("chk", 350)
    Stream(gaps, POLL).put([I(f"buffer_load_dwordx4 {v(44,4)}, v{vPA}, {SWS}, 0 offen sc1", tag="pollq")], POLL, POLL+1)
    ck = Seg(); ck.append(W(vm="pollq"))
    spin(ck, "Q", vPA, 44, 4, SWS, all4(44, f"s{sNON}"))
    stamp(ck, 7)
    Stream(gaps, CHK).block(ck, CHK)
    first = flat(k_loads(0)) + q_loads() + v_loads(0) + flat(k_loads(1)) + v_loads(1) + flat(k_loads(2)) + v_loads(2)
    Stream(gaps, CHK + 1).put(first, CHK + 1, 399, every=opt("ldev", 2))
    if opt("cpf", 1):
        cp = Seg()
        cp.e(f"""
        s_lshl_b32 s98, s{sLOC}, 2
        s_add_u32 s98, s98, s{sWAVE}
        s_lshl_b32 s98, s98, 10
        s_min_u32 s98, s98, L_codeend-L_p1c-1024
        v_lshlrev_b32 v{vLN}, 4, v{vLANE}
        v_add_u32 v{vLN}, s98, v{vLN}
        """)
        cp.append(I(f"global_load_dwordx4 a[248:251], v{vLN}, s[0:1]", tag="pf"))
        ch.put(cp, 0, CHK - 1)
    as1, as2 = attn_addr_setup()
    j1, j2 = job_process()
    ch.put(j1, 0, CHK - 1); k = ch.k
    ch.put(as1, 0, CHK - 1); ch.put(j2, k + 4, CHK - 1, stsp=opt("jstsp", 4))
    ch.put(as2, 0, CHK - 1)
    print("set-up ends", ch.k, file=sys.stderr)
    ch.put(epi_g(aC, 0, sHB+1, "h1"), 400 - 8*NTAIL + 1, 399)
    report("pass2", gaps, SPLIT, 400)
    for n in range(SPLIT, 400):
        if n in XS: stamp(g, 18 + XS.index(n))
        g += gaps[n].flat()
    stamp(g, 6)
    if STAMPS: g.e(f"v_accvgpr_mov_b32 a{aSTAMP}, a{aST[0]}"); aST[0] = aSTAMP
    return g

def s_mfma(n):
    t, u = n // 4, n % 4
    S = v(16*(n % 2), 16); k = kv_set(t); q = aQ + 6*u
    return (I(f"v_mfma_f32_32x32x16_bf16 {S}, {a(k,4)}, {a(q,4)}, 0"),
            I(f"v_mfma_f32_32x32x8_bf16 {S}, {a(k+4,2)}, {a(q+4,2)}, {S}"))
def pv_mfma(n):
    t, u = n // 4, n % 4
    O = a(aO + 16*u, 16); vv = kv_set(t) + 6; P = 32 + 8*(n % 2)
    return (I(f"v_mfma_f32_32x32x16_bf16 {O}, {a(vv,4)}, {v(P,4)}, {'0' if t == 0 else O}"),
            I(f"v_mfma_f32_32x32x16_bf16 {O}, {a(vv+4,4)}, {v(P+4,4)}, {O}"))
def softmax_valu(n):
    S = 16*(n % 2); P = 32 + 8*(n % 2)
    E = lambda i: I(f"v_exp_f32 v{S+i}, v{S+i}")
    C = lambda k: I(f"v_cvt_pk_bf16_f32 v{P+k}, v{S+2*k}, v{S+2*k+1}")
    return [E(0),E(1),E(2),C(0),E(3),E(4), C(1),E(5),E(6),C(2),E(7),E(8), C(3),E(9),E(10),C(4),E(11),E(12), C(5),E(13),E(14),E(15),C(6),C(7)]

def p3_frags():
    fr = []
    for ks in range(12):
        fr += [("w", ks, t) for t in range(5)] + [("h", ks, u) for u in range(4)]
    for ks in range(12, 18):
        fr += [("w", ks, t) for t in range(5)] + [("o", ks, u) for u in range(4)]
    return fr
FR = p3_frags()
PRE_SLOTS = [a(88+4*i,4) for i in range(27 if STAMPS else 28)] + [v(64+4*i,4) for i in range(48)]
LDS_FR = [f for f in FR if f[0] == "w"][-NLPF:]
class Loader:
    def __init__(self): self.cur = {pTW: None, pTH: None}
    def base(self, p, sreg, hi):
        if self.cur[p] == (sreg, hi): return []
        self.cur[p] = (sreg, hi)
        o = Seg(); o.e(f"s_add_u32 s{p}, s{sreg}, {hi+4096}\ns_add_u32 s{p}, s24, s{p}\ns_addc_u32 s{p+1}, s25, 0"); return list(o)
    def addr(self, f):
        kind, ks, x = f
        if kind == "w":
            off = (ks % 3*5 + x)*1024 if ks < 12 else ((ks-12)*5 + x)*1024
            return pTW, (sWPG[ks//3] if ks < 12 else sWP2), off // 8192 * 8192, off % 8192 - 4096, vLIN
        if kind == "h":
            return pTH, sHPG[ks//3], 0, ks % 3*1024 - 4096, vH3 + x
        return pTH, sOPU + x, (ks-12)*4*32768, -4096, vO3
    def emit(self, f, reg):
        p, sreg, hi, lo, vr = self.addr(f)
        return self.base(p, sreg, hi) + [I(f"global_load_dwordx4 {reg}, v{vr}, {sp(p)} offset:{lo} sc1", tag=f)]
    def emit_lds(self, f, idx):
        kind, ks, x = f
        off = (ks % 3*5 + x)*1024 if ks < 12 else ((ks-12)*5 + x)*1024
        sreg = sWPG[ks//3] if ks < 12 else sWP2
        hi, lo = off // 4096 * 4096, off % 4096
        out = self.base(pTW, sreg, hi - 4096)
        m0 = L_PF + idx*1024 - lo
        if self.cur.get("m0") != m0:
            self.cur["m0"] = m0; out.append(I(f"s_add_u32 m0, s{sLW}, {m0}"))
        return out + [I(f"global_load_lds_dwordx4 v{vLIN}, {sp(pTW)} offset:{lo} sc1", tag=("L",)+f)]
vFT = 64

def attention(regmap, loader):
    g = Seg()
    eg = epi_g(aC, 1, sHB+1, "h1")
    g.e("v_mov_b32 v0, -1\nv_mov_b32 v1, -1\nv_mov_b32 v2, -1\nv_mov_b32 v3, -1")
    oc = [I(f"buffer_store_dwordx4 v[0:3], v{vOSA}, {SWS}, s{sOST} offen sc1", tag="h1"),
          I(f"buffer_store_dwordx4 v[0:3], v{vOSA}, {SWS}, s{sOST} offen offset:512 sc1", tag="h1"),
          I(f"buffer_store_dwordx4 v[0:3], v{vLIN}, {SWS}, s{sOS2} offen sc1", tag="h1")]
    for k_ in range(3): g += eg[12*k_:12*k_+12]; g.append(oc[k_])
    g += eg[36:]
    stamp(g, 8)
    g.e("L_att1:")
    g.append(W(vm=[("q",3,2), ("k",0,2)]))
    m = s_mfma(0); g.append(m[0]); g.append(m[1])
    free = [[] for _ in range(128*4)]
    for t in range(32):
        if t + 3 < 32:
            kl = k_loads(t+3); vl = v_loads(t+3)
            if len(kl[0]) > 1: free[16*t - 2].append(kl[0][0]); free[16*t - 1].append(kl[0][1])
            for i in range(2): free[16*t + i].append(kl[i][-1])
            for i in range(2): free[16*t + 4 + i].append(vl[i])
        if t + 1 < 32: free[16*t + 11].append(W(vm=[("k",t+1,2), ("v",t+1,1)]))
    free[3].append(W(vm=("v",0,1)))
    pub = Seg(); pub.append(W(vm="h1")); pub.e("s_barrier")
    publish(pub, "H", sFL, vFT)
    free[16*1 + 7] += pub
    HP = opt("hpoll", 7)
    free[16*HP + 7].append(I(f"buffer_load_dwordx4 {v(vFT+4,4)}, v{vFH}, {SWS}, 0 offen sc1", tag="pollh"))
    chk = Seg(); chk.append(W(vm="pollh"))
    spin(chk, "H", vFH, vFT+4, 4, SWS, all4(vFT+4, f"s{sNON}"))
    free[16*(HP+2) + 7] += chk
    pos = []
    for t in range(HP+3, 32):
        pos += [16*t + i for i in (2,3,6,7,8,9,10,12,13,14,15) if not (t == 12 and i >= 13)]
    q = []
    for i, f in enumerate(LDS_FR): q.append(loader.emit_lds(f, i))
    for i, reg in enumerate(PRE_SLOTS):
        regmap[FR[i]] = reg
        q.append(loader.emit(FR[i], reg))
    step = len(pos) / len(q)
    assert step >= 1.0
    for i, ins in enumerate(q):
        k = int(i*step)
        sal = ins[:-1]
        if sal and k > 0 and int((i-1)*step) < k - 1 and i > 0:
            free[pos[k-1]].append(sal[0]); sal = sal[1:]
        free[pos[k]] += sal + [ins[-1]]
    for n in range(128):
        va = softmax_valu(n)
        ms = [None]*4
        if n + 1 < 128: ms[0], ms[1] = s_mfma(n+1)
        if n >= 1: ms[2], ms[3] = pv_mfma(n-1)
        for p in range(4):
            if ms[p] is not None: g.append(ms[p])
            g += free[4*n + p]
            g += va[6*p:6*p+6]
    m = pv_mfma(127); g.append(m[0]); g.append(m[1])
    stamp(g, 9)
    return g

ACC3 = [64 + 4*i for i in range(6)] + [200 + 4*i for i in range(14)]
def o_epilogue():
    e1 = Seg(); e2 = Seg(); e3 = Seg(); e4 = Seg(); e5 = Seg()
    for k in range(3): e1.append(I(f"ds_write_b128 v{vRW}, {a(aO+32+4*k,4)} offset:{k*1024}", tag=("ow", k)))
    for u in range(2):
        for k in range(12): e2.e(f"v_accvgpr_read_b32 v{12*u+k}, a{aO+16*u+k}")
    e1b = Seg()
    for k in range(3): e1b.append(I(f"ds_write_b128 v{vRW}, {a(aO+48+4*k,4)} offset:{(3+k)*1024}", tag=("ow", 3+k)))
    e3.append(W(lg=0)); e3.e("s_barrier")
    for k in (2, 5, 0, 1, 3, 4): e3.append(I(f"ds_read_b128 {v(24+4*k,4)}, v{vRR} offset:{k*1024}", tag=("red",k)))
    e4.append(W(lg=("red", 5)))
    for u in range(2):
        for k in range(8, 12): e4.e(f"v_add_f32 v{12*u+k}, v{12*u+k}, v{24+12*u+k}")
    e4.e(f"""
    v_mov_b32 v32, v8
    v_mov_b32 v34, v8
    v_mov_b32 v33, v20
    v_mov_b32 v35, v20
    """)
    e4.append(W(lg=("red", 1)))
    for k in range(4): e4.e(f"v_add_f32 v{k}, v{k}, v{24+k}")
    e4.e("v_permlane32_swap_b32 v34, v32\nv_permlane32_swap_b32 v35, v33")
    for k in range(4, 8): e4.e(f"v_add_f32 v{k}, v{k}, v{24+k}")
    e4.e("v_rcp_f32 v34, v32\nv_rcp_f32 v35, v33")
    e4.e(f"s_mov_b32 s{sTA}, {f2u(2.0**-60)}\ns_mov_b32 s{sTB}, {f2u(2.0**60)}\ns_mov_b32 s{sTC}, 0x7f000000")
    e4.e("v_min_f32 v46, v32, v33\nv_max_f32 v47, v32, v33\nv_add_f32 v44, |v0|, |v1|\nv_add_f32 v45, |v20|, |v21|")
    e4.append(W(lg=("red", 4)))
    for k in range(8): e4.e(f"v_add_f32 v{12+k}, v{12+k}, v{36+k}")
    e4.e(f"v_cmp_nge_f32 vcc, v46, s{sTA}\nv_cmp_nle_f32 s[98:99], v47, s{sTB}")
    for k in range(10): e4.e(f"v_add_f32 v44, v44, |v{2+k}|\nv_add_f32 v45, v45, |v{(22,23,12,13,14,15,16,17,18,19)[k]}|")
    for k in range(8): e4.e(f"v_mul_f32 v{24+k}, v34, v{k}")
    e4.e(f"v_add_f32 v44, v44, v45")
    for k in range(4): e4.e(f"v_cvt_pk_bf16_f32 v{24+k}, v{24+2*k}, v{24+2*k+1}")
    e4.e(f"v_cmp_nlt_f32 s[100:101], v44, s{sTC}")
    for k in range(8): e4.e(f"v_mul_f32 v{36+k}, v35, v{12+k}")
    def masked(st):
        o = Seg(); o.e("s_mov_b64 exec, s[98:99]"); o.append(st); o.e("s_mov_b64 exec, -1"); return o
    blk1 = Seg()
    blk1.e(f"""
    s_or_b64 vcc, vcc, s[98:99]
    s_or_b64 vcc, vcc, s[100:101]
    s_cselect_b32 s{sTA}, 1, 0
    s_andn2_b32 s{sTB}, s{sTA}, s{sSAFE}
    s_cselect_b64 s[98:99], 0, -1
    """)
    blk1 += masked(I(f"buffer_store_dwordx4 v[24:27], v{vOSA}, {SWS}, s{sOST} offen sc1", tag="ost"))
    e4b = Seg()
    for k in range(4): e4b.e(f"v_cvt_pk_bf16_f32 v{36+k}, v{36+2*k}, v{36+2*k+1}")
    blk2 = masked(I(f"buffer_store_dwordx4 v[36:39], v{vOSA}, {SWS}, s{sOST} offen offset:512 sc1", tag="ost"))
    e4c = Seg()
    for u in range(2):
        for k in range(4): e4c.e(f"v_mul_f32 v{(28, 40)[u]+k}, v{34+u}, v{12*u+8+k}")
    e4c.e(f"""
    v_cvt_pk_bf16_f32 v44, v28, v29
    v_cvt_pk_bf16_f32 v46, v40, v41
    v_cvt_pk_bf16_f32 v45, v30, v31
    v_cvt_pk_bf16_f32 v47, v42, v43
    v_mov_b32 v30, s{sTA}
    v_permlane32_swap_b32 v44, v46
    v_permlane32_swap_b32 v45, v47
    """)
    blk3 = masked(I(f"buffer_store_dwordx4 v[44:47], v{vLIN}, {SWS}, s{sOS2} offen sc1", tag="ost"))
    e5.e(f"""
    s_lshl_b32 s{sTB}, s{sWAVE}, 2
    s_add_u32 s{sTB}, s{sTB}, {L_VOTE}
    v_mov_b32 v31, s{sTB}
    ds_write_b32 v31, v30
    v_mov_b32 v31, {L_VOTE}
    """)
    e4 = (e4, blk1, e4b, blk2, e4c, blk3)
    return e1, e2, e1b, e3, e4, e5

vXA = 0; vLP = 2; vRD = 3; vP3T = 6; vXD = 8; vXF = 18; vXL = 41
SLOW = []
def phase3(regmap, loader):
    g = Seg()
    gaps = [Gap(None) for _ in range(360)]
    order = [(ks, u, t) for ks in range(12) for u in range(4) for t in range(5)] + [(ks, u, t) for u in range(4) for ks in range(12, 18) for t in range(5)]
    for gp in gaps: gp.mfma = True
    S3 = lambda k=0, cap=16: Stream(gaps, k, cap=cap)
    e1, e2, e1b, e3, e4, e5 = o_epilogue()
    ECAP = opt("ecap", 16)
    ep = S3(0, ECAP)
    ep.put(e1, 0, 359); k_w0 = ep.k
    ep.put(e2[:12], 0, 359); k_r0 = ep.k
    ep.put(e1b, 2, 359); k_w1 = ep.k
    ep.put(e2[12:], 0, 359); k_r1 = ep.k
    ep.put(e3, 0, 359)
    ep.put(e4[0], ep.k + opt("elat", 6), 359)
    for i_, part in enumerate(e4[1:]):
        if i_ % 2 == 0: ep.block(part, ep.k)
        else: ep.put(part, ep.k + 1, 359)
    k_st = ep.k
    st10 = Seg(); stamp(st10, 10); ep.block(st10, ep.k)
    ep.cap = 16
    ep.put(e5, ep.k + 1, 359)
    v1 = Seg(); v1.append(W(lg=0)); v1.e("s_barrier"); v1.append(I("ds_read_b128 v[28:31], v31", tag="votes"))
    ep.put(v1, ep.k + 4, 359)
    vt = Seg(); vt.append(W(lg="votes"))
    vt.e(f"""
    v_or3_b32 v28, v28, v29, v30
    v_or_b32 v28, v28, v31
    s_nop 0
    v_readfirstlane_b32 s{sTA}, v28
    s_andn2_b32 s{sTA}, s{sTA}, s{sSAFE}
    s_cbranch_scc1 L_fallback
    """)
    stamp(vt, 11)
    ep.block(vt, ep.k + 6); k_pub = ep.k
    print("O stores at", k_st, "vote at", k_pub, file=sys.stderr)
    pool = [(0, a(12,4)), (0, a(28,4)), (4, a(44,4)), (4, a(60,4))]
    pool += [(k_w0+1, a(32+4*i,4)) for i in range(3)] + [(k_r0+1, a(4*i,4)) for i in range(3)]
    pool += [(k_w1+1, a(48+4*i,4)) for i in range(3)] + [(k_r1+1, a(16+4*i,4)) for i in range(3)]
    released = set()
    def take(at, vgpr=False):
        while True:
            c = sorted(x for x in pool if not vgpr or x[1][0] == "v")
            nxt = [k for k in range(12) if k not in released and all(f in regmap for f in FR if f[1] == k)]
            if nxt and 20*nxt[0]+20 <= at: pass
            elif c and (c[0][0] <= at or not nxt or c[0][0] <= 20*nxt[0]+20):
                now = [x for x in c if x[0] <= at and x[1][0] == "a"]
                x = now[0] if now else c[0]
                pool.remove(x); return x
            ks = nxt[0]; released.add(ks)
            for f in FR:
                if f[1] == ks: pool.append((20*ks+20, regmap[f]))
    npre = len(PRE_SLOTS)
    rest = [f for f in FR[npre:] if f[0] != "o" and f not in LDS_FR]
    ld = S3()
    gpos = 1; STEP = opt("p3step", 5)
    for f in rest:
        e, r = take(gpos); gpos = max(gpos, e); regmap[f] = r
        ld.put(loader.emit(f, r), gpos, gpos + 2); gpos = ld.k + STEP
        assert ld.k + 30 < 20*f[1], (f, ld.k)
    OLD = opt("old", 180)
    assert ld.k < OLD and k_pub < OLD
    ofr = [("o", ks, u) for u in range(4) for ks in range(12, 18)]
    gpos = OLD; early = []
    st12 = Seg(); stamp(st12, 12); ld.block(st12, OLD - 1)
    for f in ofr:
        e, r = take(gpos, vgpr=True)
        gpos = max(gpos, e); regmap[f] = r
        ld.put(loader.emit(f, r), gpos, gpos + 1); gpos = ld.k + opt("ostep", 4)
        if ld.k < 239: early.append(f)
        assert ld.k != 239 and ld.k + 24 < 240 + 30*f[2] + 5*(f[1] - 12), (f, ld.k)
    assert all(f in early for f in ofr[:6])
    print("O loads end", ld.k, "early", len(early), file=sys.stderr)
    lr = S3(k_pub + 1)
    lr.put([I(f"v_add_u32 v{vLP}, s{sLW}, v{vLIN}"), W(vm=("L",)+LDS_FR[-1])], k_pub + 1, 359)
    for i, f in enumerate(LDS_FR):
        e, r = take(max(lr.k, opt("lrat", 140) + 2*i)); regmap[f] = r
        lr.put([I(f"ds_read_b128 {r}, v{vLP} offset:{L_PF + i*1024}", tag=("R",)+f)], max(e, lr.k + 1, opt("lrat", 140) + 2*i), min(20*f[1], 240) - 8)
    print("parked fragments read by", lr.k, file=sys.stderr)
    r0 = lambda f: int(regmap[f][2:].split(":")[0])
    def ocheck(u):
        q = [r0(f) for f in ofr[6*u:6*u+6]]
        return (f"v_max3_u32 v{vP3T}, v{q[0]}, v{q[1]}, v{q[2]}\nv_max3_u32 v{vP3T+1}, v{q[3]}, v{q[4]}, v{q[5]}\n"
                f"v_max_u32 v{vP3T}, v{vP3T}, v{vP3T+1}\nv_cmp_eq_u32 vcc, -1, v{vP3T}")
    def oreload(seg, fs):
        for f in fs:
            seg.e(f"s_add_u32 s98, s{sOPU+f[2]}, {(f[1]-12)*4*32768}\ns_add_u32 s98, s24, s98\ns_addc_u32 s99, s25, 0")
            seg.e(f"global_load_dwordx4 {regmap[f]}, v{vO3}, s[98:99] sc1")
    slow = Seg()
    for u in range(4):
        ck = Seg(); ck.append(W(vm=ofr[6*u+5])); ck.e(ocheck(u)); ck.e(f"s_cbranch_vccnz L_oretry{u}\nL_oback{u}:")
        gaps[239 + 30*u].sec[2] += ck
        slow.e(f"L_oretry{u}:\ns_mov_b32 s{sSPIN}, 0x8000\nL_osp{u}:")
        oreload(slow, ofr[6*u:6*u+6])
        slow.e("s_waitcnt vmcnt(0)"); slow.e(ocheck(u))
        slow.e(f"s_cbranch_vccz L_ook{u}\ns_sub_u32 s{sSPIN}, s{sSPIN}, 1\ns_cbranch_scc0 L_osp{u}\nL_ook{u}:")
        if u == 0: oreload(slow, early[6:])
        slow.e(f"s_branch L_oback{u}")
    SLOW.append(slow)
    ad = Seg(); T = 38
    ad.e(f"""
    s_lshl_b32 s{sTA}, s{sRB}, 2
    s_add_u32 s{sTA}, s{sTA}, s{sWAVE}
    s_mul_i32 s{sTA}, s{sTA}, {16*1280}
    s_mul_i32 s{sTB}, s{sCB}, 160
    s_add_u32 s{sMBX}, s{sTA}, s{sTB}
    s_mov_b32 m0, s{sLW}
    v_lshrrev_b32 v{T}, 4, v{vLIN}
    """)
    for k in range(3):
        ad.e(f"""
        v_add_u32 v{T+1}, {64*k}, v{T}
        v_mul_u32_u24 v{T+2}, 6554, v{T+1}
        v_lshrrev_b32 v{T+2}, 16, v{T+2}
        v_mul_u32_u24 v{T+2}, {1280-160}, v{T+2}
        v_lshl_add_u32 v{vXL+k}, v{T+1}, 4, v{T+2}
        """)
        if k == 2: ad.e(f"v_cmp_gt_u32 vcc, 32, v{T}\nv_mov_b32 v{T+1}, {OOB}\nv_cndmask_b32 v{vXL+k}, v{T+1}, v{vXL+k}, vcc")
        if k: ad.e(f"s_add_u32 m0, s{sLW}, {1024*k}")
        ad.append(I(f"buffer_load_dwordx4 v{vXL+k}, {SX}, s{sMBX} offen lds", tag=("xres",k)))
    mark_m0(ad)
    ad.e(f"""
    v_and_b32 v{T+1}, 15, v{T}
    v_mul_u32_u24 v{T+1}, 160, v{T+1}
    v_lshrrev_b32 v{T}, 4, v{T}
    v_lshl_add_u32 v{T}, v{T}, 3, v{T+1}
    v_add_u32 v{vXA}, s{sLW}, v{T}
    """)
    for r in range(3):
        ad.e(f"""
        s_add_u32 s{sTA}, s{sWAVE}, {3-r}
        s_and_b32 s{sTA}, s{sTA}, 3
        s_mul_i32 s{sTA}, s{sTA}, {LW}
        v_add_u32 v{vRD+r}, s{sTA}, v{vLIN}
        """)
    ch = S3(k_pub + 1)
    ch.put(ad, opt("xat", k_pub + 1), OLD - 2, every=opt("xev", 4))
    ux = Seg(); ux.append(W(vm=("xres", 2)))
    for t in range(5): ux.append(I(f"ds_read_b64 {v(vXD+2*t,2)}, v{vXA} offset:{32*t}", tag=("xr3", t)))
    ch.put(ux, 200, 320)
    ux = Seg(); ux.append(W(lg=("xr3", 4)))
    for t in range(5):
        for h in range(2): ux.e(f"v_lshlrev_b32 v{vXF+4*t+2*h}, 16, v{vXD+2*t+h}\nv_and_b32 v{vXF+4*t+2*h+1}, 0xffff0000, v{vXD+2*t+h}")
    ch.put(ux, ch.k + 8, 320)
    wr = S3(270, 24)
    for u in range(3):
        for t in range(5):
            wr.put([I(f"ds_write_b128 v{vLP}, {a(ACC3[5*u+t],4)} offset:{L_PF + (5*u+t)*1024}", tag=("pw",u,t))], 240 + 30*u + 25 + t + 5, 359)
    fb_ = Seg(); fb_.append(W(lg=0)); fb_.e("s_barrier")
    wr.put(fb_, wr.k + opt("fblat", 5), 359); k_fb = wr.k
    pr = {}
    for f in ofr:
        if f[2] < 3: pool.append((270 + 30*f[2], regmap[f]))
    for t in range(5):
        for r in range(3):
            e, reg = take(k_fb, vgpr=True); assert e <= k_fb; pr[(r,t)] = int(reg[2:].split(":")[0])
            wr.put([I(f"ds_read_b128 {reg}, v{vRD+r} offset:{L_PF + (5*r+t)*1024}", tag=("pr",r,t))], k_fb, 359)
    ps = Seg()
    for t in range(5):
        x = vXF + 4*t
        ps.append(W(lg=("pr",2,t)))
        for e in range(4): ps.e(f"v_add_f32 v{pr[(0,t)]+e}, v{pr[(0,t)]+e}, v{pr[(1,t)]+e}")
        for e in range(4): ps.e(f"v_add_f32 v{x+e}, v{x+e}, v{pr[(2,t)]+e}")
        for e in range(4): ps.e(f"v_add_f32 v{x+e}, v{x+e}, v{pr[(0,t)]+e}")
    wr.cap = 16
    wr.put(ps, wr.k + 4, 359)
    print("final barrier at", k_fb, file=sys.stderr)
    def tg(f): return ("R",)+f if f in LDS_FR else f
    for m, (ks, u, t) in enumerate(order):
        b = ("h" if ks < 12 else "o", ks, u)
        w = None
        if m < 240 and m % 20 == 0:
            ws_ = [("w", ks, tt) for tt in range(5)]
            vm = [f for f in ws_ if f not in LDS_FR] + [("h", ks, uu) for uu in range(4)]
            lg = [tg(f) for f in ws_ if f in LDS_FR]
            w = W(vm=vm, lg=(lg or None))
        elif m == 240: w = W(lg=tg(LDS_FR[-1]))
        if w is not None:
            if m == 0: g.append(w)
            else: gaps[m-1].sec[2].append(w)
        acc = a(ACC3[5*u+t], 4)
        gaps[m].mfma = I(f"v_mfma_f32_16x16x32_bf16 {acc}, {regmap[('w',ks,t)]}, {regmap[b]}, {'0' if ks == 0 else acc}")
    report("phase3", gaps, 0, 360, cap=16)
    XS3 = [int(x) for x in opt("xs3", "").split(",") if x]
    for m, gp in enumerate(gaps):
        if m in XS3: stamp(g, 18 + XS3.index(m))
        g += gp.flat()
    stamp(g, 13)
    for t in range(5):
        x = vXF + 4*t
        for e in range(4): g.e(f"v_accvgpr_read_b32 v{pr[(1,t)]+e}, a{ACC3[15+t]+e}")
        for e in range(4): g.e(f"v_add_f32 v{x+e}, v{x+e}, v{pr[(1,t)]+e}")
        d = vXD + 2*t
        g.e(f"v_cvt_pk_bf16_f32 v{d}, v{x}, v{x+1}\nv_cvt_pk_bf16_f32 v{d+1}, v{x+2}, v{x+3}")
        g.e(f"ds_write_b64 v{vXA}, {v(d,2)} offset:{32*t}")
    for k in range(3): g.append(I(f"ds_read_b128 {v(vXF+4*k,4)}, v{vLP} offset:{1024*k}", tag=("fin", k)))
    for k in range(3):
        g.append(W(lg=("fin", k)))
        g.e(f"buffer_store_dwordx4 {v(vXF+4*k,4)}, v{vXL+k}, {SOUT}, s{sMBX} offen" + opt("outm", ""))
    if STAMPS:
        g.e("s_waitcnt vmcnt(0)")
        stamp(g, 14)
        dump_stamps(g)
    g.e("L_end:\ns_endpgm")
    return g

def dump_stamps(g):
    g.e(f"""
    s_lshl_b32 s{sTA}, s2, 2
    s_add_u32 s{sTA}, s{sTA}, s{sWAVE}
    s_lshl_b32 s{sTA}, s{sTA}, 8
    s_add_u32 s{sTA}, s{sTA}, {WS_T}
    v_mbcnt_lo_u32_b32 v0, -1, 0
    v_mbcnt_hi_u32_b32 v0, -1, v0
    v_lshlrev_b32 v0, 2, v0
    v_accvgpr_read_b32 v1, a{aSTAMP}
    s_nop 1
    v_writelane_b32 v1, s0, 40
    v_writelane_b32 v1, s1, 41
    s_nop 1
    buffer_store_dword v1, v0, {SWS}, s{sTA} offen
    s_waitcnt vmcnt(0)
    """)

def fallback():
    g = Seg()
    g.e("L_fallback:")
    g.e(f"s_mov_b32 s{sSAFE}, 1\ns_waitcnt vmcnt(0) lgkmcnt(0)\ns_barrier")
    wsbase(g, pTW, sQHI)
    g += q_loads()
    for u in range(4): g.e(f"v_mov_b32 v{32+u}, 0xff800000")
    g.e(f"s_sub_u32 s{pK}, s{pK}, 8192\ns_subb_u32 s{pK+1}, s{pK+1}, 0")
    g.e(f"s_sub_u32 s{pTH}, s{pK}, 4096\ns_subb_u32 s{pTH+1}, s{pK+1}, 0\ns_mov_b32 s{sTB}, 32")
    g.e("L_fbloop:")
    b = aKV
    g.e(f"""
    global_load_dwordx4 {a(b,4)}, v{vK1}, {sp(pTH)} sc1
    global_load_dwordx2 {a(b+4,2)}, v{vK2}, {sp(pTH)} sc1
    s_waitcnt vmcnt(0)
    """)
    for u in range(4):
        q = aQ + 6*u
        g.e(f"v_mfma_f32_32x32x16_bf16 v[0:15], {a(b,4)}, {a(q,4)}, 0")
        g.e(f"v_mfma_f32_32x32x8_bf16 v[0:15], {a(b+4,2)}, {a(q+4,2)}, v[0:15]")
        for k in range(8): g.e(f"v_max3_f32 v{32+u}, v{2*k}, v{2*k+1}, v{32+u}")
    g.e(f"""
    s_add_u32 s{pTH}, s{pTH}, 512
    s_addc_u32 s{pTH+1}, s{pTH+1}, 0
    s_sub_u32 s{sTB}, s{sTB}, 1
    s_cmp_lg_u32 s{sTB}, 0
    s_cbranch_scc1 L_fbloop
    """)
    for u in range(4): g.e(f"v_mov_b32 v{36+u}, v{32+u}")
    for u in range(4): g.e(f"v_permlane32_swap_b32 v{32+u}, v{36+u}")
    for u in range(4): g.e(f"v_max_f32 v{32+u}, v{32+u}, v{36+u}")
    g.e(f"ds_write_b128 v{vRW}, v[32:35]\ns_waitcnt lgkmcnt(0)\ns_barrier\nds_read_b128 v[36:39], v{vRR}\ns_waitcnt lgkmcnt(0)")
    g.e(f"v_cmp_lt_u32 vcc, 511, v{vLIN}")
    for u in range(4):
        m = 32 + u; q2 = aQ + 6*u + 4
        g.e(f"""
        v_max_f32 v{m}, v{m}, v{36+(u+2)%4}
        v_sub_f32 v{m}, 0, v{m}
        v_cvt_pk_bf16_f32 v0, v{m}, v{m}
        v_lshlrev_b32 v1, 16, v0
        v_sub_f32 v{m}, v{m}, v1
        v_cvt_pk_bf16_f32 v2, v{m}, v{m}
        v_lshlrev_b32 v3, 16, v2
        v_sub_f32 v{m}, v{m}, v3
        v_cvt_pk_bf16_f32 v4, v1, v3
        v_mov_b32 v6, 0
        v_cvt_pk_bf16_f32 v5, v{m}, v6
        v_accvgpr_read_b32 v6, a{q2}
        v_accvgpr_read_b32 v7, a{q2+1}
        v_cndmask_b32 v6, v6, v4, vcc
        v_cndmask_b32 v7, v7, v5, vcc
        v_accvgpr_write_b32 a{q2}, v6
        v_accvgpr_write_b32 a{q2+1}, v7
        """)
    for t in range(3): g += flat(k_loads(t)) + v_loads(t)
    g.e("s_waitcnt vmcnt(0)\ns_barrier\ns_branch L_att1")
    g += SLOW[0]
    g.e("L_codeend:")
    return g

HEADER = open("header.txt").read()

def mark_m0(lst):
    last = None
    for i in lst:
        if ("s","m0") in i.wr: last = i
        if i.cls == "vmem" and ("s","m0") in i.rd and last is not None and not hasattr_keep(i): i.keep = last
    return lst
def check_m0(path):
    last = None
    for i in path:
        if ("s","m0") in i.wr: last = i
        if i.cls == "vmem" and ("s","m0") in i.rd and hasattr_keep(i): assert i.keep is last, ("m0", i.text, i.keep.text, last.text)
def check_centred(path):
    done = set()
    for i in path:
        if i.op == "v_cvt_pk_bf16_f32" and i.wr[0][1] >= vX: done.add(i.wr[0][1])
        if i.cls == "mfma":
            for r in i.rd:
                if r[0] == "v" and r[1] >= vX: assert r[1] in done, ("not centred", i.text)

def build():
    pro, nw = prologue()
    cls = {c: phase1a(c, nw) for c in "QV"}
    for c in "QV": check_centred(list(pro) + list(cls[c]))
    p1c = phase1c()
    regmap = {}; loader = Loader()
    att = attention(regmap, loader)
    p3 = phase3(regmap, loader)
    fb = fallback()
    tail = Seg(); tail += p1c; tail += att; tail += p3
    log = []
    tot = fix_hazards(pro, log=log)
    for c in "QV":
        ctx = list(pro[-30:]); n0 = len(ctx); path = ctx + list(cls[c]); tot += fix_hazards(path, log=log)
        assert all(x is y for x, y in zip(path[:n0], ctx)); cls[c][:] = path[n0:]
    for c in "QV":
        ctx = list(cls[c][-30:]); n0 = len(ctx); path = ctx + list(tail); tot += fix_hazards(path, log=log)
        assert all(x is y for x, y in zip(path[:n0], ctx)); tail[:] = path[n0:]
    tot += fix_hazards(fb, log=log)
    for c in "QV": resolve_waits(list(pro) + list(cls[c]) + list(tail))
    allins = list(pro) + list(cls['Q']) + list(cls['V']) + list(tail) + list(fb)
    finalize_waits(allins)
    for c in "QV":
        check_m0(list(pro) + list(cls[c]) + list(tail))
        errs = check_loads(list(pro) + list(cls[c]) + list(tail))
        for e in errs[:10]: print("LOAD HAZARD", c, e, file=sys.stderr)
        assert not errs
        errs = check_scc(list(pro) + list(cls[c]) + list(tail))
        for e in errs[:10]: print("SCC HAZARD", c, e, file=sys.stderr)
        assert not errs
    print(f"nop states inserted: {tot}", file=sys.stderr)
    if "--log" in sys.argv:
        for l in log: print(l, file=sys.stderr)
    body = "\n".join(("" if i.cls == "label" else "    ") + i.text for i in allins)
    return HEADER.replace("@@BODY@@", body)

if __name__ == "__main__":
    out = build()
    path = [x for x in sys.argv[1:] if not x.startswith("--")]
    open(path[0] if path else "out.s", "w").write(out)
```

```python
import re

TRANS = ("v_exp_f32","v_log_f32","v_rcp_f32","v_rsq_f32","v_sqrt_f32","v_sin_f32","v_cos_f32","v_exp_f16","v_rcp_f16")

def _regs(tok):
    tok = tok.strip()
    tok = re.sub(r"^-", "", tok)
    m = re.fullmatch(r"abs\((.*)\)", tok) or re.fullmatch(r"\|(.*)\|", tok)
    if m: tok = m.group(1)
    m = re.fullmatch(r"([vas])(\d+)", tok)
    if m: return [(m.group(1), int(m.group(2)))]
    m = re.fullmatch(r"([vas])\[(\d+):(\d+)\]", tok)
    if m: return [(m.group(1), i) for i in range(int(m.group(2)), int(m.group(3))+1)]
    if tok == "vcc": return [("s","vcc")]
    if tok in ("exec", "exec_lo", "exec_hi"): return [("s","exec")]
    if tok == "m0": return [("s","m0")]
    return []

class I:
    __slots__ = ("text","op","cls","rd","wr","tag","cond","wvm","wlg","passes","srcc","comment","n_vm","n_lg","keep")
    def __init__(self, text, tag=None, cond=False, comment=None):
        self.text = text; self.tag = tag; self.cond = cond; self.comment = comment
        self.wvm = None; self.wlg = None; self.n_vm = None; self.n_lg = None
        self.passes = 0; self.srcc = []
        t = text.split(";")[0].strip()
        if t.endswith(":"):
            self.op = "label"; self.cls = "label"; self.rd = []; self.wr = []; return
        if t.startswith("."):
            self.op = "dir"; self.cls = "label"; self.rd = []; self.wr = []; return
        parts = t.split(None, 1)
        op = parts[0]; self.op = op
        rest = parts[1] if len(parts) > 1 else ""
        ops = [o.strip() for o in rest.split(",")] if rest else []
        toks = []
        for o in ops:
            toks.append(o.split()[0] if o.split() else o)
        mods = rest
        rd, wr = [], []
        base = re.sub(r"_e32$|_e64$|_sdwa$|_dpp$", "", op)
        if op.startswith("v_mfma"):
            self.cls = "mfma"
            wr = _regs(toks[0]); rd = _regs(toks[1]) + _regs(toks[2]) + _regs(toks[3])
            self.srcc = _regs(toks[3])
            if "32x32x4_2b" in op: self.passes = 16
            elif "32x32" in op: self.passes = 8
            else: self.passes = 4
        elif op.startswith("v_smfmac"):
            self.cls = "mfma"
            wr = _regs(toks[0]); rd = _regs(toks[0]) + _regs(toks[1]) + _regs(toks[2]) + _regs(toks[3])
            self.srcc = _regs(toks[0]); self.passes = 8 if "32x32" in op else 4
        elif op.startswith("buffer_load") or op.startswith("global_load"):
            self.cls = "vmem"
            if re.search(r"\blds\b", mods) or "_lds_" in op:
                for k in toks: rd += _regs(k)
                rd += [("s","m0")]
            else:
                wr = _regs(toks[0])
                for k in toks[1:]: rd += _regs(k)
        elif op.startswith("buffer_store") or op.startswith("global_store") or op.startswith("buffer_atomic") or op.startswith("global_atomic"):
            self.cls = "vmem"
            for k in toks: rd += _regs(k)
        elif op.startswith("buffer_inv") or op.startswith("buffer_wbl2"):
            self.cls = "vmem"
        elif op.startswith("ds_read") or op.startswith("ds_bpermute") or op.startswith("ds_swizzle"):
            self.cls = "lds"; wr = _regs(toks[0])
            for k in toks[1:]: rd += _regs(k)
        elif op.startswith("ds_"):
            self.cls = "lds"
            for k in toks: rd += _regs(k)
        elif op.startswith("s_load") or op.startswith("s_memtime") or op.startswith("s_memrealtime"):
            self.cls = "smem"; wr = _regs(toks[0])
            for k in toks[1:]: rd += _regs(k)
        elif op == "s_waitcnt": self.cls = "wait"
        elif op == "s_barrier": self.cls = "barrier"
        elif op == "s_nop": self.cls = "nop"
        elif op.startswith("s_cbranch") or op in ("s_branch","s_endpgm","s_setpc_b64"):
            self.cls = "branch"
            if "vcc" in op: rd = [("s","vcc")]
            for k in toks: rd += _regs(k)
        elif op in ("s_sleep","s_setprio"): self.cls = "salu"
        elif op.startswith("s_cmp") or op.startswith("s_bitcmp"):
            self.cls = "salu"
            for k in toks: rd += _regs(k)
        elif op.startswith("s_"):
            self.cls = "salu"; wr = _regs(toks[0])
            for k in toks[1:]: rd += _regs(k)
            if "saveexec" in op: wr += [("s","exec")]
        elif op.startswith("v_"):
            self.cls = "trans" if base in TRANS else "valu"
            if base.startswith("v_cmp"):
                wr = _regs(toks[0])
                for k in toks[1:]: rd += _regs(k)
            elif base in ("v_readfirstlane_b32","v_readlane_b32"):
                wr = _regs(toks[0])
                for k in toks[1:]: rd += _regs(k)
            elif base.startswith("v_permlane") and "swap" in base:
                wr = _regs(toks[0]) + _regs(toks[1]); rd = list(wr)
            elif base in ("v_add_co_u32","v_sub_co_u32","v_addc_co_u32"):
                wr = _regs(toks[0]) + _regs(toks[1])
                for k in toks[2:]: rd += _regs(k)
            else:
                wr = _regs(toks[0])
                for k in toks[1:]: rd += _regs(k)
                if base in ("v_fmac_f32","v_dot2c_f32_bf16"): rd += _regs(toks[0])
                if base == "v_cndmask_b32" and len(toks) == 3: rd += [("s","vcc")]
        else:
            raise ValueError("unknown instr: " + text)
        self.rd = rd; self.wr = wr
    def isdot(self): return self.op.startswith("v_dot2")
    def slots(self):
        if self.cls == "label": return 0
        if self.cls == "nop": return int(self.text.split()[1]) + 1
        return 1
    def cost(self):
        if self.cls == "label": return 0
        if self.cls == "trans" or "permlane" in self.op: return 8
        if self.cls == "mfma": return 8
        if self.cls == "nop": return 4*self.slots()
        return 4

def W(vm=None, lg=None, comment=None):
    i = I("s_waitcnt 0", comment=comment)
    i.wvm = vm; i.wlg = lg
    return i

def resolve_waits(path):
    vm_idx = {}; lg_idx = {}
    vm_n = 0; lg_n = 0
    smem_pending = False
    for ins in path:
        if ins.cls == "vmem":
            if not ins.cond:
                vm_n += 1
                if ins.tag is not None: vm_idx[ins.tag] = vm_n
        elif ins.cls == "lds":
            assert not ins.cond or True
            if not ins.cond:
                lg_n += 1
                if ins.tag is not None: lg_idx[ins.tag] = lg_n
        elif ins.cls == "smem":
            if ins.tag != "warm": smem_pending = True
        elif ins.cls == "wait" and (ins.wvm is not None or ins.wlg is not None):
            if ins.wvm is not None:
                if isinstance(ins.wvm, int): n = ins.wvm
                else:
                    tags = ins.wvm if isinstance(ins.wvm, list) else [ins.wvm]
                    n = min(vm_n - vm_idx[t] for t in tags)
                    assert n >= 0
                    n = min(n, 63)
                ins.n_vm = n if ins.n_vm is None else min(ins.n_vm, n)
            if ins.wlg is not None:
                if isinstance(ins.wlg, int): n = ins.wlg
                else:
                    tags = ins.wlg if isinstance(ins.wlg, list) else [ins.wlg]
                    n = min(lg_n - lg_idx[t] for t in tags)
                    n = min(n, 15)
                    assert not smem_pending, "counted lgkm wait with smem pending"
                if n == 0: smem_pending = False
                ins.n_lg = n if ins.n_lg is None else min(ins.n_lg, n)

def finalize_waits(instrs):
    for ins in instrs:
        if ins.cls == "wait" and (ins.wvm is not None or ins.wlg is not None):
            parts = []
            if ins.wvm is not None:
                assert ins.n_vm is not None, ("unresolved", ins.wvm); parts.append(f"vmcnt({ins.n_vm})")
            if ins.wlg is not None:
                assert ins.n_lg is not None, ("unresolved", ins.wlg); parts.append(f"lgkmcnt({ins.n_lg})")
            ins.text = "s_waitcnt " + " ".join(parts)

def _ov(a, b):
    if not a or not b: return False
    return not set(a).isdisjoint(b)

def need_states(p, c):
    n = 0
    pv = p.cls in ("valu","trans"); cv = c.cls in ("valu","trans")
    pw_vec = [r for r in p.wr if r[0] in "va"]
    pw_s = [r for r in p.wr if r[0] == "s"]
    if pv:
        if c.cls == "mfma" and _ov(pw_vec, c.rd): n = max(n, 2)
        if cv and c.op.startswith("v_permlane") and _ov(pw_vec, c.rd): n = max(n, 2)
        if cv and (c.op.startswith("v_readfirstlane") or c.op.startswith("v_readlane")) and _ov(pw_vec, c.rd): n = max(n, 1)
        if cv and "dpp" in c.text and _ov(pw_vec, c.rd): n = max(n, 2)
        if pw_s:
            if cv and (_ov(pw_s, c.rd)): n = max(n, 2)
            if c.cls == "vmem" and _ov(pw_s, c.rd): n = max(n, 5)
            if c.cls == "mfma" and ("s","exec") in pw_s: n = max(n, 4)
            if c.cls in ("salu","branch") and _ov(pw_s, c.rd): n = max(n, 1)
        if p.cls == "trans" and c.cls == "valu" and _ov(pw_vec, c.rd): n = max(n, 1)
        if p.cls == "trans" and c.cls in ("vmem","lds") and _ov(pw_vec, c.rd): n = max(n, 1)
        if p.isdot():
            if c.isdot() and c.op == p.op:
                srcab = c.rd[:]
                toks = [t.strip().split()[0] for t in c.text.split(None,1)[1].split(",")]
                ab = _regs(toks[1]) + _regs(toks[2])
                if _ov(pw_vec, ab): n = max(n, 3)
            elif c.cls in ("valu","trans","mfma","vmem","lds") and (_ov(pw_vec, c.rd) or _ov(pw_vec, c.wr)): n = max(n, 3)
    if p.cls == "salu":
        if ("s","m0") in p.wr and c.cls == "vmem" and ("s","m0") in c.rd: n = max(n, 1)
    if p.cls == "vmem" and re.search(r"store_dwordx[34]", p.op):
        toks = [t.strip().split()[0] for t in p.text.split(None,1)[1].split(",")]
        data = _regs(toks[0]) if p.op.startswith("buffer") else _regs(toks[1])
        if _ov(data, c.wr): n = max(n, 2 if cv else 1)
    if p.cls == "mfma":
        P = p.passes
        tab = {4:(6,8,3), 8:(10,12,7), 16:(18,20,15)}[P]
        if c.cls == "mfma":
            toks = [t.strip().split()[0] for t in c.text.split(None,1)[1].split(",")]
            ab = _regs(toks[1]) + _regs(toks[2]) + (_regs(toks[3]) if c.op.startswith("v_smfmac") else [])
            if _ov(p.wr, ab): n = max(n, tab[1])
            if _ov(p.wr, c.srcc):
                if not (c.srcc == p.wr and c.passes == p.passes): n = max(n, tab[0])
            elif _ov(p.wr, c.wr):
                n = max(n, tab[0])
        elif cv or c.cls in ("vmem","lds"):
            if _ov(p.wr, c.rd) or _ov(p.wr, c.wr): n = max(n, tab[1])
            if cv and _ov(p.srcc, c.wr): n = max(n, tab[2])
    return n

def fix_hazards(path, window=24, log=None):
    out = []
    total = 0
    for c in path:
        if c.cls != "label":
            dist = 0; need = 0
            for p in reversed(out):
                if p.cls == "label": continue
                r = need_states(p, c)
                if r - dist > need: need = r - dist; why = p
                dist += p.slots()
                if dist >= window: break
            if need > 0:
                total += need
                if log is not None: log.append((need, why.text, c.text))
                k = need
                while k > 0:
                    m = min(k, 16); out.append(I(f"s_nop {m-1}")); k -= m
        out.append(c)
    path[:] = out
    return total

def check_loads(path):
    vmq = []
    lgq = []
    errs = []
    for ins in path:
        if ins.cls == "wait":
            m = re.search(r"vmcnt\((\d+)\)", ins.text)
            if m:
                n = int(m.group(1)); vmq = vmq[len(vmq)-n:] if n < len(vmq) else vmq
                if n == 0: vmq = []
            m = re.search(r"lgkmcnt\((\d+)\)", ins.text)
            if m:
                n = int(m.group(1))
                if n == 0: lgq = []
                elif n < len(lgq): lgq = lgq[len(lgq)-n:]
            continue
        if ins.cls == "label": continue
        touched = set(ins.rd) | set(ins.wr)
        for q in (vmq, lgq):
            for o in q:
                if o.wr and not touched.isdisjoint(o.wr):
                    if ins.cls == o.cls and set(ins.rd).isdisjoint(o.wr): continue
                    errs.append((o.text, ins.text))
        if ins.cls == "vmem" and not ins.cond: vmq.append(ins)
        elif ins.cls in ("lds","smem") and not ins.cond and ins.tag != "warm": lgq.append(ins)
    return errs


SCC_READ = ("s_addc_u32","s_subb_u32","s_cselect_b32","s_cselect_b64","s_cbranch_scc0","s_cbranch_scc1")
def scc_reads(i): return i.op in SCC_READ
def scc_writes(i):
    if i.cls != "salu": return False
    return not (i.op.startswith("s_mov") or i.op.startswith("s_mul_i32") or i.op.startswith("s_cselect") or i.op in ("s_getpc_b64","s_sleep","s_setprio","s_mul_hi_u32"))
def scc_live_before(lst, idx):
    for i in lst[idx:]:
        if scc_reads(i): return True
        if scc_writes(i): return False
    return False
def mark_scc(lst):
    last = None
    for i in lst:
        if scc_reads(i) and not hasattr_keep(i): i.keep = last
        if scc_writes(i): last = i
def hasattr_keep(i):
    try: return i.keep is not None
    except AttributeError: return False
def check_scc(path):
    last = None; errs = []
    for i in path:
        if scc_reads(i) and hasattr_keep(i) and i.keep is not last: errs.append((i.text, i.keep.text, last.text if last else None))
        if scc_writes(i): last = i
    return errs
```

```python
import sys, math, struct, collections
from asmlib import *

STAMPS = "--stamps" in sys.argv
def opt(name, default):
    for a_ in sys.argv:
        if a_.startswith(f"--{name}="): return type(default)(a_.split("=")[1])
    return default
STOP = opt("stop", "")
XS = [int(x) for x in opt("xs", "").split(",") if x]

def f2u(x): return struct.unpack("<I", struct.pack("<f", x))[0]

WS_Q = 0x000000; WS_K = 0x280000; WS_V = 0x500000; WS_C = 0x780000
WS_O = 0x800000
WS_H = 0xB00000
WS_W = 0x1100000
WS_F = 0x1400000
WS_T = 0x1410000
WS_SIZE = 0x1480000
F_QKV = WS_F; F_H = WS_F + 0x2000; F_O = WS_F + 0x4000
OOB = 0x40000000
LOG2E = 1.4426950408889634
QSCALE = (20 ** -0.5) * LOG2E

L_RING = 0; NSLOT = 8; L_X = 8*16384; L_J = 9*16384
XSLOT = [8, 9, 7, 6, 8, 9, 7, 6, 8, 9]
WSLOT = [0,1,2,3,4,5,0,1,2,3, 4,5,6,7,0, 1,2,3,4,5,6,0,1,2,3]
L_CS = [L_X + 1024, L_X + 3072, L_X + 4096 + 1024]
LW = 40960; L_PF = 6144; NLPF = 33; L_VOTE = LW - 1024

sWAVE=3; sXCD=4; sLOC=5; sT0=6; sT1=7
SX="s[8:11]"; SWS="s[24:27]"; SOUT="s[28:31]"; SDBG="s[32:35]"; SJ="s[36:39]"
pW=12
sMB=40; sJ=41; sWB=42; pX=44
sSL=[47,48,49,50,51,52,62,63,53,54]
sC11=55
sEB=56
sHB=59
sSC=61
sP=64
sNON=84; sTA=85; sTB=86; sTC=87
sHD=88; sQB=89; sKH=90; sJS=91
sFLQ=95; sJO=78
pK=64; pV=66; pQ=68; pTW=70; pTH=72
sWPG=[74,17,18,19]; sHPG=[75,56,57,61]
sOPU=12; sOS2=16
sWP=74; sHP=75; sOP=76; sOST=77; sFL=78; sMBX=79; sWP2=80; sRB=81; sCB=82; sFO=83
sSAFE=43; sSPIN=44; sLW=45; sQHI=46

vLANE=1; vXLD=84; vXR=88; vDH=4; vDQ=8; vDG=10; vEP=16; vH=18; vIDX=17; vCW=0; vCR=39
vTR=[[12,13],[14,15],[6,7],[2,3]]; vTH=[40,41,42,43]
vJK=19; vJST=23; vJTR=24; vCST=25; vNM=26; vR=27; vS=28; vSG=29; vSCL=30; vNON=33; vACC=34; vZERO=37; vPA=38
vLN=40; vR16=48; vTMP=64; vX=96
vK1=48; vO3=49; vK2=50; vQ2=51; vVL=52; vLIN=53; vH3=54; vOSA=58; vRW=60; vRR=61; vFH=62; vFO=63
aA=0; aB=64; aC=96; aWF=160; NWF=10
aSEL=242; aNM=246; aRS=250; aD=[[216,220],[212],[0,4]]; aCS=[224,224,24]; aXF=[8,16]
aO=0; aQ=64; aKV=200; aSTAMP=199; aST=[255]

def v(n, k=1): return f"v{n}" if k == 1 else f"v[{n}:{n+k-1}]"
def a(n, k=1): return f"a{n}" if k == 1 else f"a[{n}:{n+k-1}]"
def sp(n): return f"s[{n}:{n+1}]"

class Seg(list):
    def e(self, text, **kw):
        for t in text.strip().split("\n"):
            t = t.strip()
            if t: self.append(I(t, **kw))
        mark_scc(self)
        return self

def stamp(seg, k):
    if not STAMPS: return
    seg.e(f"s_memrealtime s[96:97]" if "--rt" in sys.argv else f"s_memtime s[96:97]")
    seg.append(W(lg=0))
    seg.e(f"s_mov_b64 exec, {1<<k}\nv_accvgpr_write_b32 a{aST[0]}, s96\ns_mov_b64 exec, -1")
    if k in (0, 14):
        seg.e(f"s_memrealtime s[96:97]")
        seg.append(W(lg=0))
        seg.e(f"s_mov_b64 exec, {1<<(16 if k == 0 else 17)}\nv_accvgpr_write_b32 a{aST[0]}, s96\ns_mov_b64 exec, -1")

def srd(seg, S, ptr, size):
    b = int(S[2:].split(":")[0])
    seg.e(f"s_mov_b32 s{b}, s{ptr}\ns_mov_b32 s{b+1}, s{ptr+1}\ns_mov_b32 s{b+2}, {size}\ns_mov_b32 s{b+3}, 0x00020000")

class Gap:
    def __init__(self, mfma):
        self.mfma = mfma; self.sec = [[], [], []]; self.ext = []; self.end = []; self.blk = False
    def bonus(self): return sum(4*i.passes - 8 for i in self.ext if i.cls == "mfma")
    def flat(self):
        head = ([self.mfma] if self.mfma is not None else []) + self.sec[0] + self.sec[1]
        k = len(self.sec[2])
        if self.ext and not self.blk:
            s2 = self.sec[2]
            while k > 0:
                self.sec[2] = s2[:k-1]
                if gap_cost(self) < 28: break
                k -= 1
            self.sec[2] = s2
        return head + self.sec[2][:k] + self.ext + self.sec[2][k:] + self.end
def section(i):
    if i.cls in ("vmem", "lds"): return 1
    if i.cls in ("valu", "trans"): return 2
    return 0
class Chain:
    def __init__(self, gaps): self.gaps = gaps; self.k = 0; self.last = 0
    def put(self, group, g0, g1):
        tot = sum(i.cost() for i in group) or 1
        acc = 0
        for i in group:
            want = g0 + min(g1-g0-1, int(acc * (g1-g0) / tot))
            if want > self.k and not scc_reads(i): self.k = want; self.last = 0
            sec = section(i)
            if sec < self.last: self.k += 1
            self.gaps[self.k].sec[sec].append(i); self.last = sec
            acc += i.cost()
        return self.k
    def block(self, group, k):
        if k > self.k: self.k = k
        self.gaps[self.k].sec[2] += list(group); self.last = 2

def gap_cost(gp, base=8):
    c = base if gp.mfma is not None else 0
    ns = 0
    for i in gp.sec[0]:
        if i.cls == "barrier": c += 33
        else: ns += 1
    c += 4*max(0, ns - 1)
    for i in gp.sec[1]: c += mem_cost(i)
    for i in gp.sec[2]: c += (33 if i.cls == "barrier" else 16 if i.cls == "vmem" else 12 if i.cls == "branch" else i.cost())
    return c
def mem_cost(i):
    if i.cls == "lds": return 16 if "write" in i.op else 4
    if "store" in i.op: return 16
    return 4 if i.op.startswith("global") else 8
class Stream:
    stores = []
    def __init__(self, gaps, k=0, cap=32, base=8): self.gaps = gaps; self.k = k; self.last = 0; self.cap = cap; self.base = base
    def put(self, group, g0, dead, every=0, stsp=0, free=False):
        for i in group:
            sec = section(i); k = self.k
            if g0 > k: k = g0; self.last = 0
            if sec < self.last: k += 1
            if i.cls == "vmem":
                if every: k = max(k, getattr(self, "lastv", -99) + every)
                if stsp and "store" in i.op and Stream.stores: k = max(k, Stream.stores[-1] + stsp)
            d = dead(i) if callable(dead) else dead
            if sec < self.last and self.k >= d: sec = self.last
            k = max(min(k, d), self.k + (1 if sec < self.last else 0))
            while k < d:
                gp = self.gaps[k]; c0 = gap_cost(gp, self.base); gp.sec[sec].append(i); c = gap_cost(gp, self.base); gp.sec[sec].pop()
                if (c <= self.cap + gp.bonus() or c0 <= self.base) and not (free and sec == 0 and c > c0): break
                k += 1
            if k != self.k: self.last = 0
            self.gaps[k].sec[sec].append(i); self.k = k; self.last = sec
            if i.cls == "vmem":
                self.lastv = k
                if "store" in i.op: Stream.stores.append(k)
        return self.k
    def block(self, group, k):
        if k > self.k: self.k = k
        self.gaps[self.k].sec[2] += list(group); self.last = 2; self.gaps[self.k].blk = True
def report(name, gaps, lo, hi, cap=32, base=8):
    xm = lambda l: sum(4*i.passes if i.cls == "mfma" else 4.75 if i.isdot() else 0 for i in l)
    t = sum(max(cap + xm(gaps[n].ext), gap_cost(gaps[n], base) + 8*sum(i.cls == "mfma" for i in gaps[n].ext)) + xm(gaps[n].end) for n in range(lo, hi))
    u = sum(gap_cost(gaps[n], base) for n in range(lo, hi))
    print(f"model {name}: gaps {lo}..{hi} ideal {cap*(hi-lo)} predicted {t} issue {u}", file=sys.stderr)

def weave(main, fill, per):
    out = Seg(); fill = list(fill)
    for m in main:
        out.append(m); out += fill[:per]; fill = fill[per:]
    out += fill
    return out

def dma_stage(sig):
    if sig >= 25: return []
    p = 0 if sig < 10 else (1 if sig < 15 else 2)
    out = Seg()
    vd = (vDQ, vDH, vDG)[p]
    adv = (64*3840, 128*3072, 64*3072)[p]
    out.e(f"s_mov_b32 m0, s{sSL[WSLOT[sig]]}")
    for src in range(2):
        for r in range(2):
            out.append(I(f"global_load_lds_dwordx4 v{vd+r}, {sp(pW+4*p+2*src)} offset:{src*2048+r*1024}", tag=("dma", sig, src, r)))
    if sig not in (9, 14, 24): out.e(f"v_add_u32 v{vd}, {adv}, v{vd}\nv_add_u32 v{vd+1}, {adv}, v{vd+1}")
    return mark_m0(out)
def dma_tag(sig): return ("dma", sig, 1, 1)

def dots(cb):
    out = Seg()
    out.append(W(lg=("xr", cb, 3)))
    for h in range(2): out.append(colsum(aRS, v(vX + 16*cb + 8*h, 8)))
    for r in range(16):
        x = vX + 16*cb + r
        out.e(f"v_dot2_f32_bf16 v{vACC+(r%4)}, v{x}, v{x}, v{vACC+(r%4)}")
    return out
def colsum(d, src):
    return I(f"v_smfmac_f32_16x16x64_bf16 {a(d,4)}, {a(aSEL,4)}, {src}, v{vIDX}")
def x_dma(cb):
    out = Seg()
    out.e(f"s_mov_b32 m0, s{sSL[XSLOT[cb]]}")
    for rg in range(4): out.append(I(f"global_load_lds_dwordx4 v{vXLD+rg}, {sp(pX)} offset:{rg*1024}", tag=("x", cb, rg)))
    if cb < 9:
        for rg in range(4): out.e(f"v_add_u32 v{vXLD+rg}, 128, v{vXLD+rg}")
    return mark_m0(out)
def x_reads(cb):
    off = (XSLOT[cb] - 2)*16384; hi = off >= 65536
    return [I(f"ds_read_b128 {v(vX+16*cb+4*jj,4)}, v{vXR+jj+(4 if hi else 0)} offset:{off % 65536}", tag=("xr", cb, jj)) for jj in range(4)]
def mix(g, loads, fill):
    fill = list(fill); n = len(loads)
    for i, grp in enumerate(loads):
        g += grp[:-1]
        if grp[:-1] and grp[-2].wr == [("s","m0")] and fill and fill[0].cls in ("salu","valu") and not scc_live_before(fill, 0): g.append(fill.pop(0))
        k = len(fill) // (n - i)
        g.append(grp[-1])
        while 0 < k < len(fill) and scc_live_before(fill, k): k += 1
        if i + 1 < n and loads[i+1][:-1]:
            while k < len(fill) and scc_live_before(fill, k): k += 1
        g += fill[:k]; fill = fill[k:]
    g += fill
def groups(seg):
    out = []; cur = []
    for i in seg:
        cur.append(i)
        if i.cls == "vmem": out.append(cur); cur = []
    return out, cur

TCH = [tuple(int(y) for y in x.split(":")) for x in opt("tch", "2:4:-2,6:4:17").split(",") if x]
TXR = 2 if opt("txr", 1) == 1 else 8
vTX = 44; vTW = 45; vTG = 46
def masked_loads(lst):
    o = Seg(); cur = None
    for n, ld in lst:
        if n != cur: o.e(f"s_mov_b64 exec, {(1 << n) - 1}"); cur = n
        o.append(ld)
    o.e("s_mov_b64 exec, -1")
    return o
def touch(k):
    o = masked_loads([(TXR*TCH[k][1], I(f"global_load_dword a210, v{vTX}, {sp(sP)} offset:{TCH[k][0]*128}", tag="pf")),
                      (4*TCH[k][1], I(f"global_load_dword a211, v{vTW}, {sp(sP+2)}", tag="pf"))])
    if k + 1 < len(TCH): o.e(f"v_add_u32 v{vTW}, {(TCH[k+1][0] - TCH[k][0])*64*3840}, v{vTW}")
    assert TCH[k][0] + TCH[k][1] <= 10
    return o
def grp(*segs):
    out = []; carry = []
    for sg_ in segs:
        gr, tl = groups(sg_); gr[0] = carry + gr[0]; out += gr; carry = tl
    return out, carry
def prologue():
    g = Seg()
    g.e(f"""
    s_cmp_ge_u32 s2, 256
    s_cbranch_scc1 L_end
    """)
    if STAMPS: g.e(f"v_accvgpr_write_b32 a{aST[0]}, 0")
    stamp(g, 0)
    g.e(f"""
    s_load_dwordx16 s[64:79], s[0:1], 0
    s_load_dwordx4 s[80:83], s[0:1], 64
    s_getpc_b64 s[36:37]
    L_pc0:
    s_lshr_b32 s{sLOC}, s2, 3
    s_mov_b32 s38, L_codeend-L_pc0
    s_mov_b32 s39, 0x00020000
    s_lshl_b32 s{sT0}, s{sLOC}, 12
    v_lshlrev_b32 v64, 4, v0
    """)
    CP = opt("cp0", 0)
    if CP == 0: g.append(I(f"buffer_load_dwordx4 a[200:203], v64, {SJ}, s{sT0} offen", tag="code"))
    else: g.e(f"v_add_u32 v47, s{sT0}, v64")
    cq = f2u(QSCALE); t32 = 98; tb = 99
    PF = opt("pf", 12)
    g.e(f"""
    v_and_b32 v{vLANE}, 63, v0
    v_lshrrev_b32 v0, 6, v0
    s_and_b32 s{sXCD}, s2, 7
    v_readfirstlane_b32 s{sWAVE}, v0
    s_and_b32 s{sT0}, s{sXCD}, 1
    s_lshl_b32 s{sT0}, s{sT0}, 3
    s_and_b32 s{sT1}, s{sLOC}, 7
    s_add_u32 s{sMB}, s{sT0}, s{sT1}
    v_lshrrev_b32 v64, 3, v{vLANE}
    v_and_b32 v65, 7, v{vLANE}
    v_xor_b32 v66, v64, v65
    v_lshlrev_b32 v66, 4, v66
    v_mul_u32_u24 v{vXLD}, 1280, v64
    v_add_u32 v{vXLD}, v{vXLD}, v66
    v_add_u32 v{vXLD+1}, {10240-1024}, v{vXLD}
    v_xor_b32 v67, 1, v64
    v_xor_b32 v66, 16, v66
    v_mul_u32_u24 v67, 1280, v67
    v_add_u32 v67, v67, v66
    v_add_u32 v{vXLD+2}, {20480-2048}, v67
    v_add_u32 v{vXLD+3}, {30720-3072}, v67
    s_lshl_b32 s{sWB}, s{sWAVE}, 12
    s_lshl_b32 s{t32}, s{sMB}, 2
    s_add_u32 s{t32}, s{t32}, s{sWAVE}
    s_mul_i32 s{pX}, s{t32}, 40960
    s_lshr_b32 s{sT0}, s{sXCD}, 1
    s_lshl_b32 s{sT0}, s{sT0}, 2
    s_lshr_b32 s{sT1}, s{sLOC}, 3
    s_add_u32 s{sJ}, s{sT0}, s{sT1}
    v_lshlrev_b32 v66, 4, v65
    v_lshlrev_b32 v67, 1, v64
    v_and_b32 v67, 4, v67
    v_xor_b32 v67, v65, v67
    v_lshlrev_b32 v67, 4, v67
    v_mul_u32_u24 v{vDQ}, 3840, v64
    v_add_u32 v{vDQ}, v{vDQ}, v67
    v_add_u32 v{vDQ+1}, {8*3840-1024}, v{vDQ}
    s_min_u32 s{sT0}, s{sJ}, 14
    s_lshl_b32 s{sT1}, s{sT0}, 8
    s_mul_i32 s{tb}, s{sWAVE}, {16*3840}
    s_add_u32 s{pW}, s{sT1}, s{tb}
    """)
    for i in (8, 0, 9, 1): g.e(f"s_add_u32 s{sSL[i]}, s{sWB}, {L_RING + i*16384}")
    ta = Seg()
    if TCH:
        R = TXR
        ta.e(f"""
        s_lshl_b32 s{sT0}, s{sLOC}, 2
        s_add_u32 s{sT0}, s{sT0}, s{sWAVE}
        s_lshr_b32 s{sT1}, s{sXCD}, 1
        s_lshl_b32 s100, s{sT1}, 10
        v_lshrrev_b32 v75, 2, v{vLANE}
        v_and_b32 v74, 3, v{vLANE}
        v_mul_u32_u24 v75, {64*3840}, v75
        s_and_b32 s99, s{sT0}, 1
        s_lshl_b32 s99, s99, 9
        s_add_u32 s100, s100, s99
        v_lshl_add_u32 v74, v74, 7, s100
        v_min_u32 v74, 3712, v74
        s_lshr_b32 s99, s{sT0}, 1
        s_mul_i32 s99, s99, 3840
        s_add_u32 s99, s99, {TCH[0][0]*64*3840}
        v_add3_u32 v{vTW}, v74, v75, s99
        s_lshl_b32 s{sT1}, s{sT1}, 7
        {"s_add_u32 s%d, s%d, s%d" % (sT0, sT0, sT1) if R == 2 else ""}
        s_mul_i32 s{sT0}, s{sT0}, {R*1280}
        s_and_b32 s{sT1}, s{sXCD}, 1
        s_mul_i32 s{sT1}, s{sT1}, {1024*1280}
        s_add_u32 s{sT0}, s{sT0}, s{sT1}
        v_and_b32 v75, {R-1}, v{vLANE}
        v_mul_u32_u24 v75, 1280, v75
        v_lshrrev_b32 v74, {R.bit_length() - 1}, v{vLANE}
        v_lshl_add_u32 v74, v74, 7, v75
        v_add_u32 v{vTX}, s{sT0}, v74
        """)
    f = Seg()
    for i in range(2, 8): f.e(f"s_add_u32 s{sSL[i]}, s{sWB}, {L_RING + i*16384}")
    f.e(f"""
    s_mov_b32 s{sC11}, 0x3F803F80
    v_lshrrev_b32 v70, 5, v{vLANE}
    v_and_b32 v71, 31, v{vLANE}
    v_and_b32 v72, 7, v71
    v_lshrrev_b32 v73, 3, v71
    v_lshrrev_b32 v74, 1, v73
    v_xor_b32 v74, v72, v74
    v_lshlrev_b32 v74, 7, v74
    v_lshl_add_u32 v73, v73, 10, v74
    s_add_u32 s{sT0}, s{sWB}, 32768
    v_add_u32 v73, s{sT0}, v73
    v_and_b32 v74, 15, v{vLANE}
    v_lshrrev_b32 v75, 2, v74
    v_lshlrev_b32 v69, 6, v75
    v_lshl_add_u32 v69, v70, 9, v69
    v_lshlrev_b32 v75, 7, v75
    v_lshl_add_u32 v75, v70, 10, v75
    v_and_b32 v76, 3, v74
    v_lshlrev_b32 v76, 3, v76
    v_and_b32 v77, 16, v{vLANE}
    v_lshl_add_u32 v76, v77, 1, v76
    v_add_u32 v69, v69, v76
    v_and_b32 v77, 8, v74
    v_lshlrev_b32 v77, 3, v77
    v_xor_b32 v76, v76, v77
    v_add_u32 v76, v75, v76
    """)
    for jj in range(4):
        f.e(f"""
        s_add_u32 s{sT0}, s{sWAVE}, {jj}
        s_and_b32 s{sT0}, s{sT0}, 3
        s_lshl_b32 s{sT1}, s{sT0}, 12
        v_lshl_add_u32 v74, s{sT0}, 1, v70
        v_add_u32 v{vTR[jj][0]}, s{sT1}, v76
        s_and_b32 s{sT1}, s{sT0}, 1
        s_mul_i32 s{sT1}, s{sT1}, {1024 - 2048}
        v_xor_b32 v75, v72, v74
        s_lshl_b32 s{sT0}, s{sT0}, 11
        s_add_u32 s{sT0}, s{sT0}, s{sT1}
        s_add_u32 s{sT0}, s{sT0}, {65536*LEVEL0[('h', jj)]}
        v_xor_b32 v{vTR[jj][1]}, 64, v{vTR[jj][0]}
        v_lshl_add_u32 v{vXR+jj}, v75, 4, v73
        v_add_u32 v{vTH[jj]}, s{sT0}, v69
        v_add_u32 v{vXR+4+jj}, 65536, v{vXR+jj}
        """)
    f.e(f"""
    v_mov_b32 v{vACC}, 0
    v_mov_b32 v{vACC+1}, 0
    v_mov_b32 v{vACC+2}, 0
    v_mov_b32 v{vACC+3}, 0
    v_lshrrev_b32 v74, 2, v{vLANE}
    v_xor_b32 v74, v74, v{vLANE}
    v_and_b32 v74, 8, v74
    v_and_b32 v75, 6, v{vLANE}
    v_or_b32 v74, v74, v75
    v_mov_b32 v75, s{sC11}
    v_cmp_eq_u32 vcc, 0, v74
    v_and_b32 v{vIDX}, 1, v{vLANE}
    v_mul_u32_u24 v{vIDX}, 0xaaaa, v{vIDX}
    v_cndmask_b32 v77, 0, v75, vcc
    v_cmp_eq_u32 vcc, 4, v74
    v_add_u32 v{vIDX}, 0x4444, v{vIDX}
    v_accvgpr_write_b32 a{aSEL}, v77
    v_cndmask_b32 v75, 0, v75, vcc
    v_accvgpr_write_b32 a{aSEL+1}, v77
    v_accvgpr_write_b32 a{aSEL+2}, v75
    v_accvgpr_write_b32 a{aSEL+3}, v75
    """)
    for d in [aRS] + aD[0]:
        for k in range(4): f.e(f"v_accvgpr_write_b32 a{d+k}, 0")
    PRE = opt("pre", 0)
    fc = Seg(); fc += ta; fc += f
    while PRE < len(fc) and scc_live_before(fc, PRE): PRE += 1
    g += fc[:PRE]; fc = fc[PRE:]
    g.append(W(lg=0))
    if "--xsp" in sys.argv: stamp(g, 28)
    g.e(f"""
    s_add_u32 s{pX}, s{sP}, s{pX}
    s_addc_u32 s{pX+1}, s{sP+1}, 0
    s_add_u32 s{pW}, s{sP+2}, s{pW}
    s_addc_u32 s{pW+1}, s{sP+3}, 0
    """)
    if opt("tw", 1): g += masked_loads([(1, I(f"global_load_dword a211, v{vDQ}, {sp(pW)}", tag="pf"))])
    g += x_dma(0)
    g.e(f"""
    s_sub_u32 s{pW+2}, s{pW}, {2048-128}
    s_subb_u32 s{pW+3}, s{pW+1}, 0
    """)
    first = Seg()
    first += dma_stage(0)[:5]
    first += x_dma(1)[:5]; first += dma_stage(0)[5:]
    first += dma_stage(1)[:5]; first += x_dma(1)[5:]; first += dma_stage(1)[5:]
    if CP == 1: g.append(I(f"buffer_load_dwordx4 a[200:203], v47, {SJ}, 0 offen", tag="code"))
    if CP == 2: first.append(I(f"buffer_load_dwordx4 a[200:203], v47, {SJ}, 0 offen", tag="code"))
    for k_ in range(len(TCH)):
        if TCH[k_][2] == -2: first += touch(k_)
    f = Seg()
    srd(f, SX, sP+0, 2621440)
    f.e("s_add_u32 s0, s36, L_p1c-L_pc0\ns_addc_u32 s1, s37, 0")
    srd(f, SWS, sP+18, WS_SIZE); srd(f, SOUT, sP+14, 2621440); srd(f, SDBG, sP+16, 256)
    f.e(f"""
    v_mul_u32_u24 v{vDG}, 3072, v64
    v_add_u32 v{vDG}, v{vDG}, v67
    v_add_u32 v{vDG+1}, {8*3072-1024}, v{vDG}
    v_lshrrev_b32 v67, 2, v{vLANE}
    v_mul_u32_u24 v67, 3072, v67
    v_and_b32 v68, 3, v{vLANE}
    v_lshl_add_u32 v{vDH}, v68, 4, v67
    v_add_u32 v{vDH+1}, {16*3072-1024}, v{vDH}
    v_lshrrev_b32 v74, 4, v71
    v_mul_u32_u24 v74, 49152, v74
    v_and_b32 v75, 15, v71
    v_lshlrev_b32 v75, 4, v75
    v_lshl_add_u32 v75, v70, 8, v75
    v_add_u32 v{vH}, v74, v75
    s_min_u32 s{sT0}, s{sJ}, 14
    s_lshl_b32 s{sT1}, s{sT0}, 19
    s_cmp_lt_u32 s{sJ}, 10
    s_cselect_b32 s{tb}, 9, 8
    s_lshl_b32 s{tb}, s{t32}, s{tb}
    s_add_u32 s{sEB}, s{sT1}, s{tb}
    s_add_u32 s{sEB+1}, s{sEB}, {1<<18}
    s_cmp_lt_u32 s{sJ}, 5
    s_cselect_b32 s{sSC}, {cq}, 1.0
    s_and_b32 s{sT0}, s{sJ}, 3
    s_lshl_b32 s{sT0}, s{sT0}, 2
    s_lshr_b32 s{sT1}, s{sJ}, 2
    s_add_u32 s{sT1}, s{sT0}, s{sT1}
    s_lshr_b32 s{sT0}, s{sT1}, 1
    s_mul_i32 s{sT0}, s{sT0}, 3
    s_and_b32 s{sT1}, s{sT1}, 1
    s_mul_i32 s{t32}, s{t32}, {96*1024}
    s_add_u32 s{t32}, s{t32}, {WS_H}
    s_add_u32 s{sTA}, s{sT0}, s{sT1}
    s_lshl_b32 s{sTB}, s{sTA}, 7
    s_mul_i32 s{tb}, s{sWAVE}, {16*3072}
    s_add_u32 s{sTB}, s{sTB}, s{tb}
    s_add_u32 s{pW+8}, s{sP+8}, s{sTB}
    s_addc_u32 s{pW+9}, s{sP+9}, 0
    s_add_u32 s{pW+10}, s{sP+10}, s{sTB}
    s_addc_u32 s{pW+11}, s{sP+11}, 0
    s_sub_u32 s{pW+10}, s{pW+10}, 2048
    s_subb_u32 s{pW+11}, s{pW+11}, 0
    s_lshl_b32 s{sTB}, s{sTA}, 11
    s_add_u32 s{sHB+1}, s{t32}, s{sTB}
    s_lshl_b32 s{sTA}, s{sT0}, 1
    s_add_u32 s{sTA}, s{sTA}, s{sT1}
    s_add_u32 s{sTA}, s{sTA}, 4
    s_lshl_b32 s{sTB}, s{sTA}, 6
    s_lshl_b32 s{tb}, s{tb}, 1
    s_add_u32 s{sTB}, s{sTB}, s{tb}
    s_add_u32 s{pW+4}, s{sP+8}, s{sTB}
    s_addc_u32 s{pW+5}, s{sP+9}, 0
    s_add_u32 s{pW+6}, s{sP+10}, s{sTB}
    s_addc_u32 s{pW+7}, s{sP+11}, 0
    s_sub_u32 s{pW+6}, s{pW+6}, 2048
    s_subb_u32 s{pW+7}, s{pW+7}, 0
    s_lshl_b32 s{sTB}, s{sTA}, 10
    s_add_u32 s{sHB}, s{t32}, s{sTB}
    v_lshrrev_b32 v74, 2, v71
    v_lshlrev_b32 v74, 14, v74
    v_and_b32 v75, 3, v71
    v_lshlrev_b32 v75, 4, v75
    v_lshl_add_u32 v75, v70, 6, v75
    v_add_u32 v74, v74, v75
    s_cmp_lt_u32 s{sJ}, 15
    s_cselect_b32 s{sT0}, 0, {OOB}
    v_add_u32 v74, s{sT0}, v74
    v_lshlrev_b32 v75, 4, v71
    v_lshl_add_u32 v75, v70, 15, v75
    s_cmp_lt_u32 s{sJ}, 10
    s_cselect_b64 vcc, -1, 0
    v_cndmask_b32 v{vEP}, v74, v75, vcc
    s_lshl_b32 s{sTA}, s2, 2
    s_add_u32 s{sTA}, s{sTA}, s{sWAVE}
    v_and_b32 v75, 3, v{vLANE}
    s_sub_u32 s{sT0}, s{sTA}, 720
    s_cmp_lt_u32 s{sT0}, 32
    s_cselect_b32 s{sT1}, 0, {OOB}
    s_and_b32 s{sT0}, s{sT0}, 31
    s_lshl_b32 s{sT0}, s{sT0}, 10
    s_add_u32 s{sT0}, s{sT0}, s{sT1}
    s_add_u32 s{sT0}, s{sT0}, {WS_C}
    v_lshlrev_b32 v{vCW}, 4, v{vLANE}
    v_add_u32 v{vCST}, s{sT0}, v{vCW}
    v_and_b32 v80, 3, v{vLANE}
    v_cmp_eq_u32 vcc, 0, v80
    v_mov_b32 v81, s{sC11}
    s_mul_i32 s{sT0}, s{sTA}, 384
    v_lshlrev_b32 v{vTG}, 7, v{vLANE}
    v_cndmask_b32 v80, 0, v81, vcc
    v_add_u32 v{vTG}, s{sT0}, v{vTG}
    v_mov_b32 v81, v80
    v_mov_b32 v82, v80
    v_mov_b32 v83, v80
    v_lshrrev_b32 v{vPA}, 2, v{vLANE}
    v_lshlrev_b32 v{vPA}, 8, v{vPA}
    v_lshl_add_u32 v{vPA}, v75, 4, v{vPA}
    v_add_u32 v{vPA}, {F_QKV}, v{vPA}
    s_lshr_b32 s{sT0}, s2, 4
    s_lshl_b32 s{sT0}, s{sT0}, 8
    s_and_b32 s{sT1}, s2, 15
    s_lshl_b32 s{sT1}, s{sT1}, 2
    s_add_u32 s{sT0}, s{sT0}, s{sT1}
    s_add_u32 s{sFLQ}, s{sT0}, {F_QKV}
    s_lshl_b32 s{sT0}, s{sWAVE}, 2
    s_add_u32 s{sT0}, s{sT0}, {L_X}
    v_and_b32 v{vCR}, 511, v{vCW}
    v_add_u32 v{vCW}, s{sT0}, v{vCW}
    v_add_u32 v{vCR}, {L_X}, v{vCR}
    """)
    k = min(opt("late", 999), len(f))
    while k < len(f) and scc_live_before(f, k): k += 1
    fc = list(fc) + f[:k]; LATE[:] = f[k:]
    k = min(max(opt("mid", 150), len(ta) - PRE), len(fc))
    while k < len(fc) and scc_live_before(fc, k): k += 1
    g += fc[:k]
    if "--xsp" in sys.argv: stamp(g, 29)
    g += first
    if "--xsp" in sys.argv: stamp(g, 31)
    g += fc[k:]
    nn = Seg()
    nn.e(f"""
    s_or_b32 s{sT0}, s2, s{sWAVE}
    s_cmp_lg_u32 s{sT0}, 0
    s_cbranch_scc1 L_non@
    s_memrealtime s[6:7]
    """)
    nn.append(W(lg=0))
    nn.e(f"s_or_b32 s6, s6, 1\nv_mov_b32 v68, s6\nv_mov_b32 v69, 0")
    nn.append(I(f"buffer_store_dword v68, v69, {SDBG}, 0 offen sc1", cond=True))
    nn.e("L_non@:")
    NONCE[:] = nn
    if not LATE: g += nonce("")
    if "--xsp" in sys.argv: stamp(g, 30)
    g.append(W(vm=("x", 0, 3)))
    stamp(g, 1)
    g += x_reads(0)
    g += x_dma(2)
    for k_ in range(len(TCH)):
        if TCH[k_][2] == -1: g += touch(k_)
    g += dots(0)
    g.append(W(vm=dma_tag(0))); g.e("s_barrier")
    stamp(g, 2)
    g2, c2 = grp(dma_stage(2))
    for n in range(DIST):
        g += tr_reads(n)
        if n % 2: g += g2[n//2]
    g += c2
    stamp(g, 3)
    g.e(f"s_cmp_ge_u32 s{sJ}, 10")
    g.append(W(lg=("tr", 3, 1)))
    g.e("s_cbranch_scc1 L_clsV")
    return g
LATE = []; NONCE = []
def clone(lst, sfx=""):
    o = Seg()
    for i in lst: o.append(W(vm=i.wvm, lg=i.wlg) if i.cls == "wait" else I(i.text.replace("@", sfx), tag=i.tag, cond=i.cond))
    mark_scc(o); return o
def nonce(sfx): return clone(NONCE, sfx)

def job_params():
    jp = Seg()
    jp.e(f"""
    s_mul_i32 s{sTB}, s{sTA}, 6554
    s_lshr_b32 s{sTB}, s{sTB}, 16
    s_mul_i32 s{sT0}, s{sTB}, 10
    s_sub_u32 s{sTC}, s{sTA}, s{sT0}
    s_cmp_lt_u32 s{sTB}, 48
    s_cselect_b32 s36, s{sP+12}, s{sP+4}
    s_cselect_b32 s37, s{sP+13}, s{sP+5}
    s_mov_b32 s38, {640*1280}
    s_cselect_b32 s38, {1536*1280}, s38
    s_mov_b32 s39, 0x00020000
    v_lshrrev_b32 v74, 2, v64
    v_and_b32 v75, 3, v64
    v_lshl_add_u32 v75, v74, 3, v75
    v_mul_u32_u24 v75, 1280, v75
    v_add_u32 v75, v75, v66
    v_lshlrev_b32 v74, 30, v74
    v_add_u32 v76, v75, v74
    s_cmp_lt_u32 s{sTA}, 720
    s_cselect_b32 s{sT0}, 0, {OOB}
    v_lshlrev_b32 v{vJST}, 4, v{vLANE}
    v_or_b32 v{vJST}, s{sT0}, v{vJST}
    v_or_b32 v75, s{sT0}, v75
    v_or_b32 v76, s{sT0}, v76
    """)
    for kg in range(4):
        jp.e(f"""
        s_lshl_b32 s{sT0}, s{sTB}, 2
        s_sub_u32 s{sT0}, s{sT0}, {192-kg}
        s_mul_i32 s{sT1}, s{sT0}, 171
        s_lshr_b32 s{sT1}, s{sT1}, 9
        s_mul_i32 s98, s{sT1}, 3
        s_sub_u32 s98, s{sT0}, s98
        s_mul_i32 s{sT1}, s{sT1}, 20
        s_lshl_b32 s99, s98, 2
        s_cmp_eq_u32 s98, 2
        s_cselect_b32 s99, 16, s99
        s_cselect_b64 s[100:101], -1, 0
        s_add_u32 s{sT1}, s{sT1}, s99
        s_lshl_b32 s{sT0}, s{sTB}, 5
        s_add_u32 s{sT0}, s{sT0}, {16*(kg//2)+4*(kg%2)}
        s_cmp_lt_u32 s{sTB}, 48
        s_cselect_b32 s{sT0}, s{sT0}, s{sT1}
        s_cselect_b64 s[100:101], 0, s[100:101]
        s_mul_i32 s{sT0}, s{sT0}, 1280
        s_lshl_b32 s{sT1}, s{sTC}, 7
        s_add_u32 s{sJS+kg}, s{sT0}, s{sT1}
        v_cndmask_b32 v{vJK+kg}, v75, v76, s[100:101]
        """)
    jp.e(f"""
    s_add_u32 s{sT0}, s{sWB}, {L_J}
    v_lshrrev_b32 v74, 4, v{vLANE}
    v_lshlrev_b32 v74, 10, v74
    v_and_b32 v75, 15, v{vLANE}
    v_lshrrev_b32 v76, 2, v75
    v_lshl_add_u32 v74, v76, 7, v74
    v_and_b32 v75, 3, v75
    v_lshl_add_u32 v74, v75, 3, v74
    v_add_u32 v{vJTR}, s{sT0}, v74
    """)
    return jp

def job_dma():
    jobdma = Seg()
    for kg in range(4):
        jobdma.e(f"s_add_u32 m0, s{sWB}, {L_J + kg*1024}")
        jobdma.append(I(f"buffer_load_dwordx4 v{vJK+kg}, {SJ}, s{sJS+kg} offen lds", tag=("job", kg)))
    return mark_m0(jobdma)
def job_par():
    jobdma = Seg()
    for tg in range(4):
        jobdma.e(f"""
        s_lshl_b32 s98, s{sTC}, 2
        s_add_u32 s98, s98, {tg}
        s_mul_i32 s99, s98, 52
        s_lshr_b32 s99, s99, 8
        s_mul_i32 s99, s99, 355
        s_add_u32 s98, s98, s99
        s_mul_i32 s99, s{sTB}, 5
        s_add_u32 s98, s98, s99
        s_lshl_b32 s98, s98, 10
        s_add_u32 s{sJO+tg}, s98, {WS_W}
        """)
    return jobdma

NTAIL = 4
def p1_order():
    o = []
    for ks in range(40): o += [(0, ks, u) for u in range(4)]
    for ks in range(40): o += [(1, ks, u) for u in range(2)]
    k1 = 40 - 4*NTAIL
    for ks in range(k1): o += [(2, ks, u) for u in (0, 2, 1, 3)]
    for ks in range(k1, 40): o += [(2, ks, 0), (2, ks, 2)]
    for ks in range(k1, 40): o += [(2, ks, 1), (2, ks, 3)]
    return o
ORDER = p1_order()
def stage_of(p, ks): return (ks//4, 10 + ks//8, 15 + ks//4)[p]
DIST = 8
def frag_read(p, ks, u, f, tag):
    slot = WSLOT[stage_of(p, ks)]
    if p != 1: off = (u//2)*2048; reg = vTR[ks % 4][u % 2]; d = 512
    else: off = (ks % 8)//4*8192 + u*2048; reg = vTH[ks % 4]; d = 256
    off += slot % 4*16384
    return [I(f"ds_read_b64_tr_b16 {a(f,2)}, v{reg} offset:{off}", tag=tag+(0,)),
            I(f"ds_read_b64_tr_b16 {a(f+2,2)}, v{reg} offset:{off+d}", tag=tag+(1,))]
def tr_reads(n):
    if n >= 400: return []
    return frag_read(*ORDER[n], aWF + 4*(n % NWF), ("tr", n))
POS = {o_: n for n, o_ in enumerate(ORDER)}
FIRST = {}
for n_, (p_, ks_, u_) in enumerate(ORDER): FIRST.setdefault(stage_of(p_, ks_), n_ - DIST)
SINGLE = opt("single", 10)
BAR = {FIRST[s_]: [s_] for s_ in range(1, SINGLE)}
for s_ in range(SINGLE, 25, 2): BAR[FIRST[s_]] = [x for x in (s_, s_+1) if x < 25]
XB1 = opt("xb1", 238); XB2 = opt("xb2", 364 if SINGLE % 2 == 0 else 357)
BLAND = {s_: n_ for n_, l_ in BAR.items() for s_ in l_}
for x_ in (XB1, XB2): BAR.setdefault(x_, [])
XREAD = [(POS[(2, ks_, 0)] - DIST, ks_, (1, 3), 0) for ks_ in range(40 - 4*NTAIL, 36, 4)] + [(BLAND[24], 36, (0, 2), 1), (max(BLAND[24] + 1, POS[(2, 32, 0)] - DIST + 5), 36, (1, 3), 0)]
def read_plan():
    seq = [(max(n - DIST, -1), ORDER[n]) for n in range(400)] + [(g_ + 0.5, (2, ks, u)) for g_, ks, us, _ in XREAD for u in us]
    seq.sort(key=lambda x: x[0])
    lev0 = {}; cur = {}; tog = collections.defaultdict(list); last = {}
    for g_, (p, ks, u) in seq:
        key = ('h', ks % 4) if p == 1 else ('r', ks % 4, u % 2)
        reg = vTH[ks % 4] if p == 1 else vTR[ks % 4][u % 2]
        lv = WSLOT[stage_of(p, ks)] // 4; last[stage_of(p, ks)] = g_
        if key not in cur: lev0[key] = lv
        elif cur[key][0] != lv:
            assert int(cur[key][1]) < int(g_); tog[int(cur[key][1])].append(reg)
        cur[key] = (lv, g_)
    done = {}
    for s_, g_ in last.items():
        m = int(g_) + 4
        while m % 4 != 3: m += 1
        done[s_] = min([b for b in BAR if b > m] + [999])
    return lev0, tog, done
LEVEL0, TOG, FREE = read_plan()
assert all(v_ == 0 for k_, v_ in LEVEL0.items() if k_[0] == 'r')
def p1_mfma(n, cls):
    p, ks, u = ORDER[n]
    acc = (aA, aB, aC)[p] + 16*u
    wf = a(aWF + 4*(n % NWF), 4); x = v(vX + 4*ks, 4)
    c = "0" if ks == 0 else a(acc, 16)
    if cls == 'V' and p == 0: return I(f"v_mfma_f32_32x32x16_bf16 {a(acc,16)}, {x}, {wf}, {c}")
    return I(f"v_mfma_f32_32x32x16_bf16 {a(acc,16)}, {wf}, {x}, {c}")

def cs_out(p, T):
    out = Seg()
    for k, d in enumerate(aD[p]):
        t = T + 2*k
        out.e(f"""
        v_accvgpr_read_b32 v{t}, a{d}
        v_accvgpr_read_b32 v{t+1}, a{d+1}
        v_add_f32 v{t}, v{t}, v{t+1}
        v_cvt_pk_bf16_f32 v{t+1}, v{t}, v{t}
        v_and_b32 v{t+1}, 0xffff0000, v{t+1}
        v_sub_f32 v{t}, v{t}, v{t+1}
        v_cvt_pk_bf16_f32 v{t}, v{t+1}, v{t}
        """)
    for k in range(len(aD[p])): out.append(I(f"ds_write_b32 v{vCW}, v{T+2*k} offset:{L_CS[p] - L_X + 1024*k}", tag=("csw", p, k)))
    return out
CS_TILES = [(0, 1, 2, 3), (0, 1), (0, 2, 1, 3)]
def cs_in(p):
    return [I(f"ds_read_b128 {a(aCS[p]+4*k,4)}, v{vCR} offset:{L_CS[p] - L_X + 512*k}", tag=("csr", p, k)) for k in range(len(CS_TILES[p]))]
def cs_mfma(p, k, cls):
    acc = a((aA, aB, aC)[p] + 16*CS_TILES[p][k], 16); cs = a(aCS[p]+4*k, 4); nm = a(aNM, 4)
    if cls == 'V' and p == 0: cs, nm = nm, cs
    return I(f"v_mfma_f32_32x32x16_bf16 {acc}, {cs}, {nm}, {acc}")
def exchange(gaps, p, cls, g_out, bar, T, at):
    st = Stream(gaps, g_out); st.put(cs_out(p, T), g_out, bar - 2)
    gaps[bar].sec[0].insert(0, W(lg=("csw", p, len(aD[p]) - 1)))
    st = Stream(gaps, bar); st.put(cs_in(p), bar, bar + 1)
    for k, n in enumerate(at): gaps[n].ext += [W(lg=("csr", p, k)), cs_mfma(p, k, cls)]

tmpctr = [0]
def epi_qk(acc, t, sbase, vscale, tag):
    out = Seg()
    for pr in range(2):
        T = vTMP + 12*(tmpctr[0] % 2); tmpctr[0] += 1
        for e in range(8): out.e(f"v_accvgpr_read_b32 v{T+e}, a{acc+8*pr+e}")
        for e in range(8): out.e(f"v_mul_f32 v{T+e}, v{vscale}, v{T+e}")
        for e in (0, 2, 1, 3): out.e(f"v_cvt_pk_bf16_f32 v{T+8+e}, v{T+2*e}, v{T+2*e+1}")
        out.e(f"s_add_u32 s{sT0+pr}, s{sbase}, {(4*t+2*pr)*32768}")
        out.e(f"v_permlane32_swap_b32 v{T+8}, v{T+10}\nv_permlane32_swap_b32 v{T+9}, v{T+11}")
        out.append(I(f"buffer_store_dwordx4 {v(T+8,4)}, v{vEP}, {SWS}, s{sT0+pr} offen sc1", tag=tag))
    return out
def epi_v(acc, t, sbase, voff, tag):
    out = Seg()
    out.e(f"s_add_u32 s{sT0+t}, s{sbase}, {8*t*16384}")
    for m in range(2):
        T = vTMP + 12*(tmpctr[0] % 2); tmpctr[0] += 1
        for e in range(8): out.e(f"v_accvgpr_read_b32 v{T+e}, a{acc+8*m+e}")
        for e in range(8): out.e(f"v_mul_f32 v{T+e}, v{vR16+8*m+e}, v{T+e}")
        for e in range(4): out.e(f"v_cvt_pk_bf16_f32 v{T+8+e}, v{T+2*e}, v{T+2*e+1}")
        out.append(I(f"buffer_store_dwordx4 {v(T+8,4)}, v{voff}, {SWS}, s{sT0+t} offen offset:{128*m} sc1", tag=tag))
    return out
def epi_g(acc, t, shb, tag, ud=32):
    out = Seg()
    ag = acc + 16*t; au = acc + ud + 16*t
    for pp in range(2):
        P = vTMP + 24 + 4*(pp)
        for c4 in range(2):
            T = vTMP + 8*(tmpctr[0] % 3); tmpctr[0] += 1
            r0 = 8*pp + 4*c4
            for e in range(4): out.e(f"v_accvgpr_read_b32 v{T+e}, a{ag+r0+e}")
            for e in range(4): out.e(f"v_mul_f32 v{T+e}, v{vSG}, v{T+e}")
            for e in range(4): out.e(f"v_exp_f32 v{T+e}, v{T+e}")
            for e in range(4): out.e(f"v_accvgpr_read_b32 v{T+4+e}, a{au+r0+e}")
            for e in range(4): out.e(f"v_fma_f32 v{T+e}, v{T+e}, v{vS}, v{vS}")
            for e in range(4): out.e(f"v_rcp_f32 v{T+e}, v{T+e}")
            for e in range(4): out.e(f"v_mul_f32 v{T+4+e}, v{T+e}, v{T+4+e}")
            out.e(f"v_cvt_pk_bf16_f32 v{P+2*c4}, v{T+4}, v{T+5}\nv_cvt_pk_bf16_f32 v{P+2*c4+1}, v{T+6}, v{T+7}")
        out.append(I(f"buffer_store_dwordx4 {v(P,4)}, v{vH}, {SWS}, s{shb} offen offset:{t*1024+pp*512} sc1", tag=tag))
    return out

def job_process():
    out = Seg()
    out.append(W(vm=("job", 3)))
    for tg in range(4):
        T = vTMP + 4*tg
        out.append(I(f"ds_read_b64_tr_b16 {v(T,2)}, v{vJTR} offset:{tg*32}", tag=("jtr", tg, 0)))
        out.append(I(f"ds_read_b64_tr_b16 {v(T+2,2)}, v{vJTR} offset:{tg*32+512}", tag=("jtr", tg, 1)))
    out2 = Seg()
    out2.append(W(lg=("jtr", 3, 1)))
    for tg in range(4):
        out2.append(I(f"buffer_store_dwordx4 {v(vTMP+4*tg,4)}, v{vJST}, {SWS}, s{sJO+tg} offen sc1", tag="h1"))
    return out, out2

def spin(seg, name, addr, dst, width, srd_, cmp_lines):
    seg.e(f"s_mov_b32 s{sSPIN}, 0x40000")
    seg.e(f"L_sp{name}:")
    seg.e(cmp_lines)
    seg.e(f"s_cbranch_vccz L_ok{name}")
    seg.e(f"s_sub_u32 s{sSPIN}, s{sSPIN}, 1\ns_cbranch_scc1 L_ok{name}\ns_sleep 1")
    op = {1:"buffer_load_dword",4:"buffer_load_dwordx4"}[width]
    seg.append(I(f"{op} {v(dst,width)}, v{addr}, {srd_}, 0 offen sc1", cond=True))
    seg.e("s_waitcnt vmcnt(0)")
    seg.e(f"s_branch L_sp{name}")
    seg.e(f"L_ok{name}:")
def all4(d, non):
    return f"v_xor_b32 v{d}, {non}, v{d}\nv_xor_b32 v{d+1}, {non}, v{d+1}\nv_xor_b32 v{d+2}, {non}, v{d+2}\nv_xor_b32 v{d+3}, {non}, v{d+3}\nv_or3_b32 v{d}, v{d}, v{d+1}, v{d+2}\nv_or_b32 v{d}, v{d}, v{d+3}\nv_cmp_ne_u32 vcc, 0, v{d}"
def publish(seg, name, soff_reg, t):
    seg.e(f"s_cmp_lg_u32 s{sWAVE}, 0\ns_cbranch_scc1 L_fl{name}")
    seg.e(f"s_mov_b64 exec, 1\nv_mov_b32 v{t}, s{sNON}\nv_mov_b32 v{t+1}, 0")
    seg.append(I(f"buffer_store_dword v{t}, v{t+1}, {SWS}, s{soff_reg} offen sc1", cond=True))
    seg.e(f"s_mov_b64 exec, -1\nL_fl{name}:")

def wsbase(g, p, soff):
    g.e(f"s_add_u32 s{p}, s24, s{soff}\ns_addc_u32 s{p+1}, s25, 0")

def attn_addr_setup():
    g = Seg()
    T = vLN
    g.e(f"""
    s_lshl_b32 s{sHD}, s{sXCD}, 2
    s_lshr_b32 s{sTA}, s{sLOC}, 3
    s_add_u32 s{sHD}, s{sHD}, s{sTA}
    s_and_b32 s{sQB}, s{sLOC}, 7
    s_and_b32 s{sKH}, s{sWAVE}, 1
    s_lshr_b32 s{sTA}, s{sHD}, 1
    s_mul_i32 s{sTA}, s{sTA}, 5
    s_and_b32 s{sTB}, s{sHD}, 1
    s_mul_i32 s{sTC}, s{sTB}, 3
    s_add_u32 s{sTC}, s{sTC}, s{sTA}
    s_lshl_b32 s{sTC}, s{sTC}, 15
    s_add_u32 s{sTA}, s{sTA}, 2
    s_lshl_b32 s{sTA}, s{sTA}, 15
    s_lshl_b32 s{sTB}, s{sTB}, 3
    s_add_u32 s{sTB}, s{sTB}, s{sTA}
    s_mul_i32 s{sTA}, s{sHD}, {5*16384}
    v_lshrrev_b32 v{T}, 5, v{vLANE}
    v_and_b32 v{T+1}, 31, v{vLANE}
    v_lshlrev_b32 v{T+2}, 4, v{T+1}
    v_lshl_add_u32 v{vK1}, v{T}, 15, v{T+2}
    v_add_u32 v{vK1}, s{sTC}, v{vK1}
    v_add_u32 v{T+2}, s{sTB}, v{T+2}
    v_cmp_eq_u32 vcc, 0, v{T}
    v_mov_b32 v{T+3}, {WS_C-WS_K}
    v_mov_b32 v{vQ2}, {WS_C-WS_Q+16}
    v_cndmask_b32 v{vK2}, v{T+3}, v{T+2}, vcc
    v_cndmask_b32 v{vQ2}, v{vQ2}, v{T+2}, vcc
    v_lshrrev_b32 v{T+2}, 2, v{T+1}
    v_lshlrev_b32 v{T+2}, 14, v{T+2}
    v_add_u32 v{T+2}, s{sTA}, v{T+2}
    v_and_b32 v{T+3}, 3, v{T+1}
    v_lshlrev_b32 v{T+3}, 4, v{T+3}
    v_lshl_add_u32 v{T+3}, v{T}, 6, v{T+3}
    v_add_u32 v{T+2}, v{T+2}, v{T+3}
    v_mov_b32 v{T+3}, {WS_C-WS_V+16}
    v_cmp_gt_u32 vcc, 20, v{T+1}
    s_lshl_b32 s{sTA}, s{sKH}, 14
    s_add_u32 s{sTB}, s{sTA}, {WS_K+4096}
    s_lshr_b32 s{sTA}, s{sTA}, 1
    v_cndmask_b32 v{T+2}, v{T+3}, v{T+2}, vcc
    v_mov_b32 v{T+3}, {WS_C-WS_V}
    v_cmp_eq_u32 vcc, 20, v{T+1}
    """)
    wsbase(g, pK, sTB)
    g.e(f"""
    v_cndmask_b32 v{vVL}, v{T+2}, v{T+3}, vcc
    s_add_u32 s{sTB}, s{sTA}, {WS_V+4096}
    """)
    wsbase(g, pV, sTB)
    g.e(f"""
    s_lshl_b32 s{sTA}, s{sQB}, 1
    s_lshr_b32 s{sTB}, s{sWAVE}, 1
    s_add_u32 s{sTA}, s{sTA}, s{sTB}
    s_lshl_b32 s{sTA}, s{sTA}, 11
    s_lshl_b32 s{sTB}, s{sKH}, 10
    s_add_u32 s{sTC}, s{sTA}, s{sTB}
    """)
    wsbase(g, pQ, sTC)
    g.e(f"""
    s_xor_b32 s{sQHI}, s{sTC}, 1024
    s_mul_i32 s{sTB}, s{sHD}, {3*32768}
    s_add_u32 s{sOST}, s{sTC}, s{sTB}
    s_add_u32 s{sOST}, s{sOST}, {WS_O}
    """)
    wsbase(g, pTW, sQHI)
    g2 = Seg()
    g2.e(f"""
    s_lshr_b32 s{sTA}, s{sXCD}, 1
    s_lshl_b32 s{sTA}, s{sTA}, 3
    s_add_u32 s{sRB}, s{sTA}, s{sQB}
    s_and_b32 s{sTA}, s{sXCD}, 1
    s_lshl_b32 s{sTA}, s{sTA}, 2
    s_lshr_b32 s{sTB}, s{sLOC}, 3
    s_add_u32 s{sCB}, s{sTA}, s{sTB}
    v_lshlrev_b32 v{T+2}, 4, v{T+1}
    v_lshl_add_u32 v{vOSA}, v{T}, 15, v{T+2}
    v_lshlrev_b32 v{vLIN}, 4, v{vLANE}
    v_lshrrev_b32 v{T+2}, 4, v{vLANE}
    v_and_b32 v{T+3}, 15, v{vLANE}
    v_lshlrev_b32 v{T+3}, 4, v{T+3}
    v_lshl_add_u32 v{vO3}, v{T+2}, 15, v{T+3}
    s_mul_i32 s{sLW}, s{sWAVE}, {LW}
    v_add_u32 v{vRW}, s{sLW}, v{vLIN}
    s_xor_b32 s{sTB}, s{sWAVE}, 1
    s_mul_i32 s{sTA}, s{sTB}, {LW}
    v_add_u32 v{vRR}, s{sTA}, v{vLIN}
    v_add_u32 v{vFH}, {F_H-F_QKV}, v{vPA}
    s_mul_i32 s{sTA}, s{sCB}, {72*5*1024}
    s_mul_i32 s{sTB}, s{sWAVE}, {12*5*1024}
    s_add_u32 s{sWP}, s{sTA}, s{sTB}
    s_add_u32 s{sWP}, s{sWP}, {WS_W}
    s_mul_i32 s{sTB}, s{sWAVE}, {6*5*1024}
    s_add_u32 s{sWP2}, s{sTA}, s{sTB}
    s_add_u32 s{sWP2}, s{sWP2}, {WS_W + 48*5*1024}
    s_mul_i32 s{sTA}, s{sRB}, {4*48*1024}
    s_mul_i32 s{sTB}, s{sWAVE}, {12*1024}
    s_add_u32 s{sHP}, s{sTA}, s{sTB}
    s_add_u32 s{sHP}, s{sHP}, {WS_H}
    s_lshl_b32 s{sTA}, s{sRB}, 10
    s_mul_i32 s{sTB}, s{sWAVE}, {24*32768}
    s_add_u32 s{sOP}, s{sTA}, s{sTB}
    s_add_u32 s{sOP}, s{sOP}, {WS_O}
    s_add_u32 s{sOS2}, s{sOST}, 65536
    s_mov_b32 s{sSAFE}, 0
    s_add_u32 s{sFL}, s{sFLQ}, {F_H-F_QKV}
    """)
    ROT = opt("rot", 1)
    for gi in (3, 2, 1, 0):
        g2.e(f"""
        s_add_u32 s{sTA}, s{sQB}, s{sCB}
        s_mul_i32 s{sTA}, s{sTA}, {ROT}
        s_add_u32 s{sTA}, s{sTA}, {gi}
        s_and_b32 s{sTA}, s{sTA}, 3
        s_mul_i32 s{sTB}, s{sTA}, {15*1024}
        s_mul_i32 s{sTA}, s{sTA}, {3*1024}
        s_add_u32 s{sWPG[gi]}, s{sWP}, s{sTB}
        s_add_u32 s{sHPG[gi]}, s{sHP}, s{sTA}
        """)
    for u in range(4):
        g2.e(f"""
        s_add_u32 s{sTA}, s{sWAVE}, {u+1}
        s_and_b32 s{sTA}, s{sTA}, 3
        s_mul_i32 s{sTB}, s{sTA}, 49152
        s_lshl_b32 s{sTA}, s{sTA}, 8
        s_add_u32 s{sOPU+u}, s{sOP}, s{sTA}
        v_add_u32 v{vH3+u}, s{sTB}, v{vLIN}
        """)
    return g, g2

def kv_set(t): return aKV + 14*(t % 4)
def k_loads(t):
    b = kv_set(t); off = (t % 16)*512 - 4096
    pre = list(Seg().e(f"s_add_u32 s{pK}, s{pK}, 8192\ns_addc_u32 s{pK+1}, s{pK+1}, 0")) if t == 16 else []
    return [pre + [I(f"global_load_dwordx4 {a(b,4)}, v{vK1}, {sp(pK)} offset:{off} sc1", tag=("k",t,1))],
            [I(f"global_load_dwordx2 {a(b+4,2)}, v{vK2}, {sp(pK)} offset:{off} sc1", tag=("k",t,2))]]
def flat(l): return [x for y in l for x in y]
def v_loads(t):
    b = kv_set(t) + 6; off = t*256 - 4096
    return [I(f"global_load_dwordx4 {a(b,4)}, v{vVL}, {sp(pV)} offset:{off} sc1", tag=("v",t,0)),
            I(f"global_load_dwordx4 {a(b+4,4)}, v{vVL}, {sp(pV)} offset:{off+128} sc1", tag=("v",t,1))]
def q_loads():
    out = []
    for u in range(4):
        b = aQ + 6*u; p = pQ if u < 2 else pTW; off = (u % 2)*512
        out.append(I(f"global_load_dwordx4 {a(b,4)}, v{vK1}, {sp(p)} offset:{off} sc1", tag=("q",u,1)))
        out.append(I(f"global_load_dwordx2 {a(b+4,2)}, v{vQ2}, {sp(p)} offset:{off} sc1", tag=("q",u,2)))
    return out

SPLIT = opt("split", 296)
XRD = opt("xrd", 14)
def base_gaps(cls, lo, hi):
    gaps = [Gap(p1_mfma(n, cls)) if lo <= n < hi else None for n in range(400)]
    for n in range(lo, hi):
        if n in BAR: gaps[n].sec[0] += ([W(vm=[dma_tag(BAR[n][-1])])] if BAR[n] else []) + [I("s_barrier")]
        if n % 4 == 3 and n + 1 < 400: gaps[n].sec[0].append(W(lg=("tr", min(n+4, 399), 1)))
        gaps[n].sec[1] += tr_reads(n + DIST)
        for g_, ks, us, b in XREAD:
            if g_ == n:
                for k, u in enumerate(us): gaps[n].sec[1] += frag_read(2, ks, u, aXF[b] + 4*k, ("xtr", ks, u))
            if g_ + opt("xlat", 4) == n: gaps[n].ext += [W(lg=("xtr", ks, us[1], 1)), colsum(aD[2][us[0]], a(aXF[b], 8))]
        for r in TOG[n]: gaps[n].sec[2].append(I(f"v_xor_b32 v{r}, 0x10000, v{r}"))
        p, ks, u = ORDER[n]
        if ks % 4 == 0 and n % 2 == 0 and not (p == 2 and (ks == 36 or (ks >= 40 - 4*NTAIL and u == 1))):
            d = aD[p][(u//2, 0, u)[p]]
            at = n + 1 if ks < 36 else (n - 1 if n % 4 == 0 else n - 2)
            gaps[at].ext.append(colsum(d, a(aWF + 4*(n % NWF), 8)))
    if lo == 0:
        for b in range(1, 10):
            n = 16*b - XRD; xr = x_reads(b)
            gaps[n].sec[0].append(W(vm=("x", b, 3)))
            gaps[n].sec[1] += xr[:2]; gaps[n+1].sec[1] += xr[2:]
            gaps[16*b - opt("dotat", 9)].end += dots(b)
    dm = Stream(gaps, lo)
    EV = opt("dmaev", 3); EVH = opt("dmaevh", 4); LAND = opt("land", 22); EV0 = opt("ev0", 2)
    L0 = opt("l0", 36); L1 = opt("l1", 64)
    for sg in range(3, 25):
        prev = [FREE[x] + 1 for x in range(sg) if WSLOT[x] == WSLOT[sg]] + [16*b - 8 for b in range(10) if XSLOT[b] == WSLOT[sg]]
        g0 = max([0, BLAND[sg] - (L0 if sg < 10 else L1)] + prev)
        if sg < 10 and lo == 0: dm.put(x_dma(sg), 16*sg - XRD - L0, 16*sg - XRD - LAND, every=EV0)
        if not (lo <= g0 < hi): continue
        dm.put(dma_stage(sg), g0, min(BLAND[sg] - LAND, hi - 2), every=(EV0 if sg < 10 else EVH if sg < 15 else EV))
        if "--dmalog" in sys.argv and cls == 'Q': print("stage", sg, "from", g0, "ends", dm.k, "needed", BLAND[sg], file=sys.stderr)
        if sg == opt("jobsg", 17): dm.put(job_dma(), 0, hi - 2, every=EV); JD[0] = dm.k
    assert dm.k < hi
    return gaps
JD = [0]

def ren(i): return i
def phase1a(cls):
    g = Seg()
    if cls == 'V': g.e("L_clsV:")
    gaps = base_gaps(cls, 0, SPLIT)
    exchange(gaps, 0, cls, 146, FIRST[10], vTMP + 4, [opt("c0at", 157) + k for k in range(4)])
    exchange(gaps, 1, cls, 233, XB1, 92, [XB1 + 3, XB1 + 4])
    A0, A1, A2, A3 = vNM, vR, vACC + 2, vACC + 3
    post = Seg()
    post.e(f"""
    v_accvgpr_read_b32 v{A0}, a{aRS}
    v_accvgpr_read_b32 v{A1}, a{aRS+1}
    v_add_f32 v{vACC}, v{vACC}, v{vACC+1}
    v_add_f32 v{A2}, v{A2}, v{A3}
    v_add_f32 v{A0}, v{A0}, v{A1}
    v_add_f32 v{A2}, v{A2}, v{vACC}
    v_mov_b32 v{A1}, v{A0}
    v_mov_b32 v{A3}, v{A2}
    v_cmp_gt_u32 vcc, 32, v{vLANE}
    v_permlane32_swap_b32 v{A0}, v{A1}
    v_permlane32_swap_b32 v{A2}, v{A3}
    v_add_f32 v{A0}, v{A0}, v{A1}
    v_add_f32 v{A2}, v{A2}, v{A3}
    v_mul_f32 v{A0}, {f2u(-1.0/640.0)}, v{A0}
    v_mul_f32 v{A2}, {f2u(1.0/640.0)}, v{A2}
    v_fma_f32 v{A2}, -v{A0}, v{A0}, v{A2}
    v_cvt_pk_bf16_f32 v{A0}, v{A0}, v{A0}
    v_max_f32 v{A2}, 0, v{A2}
    v_cndmask_b32 v{A0}, 0, v{A0}, vcc
    v_cvt_pk_bf16_f32 v{A2}, v{A2}, v{A2}
    v_accvgpr_write_b32 a{aNM}, v{A0}
    v_accvgpr_write_b32 a{aNM+1}, v{A0}
    v_accvgpr_write_b32 a{aNM+2}, v{A0}
    v_accvgpr_write_b32 a{aNM+3}, v{A0}
    v_and_b32 v{A2}, 0xffff0000, v{A2}
    v_add_f32 v{A2}, {f2u(1e-5)}, v{A2}
    v_cvt_pk_bf16_f32 v{A2}, v{A2}, v{A2}
    v_lshlrev_b32 v{A2}, 16, v{A2}
    v_sqrt_f32 v{A2}, v{A2}
    v_mov_b32 v{vZERO}, 0
    v_cvt_pk_bf16_f32 v{A2}, v{A2}, v{A2}
    v_lshlrev_b32 v{vS}, 16, v{A2}
    v_rcp_f32 v{vR}, v{vS}
    v_mul_f32 v{vSG}, {f2u(-LOG2E)}, v{vR}
    """)
    if cls != 'V':
        post.e(f"v_mul_f32 v{vSCL}, s{sSC}, v{vR}")
    else:
        post.e(f"""
        v_mov_b32 v{vSCL+2}, {L_X}
        v_add_u32 v{vSCL+2}, s{sWB}, v{vSCL+2}
        v_and_b32 v{vSCL}, 31, v{vLANE}
        v_lshl_add_u32 v{vSCL}, v{vSCL}, 2, v{vSCL+2}
        v_lshrrev_b32 v{vSCL+1}, 5, v{vLANE}
        v_lshl_add_u32 v{vSCL+1}, v{vSCL+1}, 4, v{vSCL+2}
        ds_write_b32 v{vSCL}, v{vR}
        """)
        for k in range(4):
            post.append(I(f"ds_read_b128 {v(vR16+4*k,4)}, v{vSCL+1} offset:{32*k}", tag=("r16", k)))
    post.append(I(f"buffer_load_dword v{vNON}, v{vZERO}, {SDBG}, 0 offen sc1", tag="non"))
    Stream.stores.clear()
    if opt("pf", 12) & 8:
        for k_ in range(5):
            p2 = masked_loads([(3, I(f"global_load_dword a210, v{vTG}, {sp(p_)}", tag="pf")) for p_ in (sP+8, sP+10)])
            if k_ < 4: p2.e(f"v_add_u32 v{vTG}, {128*3072}, v{vTG}")
            Stream(gaps).block(p2, opt("pf2at", 33) + opt("pf2st", 16)*k_)
    for k_ in range(len(TCH)):
        if TCH[k_][2] >= 0: Stream(gaps).block(touch(k_), TCH[k_][2])
    jb = Stream(gaps)
    if LATE:
        jb.put(clone(LATE), 0, 60)
        jb.block(nonce(cls), jb.k + 1); jb.k += 1; jb.last = 0
    if opt("pf", 12) & 4:
        def pick(o, c):
            o.e(f"s_cmp_eq_u32 s{sWAVE}, 1\ns_cselect_b64 s[100:101], {sp(c[1])}, {sp(c[0])}")
            for w_ in (2, 3): o.e(f"s_cmp_eq_u32 s{sWAVE}, {w_}\ns_cselect_b64 s[100:101], {sp(c[w_])}, s[100:101]")
        W0 = opt("warm0", 1); WS_ = opt("warmst", 12)
        o = Seg(); pick(o, [sP+8, sP+10, sP+2, sP]); o.e(f"s_lshr_b32 s99, s{sWAVE}, 1\ns_lshl_b32 s99, s99, 21")
        o.append(I("s_load_dword s58, s[100:101], s99", tag="warm")); jb.put(o, W0, 130)
        for k_ in range(3):
            o = Seg(); o.e(f"s_add_u32 s99, s{sWAVE}, {4*k_}\ns_min_u32 s99, s99, 10\ns_lshl_b32 s99, s99, 21")
            jb.put(o, 0, 130); jb.put([I(f"s_load_dword s58, {sp(sP+18)}, s99", tag="warm")], W0 + WS_*(k_+1), 130)
        o = Seg(); pick(o, [sP+12, sP+4, sP+16, sP+14]); jb.put(o, 0, 130)
        jb.put([I("s_load_dword s58, s[100:101], 0", tag="warm")], W0 + WS_*4, 130)
        o = Seg(); o.e("s_mov_b32 s99, 0x200000"); o.append(I(f"s_load_dword s58, {sp(sP+14)}, s99", tag="warm")); jb.put(o, W0 + WS_*5, 130)
    jb.put(job_params(), 0, 130, free=True)
    assert jb.k < 134
    assert jb.k < JD[0] - 12
    jb.put(job_par(), 0, SPLIT - 2, free=True)
    ch = Stream(gaps)
    ch.put([I(f"buffer_store_dwordx4 v[80:83], v{vCST}, {SWS}, 0 offen sc1", tag="cst")], opt("cstat", 110), 130)
    ch.put([I(f"v_accvgpr_write_b32 a{aD[1][0]+k}, 0") for k in range(4)], 0, 150)
    ch.put(post[:24], 144 - opt("dotat", 9) + 2, 154)
    ch.put(post[24:], 0, 161)
    e0 = Seg()
    if cls == 'V':
        e0.append(W(lg=("r16", 3)))
        for u in range(4): e0 += epi_v(aA+16*u, u % 2, sEB + u//2, vEP, "qkv")
    else:
        for u in range(4): e0 += epi_qk(aA+16*u, u % 2, sEB + u//2, vSCL, "qkv")
    bg = opt("pub", 248)
    if BAR.get(bg): gaps[bg].sec[0][0].wvm += ["qkv", "non", "cst"]
    else: gaps[bg].sec[0][:0] = [W(vm=["qkv", "non", "cst"]), I("s_barrier")]
    pb = Seg()
    spin(pb, "N" + cls, vZERO, vNON, 1, SDBG, f"v_cmp_eq_u32 vcc, 0, v{vNON}")
    pb.e(f"v_readfirstlane_b32 s{sNON}, v{vNON}")
    publish(pb, "Q" + cls, sFLQ, vLN+2)
    Stream(gaps, bg).block(pb, bg)
    if "--x_plain" in sys.argv:
        e0 = [I(i.text.replace(" sc1", ""), tag=i.tag) if i.cls == "vmem" else i for i in e0]
    if "--x_lin" in sys.argv:
        n_ = [0]
        def lin(i):
            n_[0] += 1
            return I(f"buffer_store_dwordx4 {i.text.split()[1]} v{vCST}, {SWS}, s58 offen offset:{(n_[0]-1)%4*1024} sc1", tag=i.tag)
        e0 = list(Seg().e(f"s_lshl_b32 s58, s2, 2\ns_add_u32 s58, s58, s{sWAVE}\ns_lshl_b32 s58, s58, 12\nv_lshlrev_b32 v{vCST}, 4, v{vLANE}")) + [lin(i) if i.cls == "vmem" else i for i in e0]
    pieces, cur = [], []
    for i in e0:
        cur.append(i)
        if i.cls == "vmem": pieces.append(cur); cur = []
    e1 = epi_g(aB, 0, sHB, "h1", ud=16)
    STSP = opt("stsp", 5); E0END = bg - opt("stlat", 16)
    q1 = list(e1)
    for n, pc in enumerate(pieces):
        at = 161 + n * STSP
        if at > 241:
            while q1 and ch.k < at - 1:
                m = next((x for x in range(len(q1)) if q1[x].op == "v_cvt_pk_bf16_f32"), len(q1) - 2) + 2
                if m < len(q1) and q1[m].cls == "vmem": m += 1
                assert False
        ch.put(pc, at, E0END)
    assert ch.k <= E0END + 1
    ch.put([I(f"v_accvgpr_write_b32 a{d+k}, 0") for d in aD[2] for k in range(4)], 0, 239)
    ch.put([ren(i) for i in q1], XB1 + 6, SPLIT - 2)
    print("job ends", jb.k, "epilogue ends", ch.k, file=sys.stderr)
    report("pass0 " + cls, gaps, 0, 160); report("pass1 " + cls, gaps, 160, 240); report("pass2a " + cls, gaps, 240, SPLIT)
    for n in range(SPLIT):
        if n in XS: stamp(g, 18 + XS.index(n))
        if n == 160: stamp(g, 4)
        if n == 240: stamp(g, 5)
        g += gaps[n].flat()
    if cls != 'V': g.e("s_branch L_p1c")
    return g

def phase1c():
    g = Seg()
    g.e("L_p1c:")
    gaps = base_gaps('Q', SPLIT, 400)
    C2 = opt("c2at", XB2 + 3)
    exchange(gaps, 2, 'Q', XREAD[-1][0] + opt("xlat", 4) + 2, XB2, 92, [C2, C2 + 1, C2 + opt("c2d", 8), C2 + opt("c2d", 8) + 1])
    Stream.stores.clear()
    ch = Stream(gaps, SPLIT)
    POLL = opt("poll", 332); CHK = opt("chk", 350)
    Stream(gaps, POLL).put([I(f"buffer_load_dwordx4 {v(44,4)}, v{vPA}, {SWS}, 0 offen sc1", tag="pollq")], POLL, POLL+1)
    ck = Seg(); ck.append(W(vm="pollq"))
    spin(ck, "Q", vPA, 44, 4, SWS, all4(44, f"s{sNON}"))
    stamp(ck, 7)
    Stream(gaps, CHK).block(ck, CHK)
    first = flat(k_loads(0)) + q_loads() + v_loads(0) + flat(k_loads(1)) + v_loads(1) + flat(k_loads(2)) + v_loads(2)
    Stream(gaps, CHK + 1).put(first, CHK + 1, 399, every=opt("ldev", 2))
    if opt("cpf", 1):
        cp = Seg()
        cp.e(f"""
        s_lshl_b32 s98, s{sLOC}, 2
        s_add_u32 s98, s98, s{sWAVE}
        s_lshl_b32 s98, s98, 10
        s_min_u32 s98, s98, L_codeend-L_p1c-1024
        v_lshlrev_b32 v{vLN}, 4, v{vLANE}
        v_add_u32 v{vLN}, s98, v{vLN}
        """)
        cp.append(I(f"global_load_dwordx4 a[250:253], v{vLN}, s[0:1]", tag="pf"))
        ch.put(cp, 0, CHK - 1)
    as1, as2 = attn_addr_setup()
    j1, j2 = job_process()
    ch.put(j1, 0, CHK - 1); k = ch.k
    ch.put(as1, 0, CHK - 1); ch.put(j2, k + 4, CHK - 1, stsp=opt("jstsp", 4))
    ch.put(as2, 0, CHK - 1)
    print("set-up ends", ch.k, file=sys.stderr)
    ch.put(epi_g(aC, 0, sHB+1, "h1"), max(400 - 8*NTAIL + 1, C2 + 3), 399)
    report("pass2", gaps, SPLIT, 400)
    for n in range(SPLIT, 400):
        if n in XS: stamp(g, 18 + XS.index(n))
        g += gaps[n].flat()
    stamp(g, 6)
    if STAMPS: g.e(f"v_accvgpr_mov_b32 a{aSTAMP}, a{aST[0]}"); aST[0] = aSTAMP
    return g

def s_mfma(n):
    t, u = n // 4, n % 4
    S = v(16*(n % 2), 16); k = kv_set(t); q = aQ + 6*u
    return (I(f"v_mfma_f32_32x32x16_bf16 {S}, {a(k,4)}, {a(q,4)}, 0"),
            I(f"v_mfma_f32_32x32x8_bf16 {S}, {a(k+4,2)}, {a(q+4,2)}, {S}"))
def pv_mfma(n):
    t, u = n // 4, n % 4
    O = a(aO + 16*u, 16); vv = kv_set(t) + 6; P = 32 + 8*(n % 2)
    return (I(f"v_mfma_f32_32x32x16_bf16 {O}, {a(vv,4)}, {v(P,4)}, {'0' if t == 0 else O}"),
            I(f"v_mfma_f32_32x32x16_bf16 {O}, {a(vv+4,4)}, {v(P+4,4)}, {O}"))
def softmax_valu(n):
    S = 16*(n % 2); P = 32 + 8*(n % 2)
    E = lambda i: I(f"v_exp_f32 v{S+i}, v{S+i}")
    C = lambda k: I(f"v_cvt_pk_bf16_f32 v{P+k}, v{S+2*k}, v{S+2*k+1}")
    return [E(0),E(1),E(2),C(0),E(3),E(4), C(1),E(5),E(6),C(2),E(7),E(8), C(3),E(9),E(10),C(4),E(11),E(12), C(5),E(13),E(14),E(15),C(6),C(7)]

def p3_frags():
    fr = []
    for ks in range(12):
        fr += [("w", ks, t) for t in range(5)] + [("h", ks, u) for u in range(4)]
    for ks in range(12, 18):
        fr += [("w", ks, t) for t in range(5)] + [("o", ks, u) for u in range(4)]
    return fr
FR = p3_frags()
PRE_SLOTS = [a(88+4*i,4) for i in range(27 if STAMPS else 28)] + [v(64+4*i,4) for i in range(48)]
LDS_FR = [f for f in FR if f[0] == "w"][-NLPF:]
class Loader:
    def __init__(self): self.cur = {pTW: None, pTH: None}
    def base(self, p, sreg, hi):
        if self.cur[p] == (sreg, hi): return []
        self.cur[p] = (sreg, hi)
        o = Seg(); o.e(f"s_add_u32 s{p}, s{sreg}, {hi+4096}\ns_add_u32 s{p}, s24, s{p}\ns_addc_u32 s{p+1}, s25, 0"); return list(o)
    def addr(self, f):
        kind, ks, x = f
        if kind == "w":
            off = (ks % 3*5 + x)*1024 if ks < 12 else ((ks-12)*5 + x)*1024
            return pTW, (sWPG[ks//3] if ks < 12 else sWP2), off // 8192 * 8192, off % 8192 - 4096, vLIN
        if kind == "h":
            return pTH, sHPG[ks//3], 0, ks % 3*1024 - 4096, vH3 + x
        return pTH, sOPU + x, (ks-12)*4*32768, -4096, vO3
    def emit(self, f, reg):
        p, sreg, hi, lo, vr = self.addr(f)
        return self.base(p, sreg, hi) + [I(f"global_load_dwordx4 {reg}, v{vr}, {sp(p)} offset:{lo} sc1", tag=f)]
    def emit_lds(self, f, idx):
        kind, ks, x = f
        off = (ks % 3*5 + x)*1024 if ks < 12 else ((ks-12)*5 + x)*1024
        sreg = sWPG[ks//3] if ks < 12 else sWP2
        hi, lo = off // 4096 * 4096, off % 4096
        out = self.base(pTW, sreg, hi - 4096)
        m0 = L_PF + idx*1024 - lo
        if self.cur.get("m0") != m0:
            self.cur["m0"] = m0; out.append(I(f"s_add_u32 m0, s{sLW}, {m0}"))
        return out + [I(f"global_load_lds_dwordx4 v{vLIN}, {sp(pTW)} offset:{lo} sc1", tag=("L",)+f)]
vFT = 64

def attention(regmap, loader):
    g = Seg()
    eg = epi_g(aC, 1, sHB+1, "h1")
    g.e("v_mov_b32 v0, -1\nv_mov_b32 v1, -1\nv_mov_b32 v2, -1\nv_mov_b32 v3, -1")
    oc = [I(f"buffer_store_dwordx4 v[0:3], v{vOSA}, {SWS}, s{sOST} offen sc1", tag="h1"),
          I(f"buffer_store_dwordx4 v[0:3], v{vOSA}, {SWS}, s{sOST} offen offset:512 sc1", tag="h1"),
          I(f"buffer_store_dwordx4 v[0:3], v{vLIN}, {SWS}, s{sOS2} offen sc1", tag="h1")]
    for k_ in range(3): g += eg[12*k_:12*k_+12]; g.append(oc[k_])
    g += eg[36:]
    stamp(g, 8)
    g.e("L_att1:")
    g.append(W(vm=[("q",3,2), ("k",0,2)]))
    m = s_mfma(0); g.append(m[0]); g.append(m[1])
    free = [[] for _ in range(128*4)]
    for t in range(32):
        if t + 3 < 32:
            kl = k_loads(t+3); vl = v_loads(t+3)
            if len(kl[0]) > 1: free[16*t - 2].append(kl[0][0]); free[16*t - 1].append(kl[0][1])
            for i in range(2): free[16*t + i].append(kl[i][-1])
            for i in range(2): free[16*t + 4 + i].append(vl[i])
        if t + 1 < 32: free[16*t + 11].append(W(vm=[("k",t+1,2), ("v",t+1,1)]))
    free[3].append(W(vm=("v",0,1)))
    pub = Seg(); pub.append(W(vm="h1")); pub.e("s_barrier")
    publish(pub, "H", sFL, vFT)
    free[16*1 + 7] += pub
    HP = opt("hpoll", 7)
    free[16*HP + 7].append(I(f"buffer_load_dwordx4 {v(vFT+4,4)}, v{vFH}, {SWS}, 0 offen sc1", tag="pollh"))
    chk = Seg(); chk.append(W(vm="pollh"))
    spin(chk, "H", vFH, vFT+4, 4, SWS, all4(vFT+4, f"s{sNON}"))
    free[16*(HP+2) + 7] += chk
    pos = []
    for t in range(HP+3, 32):
        pos += [16*t + i for i in (2,3,6,7,8,9,10,12,13,14,15) if not (t == 12 and i >= 13)]
    q = []
    for i, f in enumerate(LDS_FR): q.append(loader.emit_lds(f, i))
    for i, reg in enumerate(PRE_SLOTS):
        regmap[FR[i]] = reg
        q.append(loader.emit(FR[i], reg))
    step = len(pos) / len(q)
    assert step >= 1.0
    for i, ins in enumerate(q):
        k = int(i*step)
        sal = ins[:-1]
        if sal and k > 0 and int((i-1)*step) < k - 1 and i > 0:
            free[pos[k-1]].append(sal[0]); sal = sal[1:]
        free[pos[k]] += sal + [ins[-1]]
    for n in range(128):
        va = softmax_valu(n)
        ms = [None]*4
        if n + 1 < 128: ms[0], ms[1] = s_mfma(n+1)
        if n >= 1: ms[2], ms[3] = pv_mfma(n-1)
        for p in range(4):
            if ms[p] is not None: g.append(ms[p])
            g += free[4*n + p]
            g += va[6*p:6*p+6]
    m = pv_mfma(127); g.append(m[0]); g.append(m[1])
    stamp(g, 9)
    return g

ACC3 = [64 + 4*i for i in range(6)] + [200 + 4*i for i in range(14)]
def o_epilogue():
    e1 = Seg(); e2 = Seg(); e3 = Seg(); e4 = Seg(); e5 = Seg()
    for k in range(3): e1.append(I(f"ds_write_b128 v{vRW}, {a(aO+32+4*k,4)} offset:{k*1024}", tag=("ow", k)))
    for u in range(2):
        for k in range(12): e2.e(f"v_accvgpr_read_b32 v{12*u+k}, a{aO+16*u+k}")
    e1b = Seg()
    for k in range(3): e1b.append(I(f"ds_write_b128 v{vRW}, {a(aO+48+4*k,4)} offset:{(3+k)*1024}", tag=("ow", 3+k)))
    e3.append(W(lg=0)); e3.e("s_barrier")
    for k in (2, 5, 0, 1, 3, 4): e3.append(I(f"ds_read_b128 {v(24+4*k,4)}, v{vRR} offset:{k*1024}", tag=("red",k)))
    e4.append(W(lg=("red", 5)))
    for u in range(2):
        for k in range(8, 12): e4.e(f"v_add_f32 v{12*u+k}, v{12*u+k}, v{24+12*u+k}")
    e4.e(f"""
    v_mov_b32 v32, v8
    v_mov_b32 v34, v8
    v_mov_b32 v33, v20
    v_mov_b32 v35, v20
    """)
    e4.append(W(lg=("red", 1)))
    for k in range(4): e4.e(f"v_add_f32 v{k}, v{k}, v{24+k}")
    e4.e("v_permlane32_swap_b32 v34, v32\nv_permlane32_swap_b32 v35, v33")
    for k in range(4, 8): e4.e(f"v_add_f32 v{k}, v{k}, v{24+k}")
    e4.e("v_rcp_f32 v34, v32\nv_rcp_f32 v35, v33")
    e4.e(f"s_mov_b32 s{sTA}, {f2u(2.0**-60)}\ns_mov_b32 s{sTB}, {f2u(2.0**60)}\ns_mov_b32 s{sTC}, 0x7f000000")
    e4.e("v_min_f32 v46, v32, v33\nv_max_f32 v47, v32, v33\nv_add_f32 v44, |v0|, |v1|\nv_add_f32 v45, |v20|, |v21|")
    e4.append(W(lg=("red", 4)))
    for k in range(8): e4.e(f"v_add_f32 v{12+k}, v{12+k}, v{36+k}")
    e4.e(f"v_cmp_nge_f32 vcc, v46, s{sTA}\nv_cmp_nle_f32 s[98:99], v47, s{sTB}")
    for k in range(10): e4.e(f"v_add_f32 v44, v44, |v{2+k}|\nv_add_f32 v45, v45, |v{(22,23,12,13,14,15,16,17,18,19)[k]}|")
    for k in range(8): e4.e(f"v_mul_f32 v{24+k}, v34, v{k}")
    e4.e(f"v_add_f32 v44, v44, v45")
    for k in range(4): e4.e(f"v_cvt_pk_bf16_f32 v{24+k}, v{24+2*k}, v{24+2*k+1}")
    e4.e(f"v_cmp_nlt_f32 s[100:101], v44, s{sTC}")
    for k in range(8): e4.e(f"v_mul_f32 v{36+k}, v35, v{12+k}")
    def masked(st):
        o = Seg(); o.e("s_mov_b64 exec, s[98:99]"); o.append(st); o.e("s_mov_b64 exec, -1"); return o
    blk1 = Seg()
    blk1.e(f"""
    s_or_b64 vcc, vcc, s[98:99]
    s_or_b64 vcc, vcc, s[100:101]
    s_cselect_b32 s{sTA}, 1, 0
    s_andn2_b32 s{sTB}, s{sTA}, s{sSAFE}
    s_cselect_b64 s[98:99], 0, -1
    """)
    blk1 += masked(I(f"buffer_store_dwordx4 v[24:27], v{vOSA}, {SWS}, s{sOST} offen sc1", tag="ost"))
    e4b = Seg()
    for k in range(4): e4b.e(f"v_cvt_pk_bf16_f32 v{36+k}, v{36+2*k}, v{36+2*k+1}")
    blk2 = masked(I(f"buffer_store_dwordx4 v[36:39], v{vOSA}, {SWS}, s{sOST} offen offset:512 sc1", tag="ost"))
    e4c = Seg()
    for u in range(2):
        for k in range(4): e4c.e(f"v_mul_f32 v{(28, 40)[u]+k}, v{34+u}, v{12*u+8+k}")
    e4c.e(f"""
    v_cvt_pk_bf16_f32 v44, v28, v29
    v_cvt_pk_bf16_f32 v46, v40, v41
    v_cvt_pk_bf16_f32 v45, v30, v31
    v_cvt_pk_bf16_f32 v47, v42, v43
    v_mov_b32 v30, s{sTA}
    v_permlane32_swap_b32 v44, v46
    v_permlane32_swap_b32 v45, v47
    """)
    blk3 = masked(I(f"buffer_store_dwordx4 v[44:47], v{vLIN}, {SWS}, s{sOS2} offen sc1", tag="ost"))
    e5.e(f"""
    s_lshl_b32 s{sTB}, s{sWAVE}, 2
    s_add_u32 s{sTB}, s{sTB}, {L_VOTE}
    v_mov_b32 v31, s{sTB}
    ds_write_b32 v31, v30
    v_mov_b32 v31, {L_VOTE}
    """)
    e4 = (e4, blk1, e4b, blk2, e4c, blk3)
    return e1, e2, e1b, e3, e4, e5

vXA = 0; vLP = 2; vRD = 3; vP3T = 6; vXD = 8; vXF = 18; vXL = 41
SLOW = []
def phase3(regmap, loader):
    g = Seg()
    gaps = [Gap(None) for _ in range(360)]
    order = [(ks, u, t) for ks in range(12) for u in range(4) for t in range(5)] + [(ks, u, t) for u in range(4) for ks in range(12, 18) for t in range(5)]
    for gp in gaps: gp.mfma = True
    S3 = lambda k=0, cap=16: Stream(gaps, k, cap=cap)
    e1, e2, e1b, e3, e4, e5 = o_epilogue()
    ECAP = opt("ecap", 16)
    ep = S3(0, ECAP)
    ep.put(e1, 0, 359); k_w0 = ep.k
    ep.put(e2[:12], 0, 359); k_r0 = ep.k
    ep.put(e1b, 2, 359); k_w1 = ep.k
    ep.put(e2[12:], 0, 359); k_r1 = ep.k
    ep.put(e3, 0, 359)
    ep.put(e4[0], ep.k + opt("elat", 6), 359)
    for i_, part in enumerate(e4[1:]):
        if i_ % 2 == 0: ep.block(part, ep.k)
        else: ep.put(part, ep.k + 1, 359)
    k_st = ep.k
    st10 = Seg(); stamp(st10, 10); ep.block(st10, ep.k)
    ep.cap = 16
    ep.put(e5, ep.k + 1, 359)
    v1 = Seg(); v1.append(W(lg=0)); v1.e("s_barrier"); v1.append(I("ds_read_b128 v[28:31], v31", tag="votes"))
    ep.put(v1, ep.k + 4, 359)
    vt = Seg(); vt.append(W(lg="votes"))
    vt.e(f"""
    v_or3_b32 v28, v28, v29, v30
    v_or_b32 v28, v28, v31
    s_nop 0
    v_readfirstlane_b32 s{sTA}, v28
    s_andn2_b32 s{sTA}, s{sTA}, s{sSAFE}
    s_cbranch_scc1 L_fallback
    """)
    stamp(vt, 11)
    ep.block(vt, ep.k + 6); k_pub = ep.k
    print("O stores at", k_st, "vote at", k_pub, file=sys.stderr)
    pool = [(0, a(12,4)), (0, a(28,4)), (4, a(44,4)), (4, a(60,4))]
    pool += [(k_w0+1, a(32+4*i,4)) for i in range(3)] + [(k_r0+1, a(4*i,4)) for i in range(3)]
    pool += [(k_w1+1, a(48+4*i,4)) for i in range(3)] + [(k_r1+1, a(16+4*i,4)) for i in range(3)]
    released = set()
    def take(at, vgpr=False):
        while True:
            c = sorted(x for x in pool if not vgpr or x[1][0] == "v")
            nxt = [k for k in range(12) if k not in released and all(f in regmap for f in FR if f[1] == k)]
            if nxt and 20*nxt[0]+20 <= at: pass
            elif c and (c[0][0] <= at or not nxt or c[0][0] <= 20*nxt[0]+20):
                now = [x for x in c if x[0] <= at and x[1][0] == "a"]
                x = now[0] if now else c[0]
                pool.remove(x); return x
            ks = nxt[0]; released.add(ks)
            for f in FR:
                if f[1] == ks: pool.append((20*ks+20, regmap[f]))
    npre = len(PRE_SLOTS)
    rest = [f for f in FR[npre:] if f[0] != "o" and f not in LDS_FR]
    ld = S3()
    gpos = 1; STEP = opt("p3step", 5)
    for f in rest:
        e, r = take(gpos); gpos = max(gpos, e); regmap[f] = r
        ld.put(loader.emit(f, r), gpos, gpos + 2); gpos = ld.k + STEP
        assert ld.k + 30 < 20*f[1], (f, ld.k)
    OLD = opt("old", 180)
    assert ld.k < OLD and k_pub < OLD
    ofr = [("o", ks, u) for u in range(4) for ks in range(12, 18)]
    gpos = OLD; early = []
    st12 = Seg(); stamp(st12, 12); ld.block(st12, OLD - 1)
    for f in ofr:
        e, r = take(gpos, vgpr=True)
        gpos = max(gpos, e); regmap[f] = r
        ld.put(loader.emit(f, r), gpos, gpos + 1); gpos = ld.k + opt("ostep", 4)
        if ld.k < 239: early.append(f)
        assert ld.k != 239 and ld.k + 24 < 240 + 30*f[2] + 5*(f[1] - 12), (f, ld.k)
    assert all(f in early for f in ofr[:6])
    print("O loads end", ld.k, "early", len(early), file=sys.stderr)
    lr = S3(k_pub + 1)
    lr.put([I(f"v_add_u32 v{vLP}, s{sLW}, v{vLIN}"), W(vm=("L",)+LDS_FR[-1])], k_pub + 1, 359)
    for i, f in enumerate(LDS_FR):
        e, r = take(max(lr.k, opt("lrat", 140) + 2*i)); regmap[f] = r
        lr.put([I(f"ds_read_b128 {r}, v{vLP} offset:{L_PF + i*1024}", tag=("R",)+f)], max(e, lr.k + 1, opt("lrat", 140) + 2*i), min(20*f[1], 240) - 8)
    print("parked fragments read by", lr.k, file=sys.stderr)
    r0 = lambda f: int(regmap[f][2:].split(":")[0])
    def ocheck(u):
        q = [r0(f) for f in ofr[6*u:6*u+6]]
        return (f"v_max3_u32 v{vP3T}, v{q[0]}, v{q[1]}, v{q[2]}\nv_max3_u32 v{vP3T+1}, v{q[3]}, v{q[4]}, v{q[5]}\n"
                f"v_max_u32 v{vP3T}, v{vP3T}, v{vP3T+1}\nv_cmp_eq_u32 vcc, -1, v{vP3T}")
    def oreload(seg, fs):
        for f in fs:
            seg.e(f"s_add_u32 s98, s{sOPU+f[2]}, {(f[1]-12)*4*32768}\ns_add_u32 s98, s24, s98\ns_addc_u32 s99, s25, 0")
            seg.e(f"global_load_dwordx4 {regmap[f]}, v{vO3}, s[98:99] sc1")
    slow = Seg()
    for u in range(4):
        ck = Seg(); ck.append(W(vm=ofr[6*u+5])); ck.e(ocheck(u)); ck.e(f"s_cbranch_vccnz L_oretry{u}\nL_oback{u}:")
        gaps[239 + 30*u].sec[2] += ck
        slow.e(f"L_oretry{u}:\ns_mov_b32 s{sSPIN}, 0x8000\nL_osp{u}:")
        oreload(slow, ofr[6*u:6*u+6])
        slow.e("s_waitcnt vmcnt(0)"); slow.e(ocheck(u))
        slow.e(f"s_cbranch_vccz L_ook{u}\ns_sub_u32 s{sSPIN}, s{sSPIN}, 1\ns_cbranch_scc0 L_osp{u}\nL_ook{u}:")
        if u == 0: oreload(slow, early[6:])
        slow.e(f"s_branch L_oback{u}")
    SLOW.append(slow)
    ad = Seg(); T = 38
    ad.e(f"""
    s_lshl_b32 s{sTA}, s{sRB}, 2
    s_add_u32 s{sTA}, s{sTA}, s{sWAVE}
    s_mul_i32 s{sTA}, s{sTA}, {16*1280}
    s_mul_i32 s{sTB}, s{sCB}, 160
    s_add_u32 s{sMBX}, s{sTA}, s{sTB}
    s_mov_b32 m0, s{sLW}
    v_lshrrev_b32 v{T}, 4, v{vLIN}
    """)
    for k in range(3):
        ad.e(f"""
        v_add_u32 v{T+1}, {64*k}, v{T}
        v_mul_u32_u24 v{T+2}, 6554, v{T+1}
        v_lshrrev_b32 v{T+2}, 16, v{T+2}
        v_mul_u32_u24 v{T+2}, {1280-160}, v{T+2}
        v_lshl_add_u32 v{vXL+k}, v{T+1}, 4, v{T+2}
        """)
        if k == 2: ad.e(f"v_cmp_gt_u32 vcc, 32, v{T}\nv_mov_b32 v{T+1}, {OOB}\nv_cndmask_b32 v{vXL+k}, v{T+1}, v{vXL+k}, vcc")
        if k: ad.e(f"s_add_u32 m0, s{sLW}, {1024*k}")
        ad.append(I(f"buffer_load_dwordx4 v{vXL+k}, {SX}, s{sMBX} offen lds", tag=("xres",k)))
    mark_m0(ad)
    ad.e(f"""
    v_and_b32 v{T+1}, 15, v{T}
    v_mul_u32_u24 v{T+1}, 160, v{T+1}
    v_lshrrev_b32 v{T}, 4, v{T}
    v_lshl_add_u32 v{T}, v{T}, 3, v{T+1}
    v_add_u32 v{vXA}, s{sLW}, v{T}
    """)
    for r in range(3):
        ad.e(f"""
        s_add_u32 s{sTA}, s{sWAVE}, {3-r}
        s_and_b32 s{sTA}, s{sTA}, 3
        s_mul_i32 s{sTA}, s{sTA}, {LW}
        v_add_u32 v{vRD+r}, s{sTA}, v{vLIN}
        """)
    ch = S3(k_pub + 1)
    ch.put(ad, opt("xat", k_pub + 1), OLD - 2, every=opt("xev", 4))
    ux = Seg(); ux.append(W(vm=("xres", 2)))
    for t in range(5): ux.append(I(f"ds_read_b64 {v(vXD+2*t,2)}, v{vXA} offset:{32*t}", tag=("xr3", t)))
    ch.put(ux, 200, 320)
    ux = Seg(); ux.append(W(lg=("xr3", 4)))
    for t in range(5):
        for h in range(2): ux.e(f"v_lshlrev_b32 v{vXF+4*t+2*h}, 16, v{vXD+2*t+h}\nv_and_b32 v{vXF+4*t+2*h+1}, 0xffff0000, v{vXD+2*t+h}")
    ch.put(ux, ch.k + 8, 320)
    wr = S3(270, 24)
    for u in range(3):
        for t in range(5):
            wr.put([I(f"ds_write_b128 v{vLP}, {a(ACC3[5*u+t],4)} offset:{L_PF + (5*u+t)*1024}", tag=("pw",u,t))], 240 + 30*u + 25 + t + 5, 359)
    fb_ = Seg(); fb_.append(W(lg=0)); fb_.e("s_barrier")
    wr.put(fb_, wr.k + opt("fblat", 5), 359); k_fb = wr.k
    pr = {}
    for f in ofr:
        if f[2] < 3: pool.append((270 + 30*f[2], regmap[f]))
    for t in range(5):
        for r in range(3):
            e, reg = take(k_fb, vgpr=True); assert e <= k_fb; pr[(r,t)] = int(reg[2:].split(":")[0])
            wr.put([I(f"ds_read_b128 {reg}, v{vRD+r} offset:{L_PF + (5*r+t)*1024}", tag=("pr",r,t))], k_fb, 359)
    ps = Seg()
    for t in range(5):
        x = vXF + 4*t
        ps.append(W(lg=("pr",2,t)))
        for e in range(4): ps.e(f"v_add_f32 v{pr[(0,t)]+e}, v{pr[(0,t)]+e}, v{pr[(1,t)]+e}")
        for e in range(4): ps.e(f"v_add_f32 v{x+e}, v{x+e}, v{pr[(2,t)]+e}")
        for e in range(4): ps.e(f"v_add_f32 v{x+e}, v{x+e}, v{pr[(0,t)]+e}")
    wr.cap = 16
    wr.put(ps, wr.k + 4, 359)
    print("final barrier at", k_fb, file=sys.stderr)
    def tg(f): return ("R",)+f if f in LDS_FR else f
    for m, (ks, u, t) in enumerate(order):
        b = ("h" if ks < 12 else "o", ks, u)
        w = None
        if m < 240 and m % 20 == 0:
            ws_ = [("w", ks, tt) for tt in range(5)]
            vm = [f for f in ws_ if f not in LDS_FR] + [("h", ks, uu) for uu in range(4)]
            lg = [tg(f) for f in ws_ if f in LDS_FR]
            w = W(vm=vm, lg=(lg or None))
        elif m == 240: w = W(lg=tg(LDS_FR[-1]))
        if w is not None:
            if m == 0: g.append(w)
            else: gaps[m-1].sec[2].append(w)
        acc = a(ACC3[5*u+t], 4)
        gaps[m].mfma = I(f"v_mfma_f32_16x16x32_bf16 {acc}, {regmap[('w',ks,t)]}, {regmap[b]}, {'0' if ks == 0 else acc}")
    report("phase3", gaps, 0, 360, cap=16)
    XS3 = [int(x) for x in opt("xs3", "").split(",") if x]
    for m, gp in enumerate(gaps):
        if m in XS3: stamp(g, 18 + XS3.index(m))
        g += gp.flat()
    stamp(g, 13)
    for t in range(5):
        x = vXF + 4*t
        for e in range(4): g.e(f"v_accvgpr_read_b32 v{pr[(1,t)]+e}, a{ACC3[15+t]+e}")
        for e in range(4): g.e(f"v_add_f32 v{x+e}, v{x+e}, v{pr[(1,t)]+e}")
        d = vXD + 2*t
        g.e(f"v_cvt_pk_bf16_f32 v{d}, v{x}, v{x+1}\nv_cvt_pk_bf16_f32 v{d+1}, v{x+2}, v{x+3}")
        g.e(f"ds_write_b64 v{vXA}, {v(d,2)} offset:{32*t}")
    for k in range(3): g.append(I(f"ds_read_b128 {v(vXF+4*k,4)}, v{vLP} offset:{1024*k}", tag=("fin", k)))
    for k in range(3):
        g.append(W(lg=("fin", k)))
        g.e(f"buffer_store_dwordx4 {v(vXF+4*k,4)}, v{vXL+k}, {SOUT}, s{sMBX} offen" + opt("outm", ""))
    if STAMPS:
        g.e("s_waitcnt vmcnt(0)")
        stamp(g, 14)
        dump_stamps(g)
    g.e("L_end:\ns_endpgm")
    return g

def dump_stamps(g):
    g.e(f"""
    s_lshl_b32 s{sTA}, s2, 2
    s_add_u32 s{sTA}, s{sTA}, s{sWAVE}
    s_lshl_b32 s{sTA}, s{sTA}, 8
    s_add_u32 s{sTA}, s{sTA}, {WS_T}
    v_mbcnt_lo_u32_b32 v0, -1, 0
    v_mbcnt_hi_u32_b32 v0, -1, v0
    v_lshlrev_b32 v0, 2, v0
    v_accvgpr_read_b32 v1, a{aSTAMP}
    s_nop 1
    v_writelane_b32 v1, s0, 40
    v_writelane_b32 v1, s1, 41
    s_nop 1
    buffer_store_dword v1, v0, {SWS}, s{sTA} offen
    s_waitcnt vmcnt(0)
    """)

def fallback():
    g = Seg()
    g.e("L_fallback:")
    g.e(f"s_mov_b32 s{sSAFE}, 1\ns_waitcnt vmcnt(0) lgkmcnt(0)\ns_barrier")
    wsbase(g, pTW, sQHI)
    g += q_loads()
    for u in range(4): g.e(f"v_mov_b32 v{32+u}, 0xff800000")
    g.e(f"s_sub_u32 s{pK}, s{pK}, 8192\ns_subb_u32 s{pK+1}, s{pK+1}, 0")
    g.e(f"s_sub_u32 s{pTH}, s{pK}, 4096\ns_subb_u32 s{pTH+1}, s{pK+1}, 0\ns_mov_b32 s{sTB}, 32")
    g.e("L_fbloop:")
    b = aKV
    g.e(f"""
    global_load_dwordx4 {a(b,4)}, v{vK1}, {sp(pTH)} sc1
    global_load_dwordx2 {a(b+4,2)}, v{vK2}, {sp(pTH)} sc1
    s_waitcnt vmcnt(0)
    """)
    for u in range(4):
        q = aQ + 6*u
        g.e(f"v_mfma_f32_32x32x16_bf16 v[0:15], {a(b,4)}, {a(q,4)}, 0")
        g.e(f"v_mfma_f32_32x32x8_bf16 v[0:15], {a(b+4,2)}, {a(q+4,2)}, v[0:15]")
        for k in range(8): g.e(f"v_max3_f32 v{32+u}, v{2*k}, v{2*k+1}, v{32+u}")
    g.e(f"""
    s_add_u32 s{pTH}, s{pTH}, 512
    s_addc_u32 s{pTH+1}, s{pTH+1}, 0
    s_sub_u32 s{sTB}, s{sTB}, 1
    s_cmp_lg_u32 s{sTB}, 0
    s_cbranch_scc1 L_fbloop
    """)
    for u in range(4): g.e(f"v_mov_b32 v{36+u}, v{32+u}")
    for u in range(4): g.e(f"v_permlane32_swap_b32 v{32+u}, v{36+u}")
    for u in range(4): g.e(f"v_max_f32 v{32+u}, v{32+u}, v{36+u}")
    g.e(f"ds_write_b128 v{vRW}, v[32:35]\ns_waitcnt lgkmcnt(0)\ns_barrier\nds_read_b128 v[36:39], v{vRR}\ns_waitcnt lgkmcnt(0)")
    g.e(f"v_cmp_lt_u32 vcc, 511, v{vLIN}")
    for u in range(4):
        m = 32 + u; q2 = aQ + 6*u + 4
        g.e(f"""
        v_max_f32 v{m}, v{m}, v{36+(u+2)%4}
        v_sub_f32 v{m}, 0, v{m}
        v_cvt_pk_bf16_f32 v0, v{m}, v{m}
        v_lshlrev_b32 v1, 16, v0
        v_sub_f32 v{m}, v{m}, v1
        v_cvt_pk_bf16_f32 v2, v{m}, v{m}
        v_lshlrev_b32 v3, 16, v2
        v_sub_f32 v{m}, v{m}, v3
        v_cvt_pk_bf16_f32 v4, v1, v3
        v_mov_b32 v6, 0
        v_cvt_pk_bf16_f32 v5, v{m}, v6
        v_accvgpr_read_b32 v6, a{q2}
        v_accvgpr_read_b32 v7, a{q2+1}
        v_cndmask_b32 v6, v6, v4, vcc
        v_cndmask_b32 v7, v7, v5, vcc
        v_accvgpr_write_b32 a{q2}, v6
        v_accvgpr_write_b32 a{q2+1}, v7
        """)
    for t in range(3): g += flat(k_loads(t)) + v_loads(t)
    g.e("s_waitcnt vmcnt(0)\ns_barrier\ns_branch L_att1")
    g += SLOW[0]
    g.e("L_codeend:")
    return g

HEADER = open("header.txt").read()

def mark_m0(lst):
    last = None
    for i in lst:
        if ("s","m0") in i.wr: last = i
        if i.cls == "vmem" and ("s","m0") in i.rd and last is not None and not hasattr_keep(i): i.keep = last
    return lst
def check_m0(path):
    last = None
    for i in path:
        if ("s","m0") in i.wr: last = i
        if i.cls == "vmem" and ("s","m0") in i.rd and hasattr_keep(i): assert i.keep is last, ("m0", i.text, i.keep.text, last.text)
def check_x(path):
    done = set()
    for i in path:
        if i.op == "ds_read_b128": done |= set(i.wr)
        if i.cls == "mfma" or i.isdot():
            for r in i.rd:
                if r[0] == "v" and r[1] >= vX: assert r in done, ("x not loaded", i.text)

def check_init(path):
    done = {("s", 0), ("s", 1), ("s", 2), ("v", 0), ("s", "exec")}
    for i in path:
        for r in i.rd:
            if r not in done and not (i.op.startswith("v_permlane") or i.op == "v_writelane_b32"): print("UNINIT", r, i.text, file=sys.stderr); done.add(r)
        done |= set(i.wr)

def build():
    pro = prologue()
    cls = {c: phase1a(c) for c in "QV"}
    for c in "QV": check_x(list(pro) + list(cls[c]))
    p1c = phase1c()
    regmap = {}; loader = Loader()
    att = attention(regmap, loader)
    p3 = phase3(regmap, loader)
    fb = fallback()
    tail = Seg(); tail += p1c; tail += att; tail += p3
    log = []
    tot = fix_hazards(pro, log=log)
    for c in "QV":
        ctx = list(pro[-30:]); n0 = len(ctx); path = ctx + list(cls[c]); tot += fix_hazards(path, log=log)
        assert all(x is y for x, y in zip(path[:n0], ctx)); cls[c][:] = path[n0:]
    for c in "QV":
        ctx = list(cls[c][-30:]); n0 = len(ctx); path = ctx + list(tail); tot += fix_hazards(path, log=log)
        assert all(x is y for x, y in zip(path[:n0], ctx)); tail[:] = path[n0:]
    tot += fix_hazards(fb, log=log)
    for c in "QV": resolve_waits(list(pro) + list(cls[c]) + list(tail))
    allins = list(pro) + list(cls['Q']) + list(cls['V']) + list(tail) + list(fb)
    finalize_waits(allins)
    for c in "QV":
        check_init(list(pro) + list(cls[c]) + list(tail))
        check_m0(list(pro) + list(cls[c]) + list(tail))
        errs = check_loads(list(pro) + list(cls[c]) + list(tail))
        for e in errs[:10]: print("LOAD HAZARD", c, e, file=sys.stderr)
        assert not errs
        errs = check_scc(list(pro) + list(cls[c]) + list(tail))
        for e in errs[:10]: print("SCC HAZARD", c, e, file=sys.stderr)
        assert not errs
    print(f"nop states inserted: {tot}", file=sys.stderr)
    if "--log" in sys.argv:
        for l in log: print(l, file=sys.stderr)
    body = "\n".join(("" if i.cls == "label" else "    ") + i.text for i in allins)
    return HEADER.replace("@@BODY@@", body)

if __name__ == "__main__":
    out = build()
    path = [x for x in sys.argv[1:] if not x.startswith("--")]
    open(path[0] if path else "out.s", "w").write(out)
```

```python
import re

TRANS = ("v_exp_f32","v_log_f32","v_rcp_f32","v_rsq_f32","v_sqrt_f32","v_sin_f32","v_cos_f32","v_exp_f16","v_rcp_f16")

def _regs(tok):
    tok = tok.strip()
    tok = re.sub(r"^-", "", tok)
    m = re.fullmatch(r"abs\((.*)\)", tok) or re.fullmatch(r"\|(.*)\|", tok)
    if m: tok = m.group(1)
    m = re.fullmatch(r"([vas])(\d+)", tok)
    if m: return [(m.group(1), int(m.group(2)))]
    m = re.fullmatch(r"([vas])\[(\d+):(\d+)\]", tok)
    if m: return [(m.group(1), i) for i in range(int(m.group(2)), int(m.group(3))+1)]
    if tok == "vcc": return [("s","vcc")]
    if tok in ("exec", "exec_lo", "exec_hi"): return [("s","exec")]
    if tok == "m0": return [("s","m0")]
    return []

class I:
    __slots__ = ("text","op","cls","rd","wr","tag","cond","wvm","wlg","passes","srcc","comment","n_vm","n_lg","keep")
    def __init__(self, text, tag=None, cond=False, comment=None):
        self.text = text; self.tag = tag; self.cond = cond; self.comment = comment
        self.wvm = None; self.wlg = None; self.n_vm = None; self.n_lg = None
        self.passes = 0; self.srcc = []
        t = text.split(";")[0].strip()
        if t.endswith(":"):
            self.op = "label"; self.cls = "label"; self.rd = []; self.wr = []; return
        if t.startswith("."):
            self.op = "dir"; self.cls = "label"; self.rd = []; self.wr = []; return
        parts = t.split(None, 1)
        op = parts[0]; self.op = op
        rest = parts[1] if len(parts) > 1 else ""
        ops = [o.strip() for o in rest.split(",")] if rest else []
        toks = []
        for o in ops:
            toks.append(o.split()[0] if o.split() else o)
        mods = rest
        rd, wr = [], []
        base = re.sub(r"_e32$|_e64$|_sdwa$|_dpp$", "", op)
        if op.startswith("v_mfma"):
            self.cls = "mfma"
            wr = _regs(toks[0]); rd = _regs(toks[1]) + _regs(toks[2]) + _regs(toks[3])
            self.srcc = _regs(toks[3])
            if "32x32x4_2b" in op: self.passes = 16
            elif "32x32" in op: self.passes = 8
            else: self.passes = 4
        elif op.startswith("v_smfmac"):
            self.cls = "mfma"
            wr = _regs(toks[0]); rd = _regs(toks[0]) + _regs(toks[1]) + _regs(toks[2]) + _regs(toks[3])
            self.srcc = _regs(toks[0]); self.passes = 8 if "32x32" in op else 4
        elif op.startswith("buffer_load") or op.startswith("global_load"):
            self.cls = "vmem"
            if re.search(r"\blds\b", mods) or "_lds_" in op:
                for k in toks: rd += _regs(k)
                rd += [("s","m0")]
            else:
                wr = _regs(toks[0])
                for k in toks[1:]: rd += _regs(k)
        elif op.startswith("buffer_store") or op.startswith("global_store") or op.startswith("buffer_atomic") or op.startswith("global_atomic"):
            self.cls = "vmem"
            for k in toks: rd += _regs(k)
        elif op.startswith("buffer_inv") or op.startswith("buffer_wbl2"):
            self.cls = "vmem"
        elif op.startswith("ds_read") or op.startswith("ds_bpermute") or op.startswith("ds_swizzle"):
            self.cls = "lds"; wr = _regs(toks[0])
            for k in toks[1:]: rd += _regs(k)
        elif op.startswith("ds_"):
            self.cls = "lds"
            for k in toks: rd += _regs(k)
        elif op.startswith("s_load") or op.startswith("s_memtime") or op.startswith("s_memrealtime"):
            self.cls = "smem"; wr = _regs(toks[0])
            for k in toks[1:]: rd += _regs(k)
        elif op == "s_waitcnt": self.cls = "wait"
        elif op == "s_barrier": self.cls = "barrier"
        elif op == "s_nop": self.cls = "nop"
        elif op.startswith("s_cbranch") or op in ("s_branch","s_endpgm","s_setpc_b64"):
            self.cls = "branch"
            if "vcc" in op: rd = [("s","vcc")]
            for k in toks: rd += _regs(k)
        elif op in ("s_sleep","s_setprio"): self.cls = "salu"
        elif op.startswith("s_cmp") or op.startswith("s_bitcmp"):
            self.cls = "salu"
            for k in toks: rd += _regs(k)
        elif op.startswith("s_"):
            self.cls = "salu"; wr = _regs(toks[0])
            for k in toks[1:]: rd += _regs(k)
            if "saveexec" in op: wr += [("s","exec")]
        elif op.startswith("v_"):
            self.cls = "trans" if base in TRANS else "valu"
            if base.startswith("v_cmp"):
                wr = _regs(toks[0])
                for k in toks[1:]: rd += _regs(k)
            elif base in ("v_readfirstlane_b32","v_readlane_b32"):
                wr = _regs(toks[0])
                for k in toks[1:]: rd += _regs(k)
            elif base.startswith("v_permlane") and "swap" in base:
                wr = _regs(toks[0]) + _regs(toks[1]); rd = list(wr)
            elif base in ("v_add_co_u32","v_sub_co_u32","v_addc_co_u32"):
                wr = _regs(toks[0]) + _regs(toks[1])
                for k in toks[2:]: rd += _regs(k)
            else:
                wr = _regs(toks[0])
                for k in toks[1:]: rd += _regs(k)
                if base in ("v_fmac_f32","v_dot2c_f32_bf16"): rd += _regs(toks[0])
                if base == "v_cndmask_b32" and len(toks) == 3: rd += [("s","vcc")]
        else:
            raise ValueError("unknown instr: " + text)
        self.rd = rd; self.wr = wr
    def isdot(self): return self.op.startswith("v_dot2")
    def slots(self):
        if self.cls == "label": return 0
        if self.cls == "nop": return int(self.text.split()[1]) + 1
        return 1
    def cost(self):
        if self.cls == "label": return 0
        if self.cls == "trans" or "permlane" in self.op: return 8
        if self.cls == "mfma": return 8
        if self.cls == "nop": return 4*self.slots()
        return 4

def W(vm=None, lg=None, comment=None):
    i = I("s_waitcnt 0", comment=comment)
    i.wvm = vm; i.wlg = lg
    return i

def resolve_waits(path):
    vm_idx = {}; lg_idx = {}
    vm_n = 0; lg_n = 0
    smem_pending = False
    for ins in path:
        if ins.cls == "vmem":
            if not ins.cond:
                vm_n += 1
                if ins.tag is not None: vm_idx[ins.tag] = vm_n
        elif ins.cls == "lds":
            assert not ins.cond or True
            if not ins.cond:
                lg_n += 1
                if ins.tag is not None: lg_idx[ins.tag] = lg_n
        elif ins.cls == "smem":
            if ins.tag != "warm": smem_pending = True
        elif ins.cls == "wait" and (ins.wvm is not None or ins.wlg is not None):
            if ins.wvm is not None:
                if isinstance(ins.wvm, int): n = ins.wvm
                else:
                    tags = ins.wvm if isinstance(ins.wvm, list) else [ins.wvm]
                    n = min(vm_n - vm_idx[t] for t in tags)
                    assert n >= 0
                    n = min(n, 63)
                ins.n_vm = n if ins.n_vm is None else min(ins.n_vm, n)
            if ins.wlg is not None:
                if isinstance(ins.wlg, int): n = ins.wlg
                else:
                    tags = ins.wlg if isinstance(ins.wlg, list) else [ins.wlg]
                    n = min(lg_n - lg_idx[t] for t in tags)
                    n = min(n, 15)
                    assert not smem_pending, "counted lgkm wait with smem pending"
                if n == 0: smem_pending = False
                ins.n_lg = n if ins.n_lg is None else min(ins.n_lg, n)

def finalize_waits(instrs):
    for ins in instrs:
        if ins.cls == "wait" and (ins.wvm is not None or ins.wlg is not None):
            parts = []
            if ins.wvm is not None:
                assert ins.n_vm is not None, ("unresolved", ins.wvm); parts.append(f"vmcnt({ins.n_vm})")
            if ins.wlg is not None:
                assert ins.n_lg is not None, ("unresolved", ins.wlg); parts.append(f"lgkmcnt({ins.n_lg})")
            ins.text = "s_waitcnt " + " ".join(parts)

def _ov(a, b):
    if not a or not b: return False
    return not set(a).isdisjoint(b)

def need_states(p, c):
    n = 0
    pv = p.cls in ("valu","trans"); cv = c.cls in ("valu","trans")
    pw_vec = [r for r in p.wr if r[0] in "va"]
    pw_s = [r for r in p.wr if r[0] == "s"]
    if pv:
        if c.cls == "mfma" and _ov(pw_vec, c.rd): n = max(n, 2)
        if cv and c.op.startswith("v_permlane") and _ov(pw_vec, c.rd): n = max(n, 2)
        if cv and (c.op.startswith("v_readfirstlane") or c.op.startswith("v_readlane")) and _ov(pw_vec, c.rd): n = max(n, 1)
        if cv and "dpp" in c.text and _ov(pw_vec, c.rd): n = max(n, 2)
        if pw_s:
            if cv and (_ov(pw_s, c.rd)): n = max(n, 2)
            if c.cls == "vmem" and _ov(pw_s, c.rd): n = max(n, 5)
            if c.cls == "mfma" and ("s","exec") in pw_s: n = max(n, 4)
            if c.cls in ("salu","branch") and _ov(pw_s, c.rd): n = max(n, 1)
        if p.cls == "trans" and c.cls == "valu" and _ov(pw_vec, c.rd): n = max(n, 1)
        if p.cls == "trans" and c.cls in ("vmem","lds") and _ov(pw_vec, c.rd): n = max(n, 1)
        if p.isdot():
            if c.isdot() and c.op == p.op:
                srcab = c.rd[:]
                toks = [t.strip().split()[0] for t in c.text.split(None,1)[1].split(",")]
                ab = _regs(toks[1]) + _regs(toks[2])
                if _ov(pw_vec, ab): n = max(n, 3)
            elif c.cls in ("valu","trans","mfma","vmem","lds") and (_ov(pw_vec, c.rd) or _ov(pw_vec, c.wr)): n = max(n, 3)
    if p.cls == "salu":
        if ("s","m0") in p.wr and c.cls == "vmem" and ("s","m0") in c.rd: n = max(n, 1)
    if p.cls == "vmem" and re.search(r"store_dwordx[34]", p.op):
        toks = [t.strip().split()[0] for t in p.text.split(None,1)[1].split(",")]
        data = _regs(toks[0]) if p.op.startswith("buffer") else _regs(toks[1])
        if _ov(data, c.wr): n = max(n, 2 if cv else 1)
    if p.cls == "mfma":
        P = p.passes
        tab = {4:(6,8,3), 8:(10,12,7), 16:(18,20,15)}[P]
        if c.cls == "mfma":
            toks = [t.strip().split()[0] for t in c.text.split(None,1)[1].split(",")]
            ab = _regs(toks[1]) + _regs(toks[2]) + (_regs(toks[3]) if c.op.startswith("v_smfmac") else [])
            if _ov(p.wr, ab): n = max(n, tab[1])
            if _ov(p.wr, c.srcc):
                if not (c.srcc == p.wr and c.passes == p.passes): n = max(n, tab[0])
            elif _ov(p.wr, c.wr):
                n = max(n, tab[0])
        elif cv or c.cls in ("vmem","lds"):
            if _ov(p.wr, c.rd) or _ov(p.wr, c.wr): n = max(n, tab[1])
            if cv and _ov(p.srcc, c.wr): n = max(n, tab[2])
    return n

def _states(seq):
    t = 0; last = (0, seq[0].passes) if seq[0].cls == "mfma" else None
    for i in seq[1:]:
        if i.cls == "label": continue
        t += 1
        if i.cls == "mfma":
            if last is not None: t = max(t, last[0] + last[1])
            last = (t, i.passes)
        t += i.slots() - 1
    return t
def fix_hazards(path, window=24, log=None):
    out = []
    total = 0
    for c in path:
        if c.cls != "label":
            dist = 0; need = 0
            for k in range(len(out) - 1, -1, -1):
                p = out[k]
                if p.cls == "label": continue
                r = need_states(p, c)
                if r - dist > need:
                    d = _states(out[k:])
                    if r - d > need: need = r - d; why = p
                dist += p.slots()
                if dist >= window: break
            if need > 0:
                total += need
                if log is not None: log.append((need, why.text, c.text))
                k = need
                while k > 0:
                    m = min(k, 16); out.append(I(f"s_nop {m-1}")); k -= m
        out.append(c)
    path[:] = out
    return total

def check_loads(path):
    vmq = []
    lgq = []
    errs = []
    for ins in path:
        if ins.cls == "wait":
            m = re.search(r"vmcnt\((\d+)\)", ins.text)
            if m:
                n = int(m.group(1)); vmq = vmq[len(vmq)-n:] if n < len(vmq) else vmq
                if n == 0: vmq = []
            m = re.search(r"lgkmcnt\((\d+)\)", ins.text)
            if m:
                n = int(m.group(1))
                if n == 0: lgq = []
                elif n < len(lgq): lgq = lgq[len(lgq)-n:]
            continue
        if ins.cls == "label": continue
        touched = set(ins.rd) | set(ins.wr)
        for q in (vmq, lgq):
            for o in q:
                if o.wr and not touched.isdisjoint(o.wr):
                    if ins.cls == o.cls and set(ins.rd).isdisjoint(o.wr): continue
                    errs.append((o.text, ins.text))
        if ins.cls == "vmem" and not ins.cond: vmq.append(ins)
        elif ins.cls in ("lds","smem") and not ins.cond and ins.tag != "warm": lgq.append(ins)
    return errs


SCC_READ = ("s_addc_u32","s_subb_u32","s_cselect_b32","s_cselect_b64","s_cbranch_scc0","s_cbranch_scc1")
def scc_reads(i): return i.op in SCC_READ
def scc_writes(i):
    if i.cls != "salu": return False
    return not (i.op.startswith("s_mov") or i.op.startswith("s_mul_i32") or i.op.startswith("s_cselect") or i.op.startswith("s_bitset") or i.op in ("s_getpc_b64","s_sleep","s_setprio","s_mul_hi_u32"))
def scc_live_before(lst, idx):
    for i in lst[idx:]:
        if scc_reads(i): return True
        if scc_writes(i): return False
    return False
def mark_scc(lst):
    last = None
    for i in lst:
        if scc_reads(i) and not hasattr_keep(i): i.keep = last
        if scc_writes(i): last = i
def hasattr_keep(i):
    try: return i.keep is not None
    except AttributeError: return False
def check_scc(path):
    last = None; errs = []
    for i in path:
        if scc_reads(i) and hasattr_keep(i) and i.keep is not last: errs.append((i.text, i.keep.text, last.text if last else None))
        if scc_writes(i): last = i
    return errs
```

```python
import sys, math, struct, collections
from asmlib import *

STAMPS = "--stamps" in sys.argv
def opt(name, default):
    for a_ in sys.argv:
        if a_.startswith(f"--{name}="): return type(default)(a_.split("=")[1])
    return default
STOP = opt("stop", "")
XS = [int(x) for x in opt("xs", "").split(",") if x]

def f2u(x): return struct.unpack("<I", struct.pack("<f", x))[0]

WS_Q = 0x000000; WS_K = 0x280000; WS_V = 0x500000; WS_C = 0x780000
WS_O = 0x800000
WS_H = 0xB00000
WS_W = 0x1100000
WS_F = 0x1400000
WS_T = 0x1410000
WS_SIZE = 0x1480000
F_QKV = WS_F; F_H = WS_F + 0x2000; F_O = WS_F + 0x4000
OOB = 0x40000000
LOG2E = 1.4426950408889634
QSCALE = (20 ** -0.5) * LOG2E

L_RING = 0; NSLOT = 8; L_X = 8*16384; L_J = 9*16384
XSLOT = [8, 7, 6, 8, 7, 6, 8, 7, 6, 8]
WSLOT = [0,1,2,3,4,5,0,1,2,3, 4,5,6,7,0, 1,2,3,4,5,6,0,1,2,3]
L_CS = [L_X + 1024, L_X + 3072, L_X + 4096 + 1024]
LW = 40960; L_PF = 6144; NLPF = 33; L_VOTE = LW - 1024

sWAVE=3; sXCD=4; sLOC=5; sT0=6; sT1=7
SX="s[8:11]"; SWS="s[24:27]"; SOUT="s[28:31]"; SDBG="s[32:35]"; SJ="s[36:39]"
pW=12
sMB=40; sJ=41; sWB=42; pX=44
sSL=[47,48,49,50,51,52,62,63,53,54]
sC11=55
sEB=56
sHB=59
sSC=61
sP=64
sNON=84; sTA=85; sTB=86; sTC=87
sHD=88; sQB=89; sKH=90; sJS=91
sFLQ=95; sJO=[72,73,79,55]
pK=64; pV=66; pQ=68; pTW=70; pTH=72
sOPU=12; sOS2=83
sWP=74; sHP=75; sOP=76; sOST=77; sFL=78; sMBX=79; sWP2=80; sRB=81; sCB=82
sSAFE=43; sSPIN=44; sLW=45; sQHI=46

vLANE=1; vXLD=84; vXR=88; vDH=4; vDQ=8; vDG=10; vEP=16; vH=18; vIDX=17; vCW=0; vCR=39
vTR=[[12,13],[14,15],[6,7],[2,3]]; vTH=[40,41,42,43]
vJK=19; vJST=23; vJTR=24; vCST=25; vNM=26; vR=27; vS=28; vSG=29; vSCL=30; vNON=33; vACC=34; vZERO=37; vPA=38
vLN=40; vR16=80; vTMP=64
vA=96; vB=160; vC=192; vXT=160
vK1=48; vO3=49; vK2=50; vQ2=51; vVL=52; vLIN=53; vH3=54; vOSA=58; vRW=60; vRR=61; vFH=62; vFO=63
aX=0; aWF=160; NWF=10
aSEL=242; aNM=246; aRS=250; aD=[[216,220],[212],[96,100]]; aCS=[224,224,120]; aXF=[104,112]
aO=0; aQ=64; aKV=200; aSTAMP=199; aST=[255]

def v(n, k=1): return f"v{n}" if k == 1 else f"v[{n}:{n+k-1}]"
def a(n, k=1): return f"a{n}" if k == 1 else f"a[{n}:{n+k-1}]"
def sp(n): return f"s[{n}:{n+1}]"

class Seg(list):
    def e(self, text, **kw):
        for t in text.strip().split("\n"):
            t = t.strip()
            if t: self.append(I(t, **kw))
        mark_scc(self)
        return self

def stamp(seg, k):
    if not STAMPS or ("--min" in sys.argv and k not in (0, 14)): return
    seg.e(f"s_memrealtime s[96:97]" if "--rt" in sys.argv else f"s_memtime s[96:97]")
    seg.append(W(lg=0))
    seg.e(f"s_mov_b64 exec, {1<<k}\nv_accvgpr_write_b32 a{aST[0]}, s96\ns_mov_b64 exec, -1")
    if k in (0, 14):
        seg.e(f"s_memrealtime s[96:97]")
        seg.append(W(lg=0))
        seg.e(f"s_mov_b64 exec, {1<<(16 if k == 0 else 17)}\nv_accvgpr_write_b32 a{aST[0]}, s96\ns_mov_b64 exec, -1")

def srd(seg, S, ptr, size):
    b = int(S[2:].split(":")[0])
    seg.e(f"s_mov_b32 s{b}, s{ptr}\ns_mov_b32 s{b+1}, s{ptr+1}\ns_mov_b32 s{b+2}, {size}\ns_mov_b32 s{b+3}, 0x00020000")

class Gap:
    def __init__(self, mfma):
        self.mfma = mfma; self.sec = [[], [], []]; self.ext = []; self.end = []; self.blk = False
    def bonus(self): return sum(4*i.passes - 8 for i in self.ext if i.cls == "mfma")
    def flat(self):
        head = ([self.mfma] if self.mfma is not None else []) + self.sec[0] + self.sec[1]
        k = len(self.sec[2])
        if self.ext and not self.blk:
            s2 = self.sec[2]
            while k > 0:
                self.sec[2] = s2[:k-1]
                if gap_cost(self) < 28: break
                k -= 1
            self.sec[2] = s2
        out = head + self.sec[2][:k] + self.ext + self.sec[2][k:] + self.end
        if "--x_m16" in sys.argv and self.mfma is not None and "32x32x16" in self.mfma.op and not self.blk:
            import re
            m = re.match(r"v_mfma_f32_32x32x16_bf16 a\[(\d+):\d+\], (\S+), (\S+), (\S+)", self.mfma.text)
            b = int(m.group(1)); X16[0] += 1; o8 = 8*((X16[0] // 4) % 2)
            mk = lambda c: I(f"v_mfma_f32_16x16x32_bf16 a[{c}:{c+3}], {m.group(2)}, {m.group(3)}, " + ("0" if m.group(4) == "0" else f"a[{c}:{c+3}]"))
            rest = out[1:]
            j = next((i for i, x in enumerate(rest) if x.cls == "lds"), -1) + 1
            first = rest[:j]; rest = rest[j:]
            va = next((i for i, x in enumerate(rest) if x.cls in ("valu", "trans")), None)
            if va is not None and not any(x.cls in ("wait", "mfma", "salu", "vmem") for x in rest[:va]) and not (set(rest[va].wr) & set(r for x in rest[:va] for r in x.rd)): first.append(rest.pop(va))
            out = [mk(b + o8)] + first + [mk(b + o8 + 4)] + rest
        return out
X16 = [0]
def section(i):
    if i.cls in ("vmem", "lds"): return 1
    if i.cls in ("valu", "trans"): return 2
    return 0
class Chain:
    def __init__(self, gaps): self.gaps = gaps; self.k = 0; self.last = 0
    def put(self, group, g0, g1):
        tot = sum(i.cost() for i in group) or 1
        acc = 0
        for i in group:
            want = g0 + min(g1-g0-1, int(acc * (g1-g0) / tot))
            if want > self.k and not scc_reads(i): self.k = want; self.last = 0
            sec = section(i)
            if sec < self.last: self.k += 1
            self.gaps[self.k].sec[sec].append(i); self.last = sec
            acc += i.cost()
        return self.k
    def block(self, group, k):
        if k > self.k: self.k = k
        self.gaps[self.k].sec[2] += list(group); self.last = 2

def gap_cost(gp, base=8):
    c = base if gp.mfma is not None else 0
    ns = 0
    for i in gp.sec[0]:
        if i.cls == "barrier": c += 33
        else: ns += 1
    c += 4*max(0, ns - 1)
    for i in gp.sec[1]: c += mem_cost(i)
    for i in gp.sec[2]: c += (33 if i.cls == "barrier" else 16 if i.cls == "vmem" else 12 if i.cls == "branch" else i.cost())
    return c
def mem_cost(i):
    if i.cls == "lds": return 16 if "write" in i.op else 4
    if "store" in i.op: return 16
    return 4 if i.op.startswith("global") else 8
class Stream:
    stores = []
    def __init__(self, gaps, k=0, cap=opt("cap", 32), base=8): self.gaps = gaps; self.k = k; self.last = 0; self.cap = cap; self.base = base
    def put(self, group, g0, dead, every=0, stsp=0, free=False):
        for i in group:
            sec = section(i); k = self.k
            if g0 > k: k = g0; self.last = 0
            if sec < self.last: k += 1
            if i.cls == "vmem":
                if every: k = max(k, getattr(self, "lastv", -99) + every)
                if stsp and "store" in i.op and Stream.stores: k = max(k, Stream.stores[-1] + stsp)
            d = dead(i) if callable(dead) else dead
            if sec < self.last and self.k >= d: sec = self.last
            k = max(min(k, d), self.k + (1 if sec < self.last else 0))
            while k < d:
                gp = self.gaps[k]; c0 = gap_cost(gp, self.base); gp.sec[sec].append(i); c = gap_cost(gp, self.base); gp.sec[sec].pop()
                if (c <= self.cap + gp.bonus() or c0 <= self.base) and not (free and sec == 0 and c > c0): break
                k += 1
            if k != self.k: self.last = 0
            self.gaps[k].sec[sec].append(i); self.k = k; self.last = sec
            if i.cls == "vmem":
                self.lastv = k
                if "store" in i.op: Stream.stores.append(k)
        return self.k
    def block(self, group, k):
        if k > self.k: self.k = k
        self.gaps[self.k].sec[2] += list(group); self.last = 2; self.gaps[self.k].blk = True
def report(name, gaps, lo, hi, cap=32, base=8):
    xm = lambda l: sum(4*i.passes if i.cls == "mfma" else 4.75 if i.isdot() else 0 for i in l)
    t = sum(max(cap + xm(gaps[n].ext), gap_cost(gaps[n], base) + 8*sum(i.cls == "mfma" for i in gaps[n].ext)) + xm(gaps[n].end) for n in range(lo, hi))
    u = sum(gap_cost(gaps[n], base) for n in range(lo, hi))
    print(f"model {name}: gaps {lo}..{hi} ideal {cap*(hi-lo)} predicted {t} issue {u}", file=sys.stderr)

def weave(main, fill, per):
    out = Seg(); fill = list(fill)
    for m in main:
        out.append(m); out += fill[:per]; fill = fill[per:]
    out += fill
    return out

def dma_stage(sig):
    if sig >= 25: return []
    p = 0 if sig < 10 else (1 if sig < 15 else 2)
    out = Seg()
    vd = (vDQ, vDH, vDG)[p]
    adv = (64*3840, 128*3072, 64*3072)[p]
    out.e(f"s_mov_b32 m0, s{sSL[WSLOT[sig]]}")
    for src in range(2):
        for r in range(2):
            out.append(I(f"global_load_lds_dwordx4 v{vd+r}, {sp(pW+4*p+2*src)} offset:{src*2048+r*1024}", tag=("dma", sig, src, r)))
    if sig not in (9, 14, 24): out.e(f"v_add_u32 v{vd}, {adv}, v{vd}\nv_add_u32 v{vd+1}, {adv}, v{vd+1}")
    return mark_m0(out)
def dma_tag(sig): return ("dma", sig, 1, 1)

def dots(cb):
    out = Seg()
    out.append(W(lg=("xr", cb, 7)))
    for h in range(2): out.append(colsum(a(aRS,4), v(vXT + 8*h, 8)))
    for r in range(16):
        x = vXT + r
        out.e(f"v_dot2_f32_bf16 v{vACC+(r%4)}, v{x}, v{x}, v{vACC+(r%4)}")
    return out
def colsum(d, src):
    return I(f"v_smfmac_f32_16x16x64_bf16 {d}, {a(aSEL,4)}, {src}, v{vIDX}")
def av(p, n, k=1): return v(n, k) if p == 2 else a(n, k)
def x_dma(cb):
    out = Seg()
    out.e(f"s_mov_b32 m0, s{sSL[XSLOT[cb]]}")
    for rg in range(4): out.append(I(f"global_load_lds_dwordx4 v{vXLD+rg}, {sp(pX)} offset:{rg*1024}", tag=("x", cb, rg)))
    if cb < 9:
        for rg in range(4): out.e(f"v_add_u32 v{vXLD+rg}, 128, v{vXLD+rg}")
    return mark_m0(out)
def x_reads(cb):
    off = (XSLOT[cb] - 2)*16384; hi = off >= 65536
    return [I(f"ds_read_b128 {(a(aX+16*cb+4*jj,4), v(vXT+4*jj,4))[c]}, v{vXR+jj+(4 if hi else 0)} offset:{off % 65536}", tag=("xr", cb, 4*c+jj)) for c in range(2) for jj in range(4)]
def mix(g, loads, fill):
    fill = list(fill); n = len(loads)
    for i, grp in enumerate(loads):
        g += grp[:-1]
        if grp[:-1] and grp[-2].wr == [("s","m0")] and fill and fill[0].cls in ("salu","valu") and not scc_live_before(fill, 0): g.append(fill.pop(0))
        k = len(fill) // (n - i)
        g.append(grp[-1])
        while 0 < k < len(fill) and scc_live_before(fill, k): k += 1
        if i + 1 < n and loads[i+1][:-1]:
            while k < len(fill) and scc_live_before(fill, k): k += 1
        g += fill[:k]; fill = fill[k:]
    g += fill
def groups(seg):
    out = []; cur = []
    for i in seg:
        cur.append(i)
        if i.cls == "vmem": out.append(cur); cur = []
    return out, cur

TCH = [tuple(int(y) for y in x.split(":")) for x in opt("tch", "2:4:-2,6:4:17").split(",") if x]
TXR = 2 if opt("txr", 1) == 1 else 8
vTX = 44; vTW = 45; vTG = 46
def masked_loads(lst):
    o = Seg(); cur = None
    for n, ld in lst:
        if n != cur: o.e(f"s_mov_b64 exec, {(1 << n) - 1}"); cur = n
        o.append(ld)
    o.e("s_mov_b64 exec, -1")
    return o
def touch(k):
    o = masked_loads([(TXR*TCH[k][1], I(f"global_load_dword a210, v{vTX}, {sp(sP)} offset:{TCH[k][0]*128}", tag="pf")),
                      (4*TCH[k][1], I(f"global_load_dword a211, v{vTW}, {sp(sP+2)}", tag="pf"))])
    if k + 1 < len(TCH): o.e(f"v_add_u32 v{vTW}, {(TCH[k+1][0] - TCH[k][0])*64*3840}, v{vTW}")
    assert TCH[k][0] + TCH[k][1] <= 10
    return o
def grp(*segs):
    out = []; carry = []
    for sg_ in segs:
        gr, tl = groups(sg_); gr[0] = carry + gr[0]; out += gr; carry = tl
    return out, carry
def prologue():
    g = Seg()
    g.e(f"""
    s_cmp_ge_u32 s2, 256
    s_cbranch_scc1 L_end
    """)
    if STAMPS: g.e(f"v_accvgpr_write_b32 a{aST[0]}, 0")
    stamp(g, 0)
    g.e(f"""
    s_load_dwordx16 s[64:79], s[0:1], 0
    s_load_dwordx4 s[80:83], s[0:1], 64
    s_getpc_b64 s[36:37]
    L_pc0:
    s_lshr_b32 s{sLOC}, s2, 3
    s_mov_b32 s38, L_codeend-L_pc0
    s_mov_b32 s39, 0x00020000
    s_lshl_b32 s{sT0}, s{sLOC}, 12
    v_lshlrev_b32 v64, 4, v0
    """)
    CP = opt("cp0", 0)
    if CP == 0: g.append(I(f"buffer_load_dwordx4 a[200:203], v64, {SJ}, s{sT0} offen", tag="code"))
    else: g.e(f"v_add_u32 v47, s{sT0}, v64")
    cq = f2u(QSCALE); t32 = 98; tb = 99
    PF = opt("pf", 12)
    g.e(f"""
    v_and_b32 v{vLANE}, 63, v0
    v_lshrrev_b32 v0, 6, v0
    s_and_b32 s{sXCD}, s2, 7
    v_readfirstlane_b32 s{sWAVE}, v0
    s_and_b32 s{sT0}, s{sXCD}, 1
    s_lshl_b32 s{sT0}, s{sT0}, 3
    s_and_b32 s{sT1}, s{sLOC}, 7
    s_add_u32 s{sMB}, s{sT0}, s{sT1}
    v_lshrrev_b32 v64, 3, v{vLANE}
    v_and_b32 v65, 7, v{vLANE}
    v_xor_b32 v66, v64, v65
    v_lshlrev_b32 v66, 4, v66
    v_mul_u32_u24 v{vXLD}, 1280, v64
    v_add_u32 v{vXLD}, v{vXLD}, v66
    v_add_u32 v{vXLD+1}, {10240-1024}, v{vXLD}
    v_xor_b32 v67, 1, v64
    v_xor_b32 v66, 16, v66
    v_mul_u32_u24 v67, 1280, v67
    v_add_u32 v67, v67, v66
    v_add_u32 v{vXLD+2}, {20480-2048}, v67
    v_add_u32 v{vXLD+3}, {30720-3072}, v67
    s_lshl_b32 s{sWB}, s{sWAVE}, 12
    s_lshl_b32 s{t32}, s{sMB}, 2
    s_add_u32 s{t32}, s{t32}, s{sWAVE}
    s_mul_i32 s{pX}, s{t32}, 40960
    s_lshr_b32 s{sT0}, s{sXCD}, 1
    s_lshl_b32 s{sT0}, s{sT0}, 2
    s_lshr_b32 s{sT1}, s{sLOC}, 3
    s_add_u32 s{sJ}, s{sT0}, s{sT1}
    v_lshlrev_b32 v66, 4, v65
    v_lshlrev_b32 v67, 1, v64
    v_and_b32 v67, 4, v67
    v_xor_b32 v67, v65, v67
    v_lshlrev_b32 v67, 4, v67
    v_mul_u32_u24 v{vDQ}, 3840, v64
    v_add_u32 v{vDQ}, v{vDQ}, v67
    v_add_u32 v{vDQ+1}, {8*3840-1024}, v{vDQ}
    s_min_u32 s{sT0}, s{sJ}, 14
    s_lshl_b32 s{sT1}, s{sT0}, 8
    s_mul_i32 s{tb}, s{sWAVE}, {16*3840}
    s_add_u32 s{pW}, s{sT1}, s{tb}
    """)
    for i in (8, 0, 7, 1): g.e(f"s_add_u32 s{sSL[i]}, s{sWB}, {L_RING + i*16384}")
    ta = Seg()
    if TCH:
        R = TXR
        ta.e(f"""
        s_lshl_b32 s{sT0}, s{sLOC}, 2
        s_add_u32 s{sT0}, s{sT0}, s{sWAVE}
        s_lshr_b32 s{sT1}, s{sXCD}, 1
        s_lshl_b32 s100, s{sT1}, 10
        v_lshrrev_b32 v75, 2, v{vLANE}
        v_and_b32 v74, 3, v{vLANE}
        v_mul_u32_u24 v75, {64*3840}, v75
        s_and_b32 s99, s{sT0}, 1
        s_lshl_b32 s99, s99, 9
        s_add_u32 s100, s100, s99
        v_lshl_add_u32 v74, v74, 7, s100
        v_min_u32 v74, 3712, v74
        s_lshr_b32 s99, s{sT0}, 1
        s_mul_i32 s99, s99, 3840
        s_add_u32 s99, s99, {TCH[0][0]*64*3840}
        v_add3_u32 v{vTW}, v74, v75, s99
        s_lshl_b32 s{sT1}, s{sT1}, 7
        {"s_add_u32 s%d, s%d, s%d" % (sT0, sT0, sT1) if R == 2 else ""}
        s_mul_i32 s{sT0}, s{sT0}, {R*1280}
        s_and_b32 s{sT1}, s{sXCD}, 1
        s_mul_i32 s{sT1}, s{sT1}, {1024*1280}
        s_add_u32 s{sT0}, s{sT0}, s{sT1}
        v_and_b32 v75, {R-1}, v{vLANE}
        v_mul_u32_u24 v75, 1280, v75
        v_lshrrev_b32 v74, {R.bit_length() - 1}, v{vLANE}
        v_lshl_add_u32 v74, v74, 7, v75
        v_add_u32 v{vTX}, s{sT0}, v74
        """)
    f = Seg()
    for i in range(2, 7): f.e(f"s_add_u32 s{sSL[i]}, s{sWB}, {L_RING + i*16384}")
    f.e(f"""
    s_mov_b32 s{sC11}, 0x3F803F80
    v_lshrrev_b32 v70, 5, v{vLANE}
    v_and_b32 v71, 31, v{vLANE}
    v_and_b32 v72, 7, v71
    v_lshrrev_b32 v73, 3, v71
    v_lshrrev_b32 v74, 1, v73
    v_xor_b32 v74, v72, v74
    v_lshlrev_b32 v74, 7, v74
    v_lshl_add_u32 v73, v73, 10, v74
    s_add_u32 s{sT0}, s{sWB}, 32768
    v_add_u32 v73, s{sT0}, v73
    v_and_b32 v74, 15, v{vLANE}
    v_lshrrev_b32 v75, 2, v74
    v_lshlrev_b32 v69, 6, v75
    v_lshl_add_u32 v69, v70, 9, v69
    v_lshlrev_b32 v75, 7, v75
    v_lshl_add_u32 v75, v70, 10, v75
    v_and_b32 v76, 3, v74
    v_lshlrev_b32 v76, 3, v76
    v_and_b32 v77, 16, v{vLANE}
    v_lshl_add_u32 v76, v77, 1, v76
    v_add_u32 v69, v69, v76
    v_and_b32 v77, 8, v74
    v_lshlrev_b32 v77, 3, v77
    v_xor_b32 v76, v76, v77
    v_add_u32 v76, v75, v76
    """)
    for jj in range(4):
        f.e(f"""
        s_add_u32 s{sT0}, s{sWAVE}, {jj}
        s_and_b32 s{sT0}, s{sT0}, 3
        s_lshl_b32 s{sT1}, s{sT0}, 12
        v_lshl_add_u32 v74, s{sT0}, 1, v70
        v_add_u32 v{vTR[jj][0]}, s{sT1}, v76
        s_and_b32 s{sT1}, s{sT0}, 1
        s_mul_i32 s{sT1}, s{sT1}, {1024 - 2048}
        v_xor_b32 v75, v72, v74
        s_lshl_b32 s{sT0}, s{sT0}, 11
        s_add_u32 s{sT0}, s{sT0}, s{sT1}
        s_add_u32 s{sT0}, s{sT0}, {65536*LEVEL0[('h', jj)]}
        v_xor_b32 v{vTR[jj][1]}, 64, v{vTR[jj][0]}
        v_lshl_add_u32 v{vXR+jj}, v75, 4, v73
        v_add_u32 v{vTH[jj]}, s{sT0}, v69
        v_add_u32 v{vXR+4+jj}, 65536, v{vXR+jj}
        """)
    f.e(f"""
    v_mov_b32 v{vACC}, 0
    v_mov_b32 v{vACC+1}, 0
    v_mov_b32 v{vACC+2}, 0
    v_mov_b32 v{vACC+3}, 0
    v_lshrrev_b32 v74, 2, v{vLANE}
    v_xor_b32 v74, v74, v{vLANE}
    v_and_b32 v74, 8, v74
    v_and_b32 v75, 6, v{vLANE}
    v_or_b32 v74, v74, v75
    v_mov_b32 v75, s{sC11}
    v_cmp_eq_u32 vcc, 0, v74
    v_and_b32 v{vIDX}, 1, v{vLANE}
    v_mul_u32_u24 v{vIDX}, 0xaaaa, v{vIDX}
    v_cndmask_b32 v77, 0, v75, vcc
    v_cmp_eq_u32 vcc, 4, v74
    v_add_u32 v{vIDX}, 0x4444, v{vIDX}
    v_accvgpr_write_b32 a{aSEL}, v77
    v_cndmask_b32 v75, 0, v75, vcc
    v_accvgpr_write_b32 a{aSEL+1}, v77
    v_accvgpr_write_b32 a{aSEL+2}, v75
    v_accvgpr_write_b32 a{aSEL+3}, v75
    """)
    for d in [aRS] + aD[0]:
        for k in range(4): f.e(f"v_accvgpr_write_b32 a{d+k}, 0")
    PRE = opt("pre", 27)
    fc = Seg(); fc += ta; fc += f
    while PRE < len(fc) and scc_live_before(fc, PRE): PRE += 1
    g += fc[:PRE]; fc = fc[PRE:]
    g.append(W(lg=0))
    if "--xsp" in sys.argv: stamp(g, 28)
    g.e(f"""
    s_add_u32 s{pX}, s{sP}, s{pX}
    s_addc_u32 s{pX+1}, s{sP+1}, 0
    s_add_u32 s{pW}, s{sP+2}, s{pW}
    s_addc_u32 s{pW+1}, s{sP+3}, 0
    """)
    if opt("tw", 1): g += masked_loads([(1, I(f"global_load_dword a211, v{vDQ}, {sp(pW)}", tag="pf"))])
    g += x_dma(0)
    g.e(f"""
    s_sub_u32 s{pW+2}, s{pW}, {2048-128}
    s_subb_u32 s{pW+3}, s{pW+1}, 0
    """)
    first = Seg()
    first += dma_stage(0)[:5]
    first += x_dma(1)[:5]; first += dma_stage(0)[5:]
    first += dma_stage(1)[:5]; first += x_dma(1)[5:]; first += dma_stage(1)[5:]
    if CP == 1: g.append(I(f"buffer_load_dwordx4 a[200:203], v47, {SJ}, 0 offen", tag="code"))
    if CP == 2: first.append(I(f"buffer_load_dwordx4 a[200:203], v47, {SJ}, 0 offen", tag="code"))
    for k_ in range(len(TCH)):
        if TCH[k_][2] == -2: first += touch(k_)
    f = Seg()
    f.e(f"""
    s_lshl_b32 s{sT0}, s2, 2
    s_add_u32 s{sT0}, s{sT0}, s{sWAVE}
    s_mul_i32 s{sT0}, s{sT0}, 384
    v_lshlrev_b32 v{vTG}, 7, v{vLANE}
    v_add_u32 v{vTG}, s{sT0}, v{vTG}
    """)
    srd(f, SX, sP+0, 2621440)
    f.e("s_add_u32 s0, s36, L_p1c-L_pc0\ns_addc_u32 s1, s37, 0")
    srd(f, SWS, sP+18, WS_SIZE); srd(f, SOUT, sP+14, 2621440); srd(f, SDBG, sP+16, 256)
    f.e(f"""
    v_mul_u32_u24 v{vDG}, 3072, v64
    v_add_u32 v{vDG}, v{vDG}, v67
    v_add_u32 v{vDG+1}, {8*3072-1024}, v{vDG}
    v_lshrrev_b32 v67, 2, v{vLANE}
    v_mul_u32_u24 v67, 3072, v67
    v_and_b32 v68, 3, v{vLANE}
    v_lshl_add_u32 v{vDH}, v68, 4, v67
    v_add_u32 v{vDH+1}, {16*3072-1024}, v{vDH}
    v_lshrrev_b32 v74, 4, v71
    v_mul_u32_u24 v74, 49152, v74
    v_and_b32 v75, 15, v71
    v_lshlrev_b32 v75, 4, v75
    v_lshl_add_u32 v75, v70, 8, v75
    v_add_u32 v{vH}, v74, v75
    s_min_u32 s{sT0}, s{sJ}, 14
    s_lshl_b32 s{sT1}, s{sT0}, 19
    s_cmp_lt_u32 s{sJ}, 10
    s_cselect_b32 s{tb}, 9, 8
    s_lshl_b32 s{tb}, s{t32}, s{tb}
    s_add_u32 s{sEB}, s{sT1}, s{tb}
    s_add_u32 s{sEB+1}, s{sEB}, {1<<18}
    s_cmp_lt_u32 s{sJ}, 5
    s_cselect_b32 s{sSC}, {cq}, 1.0
    s_and_b32 s{sT0}, s{sJ}, 3
    s_lshl_b32 s{sT0}, s{sT0}, 2
    s_lshr_b32 s{sT1}, s{sJ}, 2
    s_add_u32 s{sT1}, s{sT0}, s{sT1}
    s_lshr_b32 s{sT0}, s{sT1}, 1
    s_mul_i32 s{sT0}, s{sT0}, 3
    s_and_b32 s{sT1}, s{sT1}, 1
    s_mul_i32 s{t32}, s{t32}, {96*1024}
    s_add_u32 s{t32}, s{t32}, {WS_H}
    s_add_u32 s{sTA}, s{sT0}, s{sT1}
    s_lshl_b32 s{sTB}, s{sTA}, 7
    s_mul_i32 s{tb}, s{sWAVE}, {16*3072}
    s_add_u32 s{sTB}, s{sTB}, s{tb}
    s_add_u32 s{pW+8}, s{sP+8}, s{sTB}
    s_addc_u32 s{pW+9}, s{sP+9}, 0
    s_add_u32 s{pW+10}, s{sP+10}, s{sTB}
    s_addc_u32 s{pW+11}, s{sP+11}, 0
    s_sub_u32 s{pW+10}, s{pW+10}, 2048
    s_subb_u32 s{pW+11}, s{pW+11}, 0
    s_lshl_b32 s{sTB}, s{sTA}, 11
    s_add_u32 s{sHB+1}, s{t32}, s{sTB}
    s_lshl_b32 s{sTA}, s{sT0}, 1
    s_add_u32 s{sTA}, s{sTA}, s{sT1}
    s_add_u32 s{sTA}, s{sTA}, 4
    s_lshl_b32 s{sTB}, s{sTA}, 6
    s_lshl_b32 s{tb}, s{tb}, 1
    s_add_u32 s{sTB}, s{sTB}, s{tb}
    s_add_u32 s{pW+4}, s{sP+8}, s{sTB}
    s_addc_u32 s{pW+5}, s{sP+9}, 0
    s_add_u32 s{pW+6}, s{sP+10}, s{sTB}
    s_addc_u32 s{pW+7}, s{sP+11}, 0
    s_sub_u32 s{pW+6}, s{pW+6}, 2048
    s_subb_u32 s{pW+7}, s{pW+7}, 0
    s_lshl_b32 s{sTB}, s{sTA}, 10
    s_add_u32 s{sHB}, s{t32}, s{sTB}
    v_lshrrev_b32 v74, 2, v71
    v_lshlrev_b32 v74, 14, v74
    v_and_b32 v75, 3, v71
    v_lshlrev_b32 v75, 4, v75
    v_lshl_add_u32 v75, v70, 6, v75
    v_add_u32 v74, v74, v75
    s_cmp_lt_u32 s{sJ}, 15
    s_cselect_b32 s{sT0}, 0, {OOB}
    v_add_u32 v74, s{sT0}, v74
    v_lshlrev_b32 v75, 4, v71
    v_lshl_add_u32 v75, v70, 15, v75
    s_cmp_lt_u32 s{sJ}, 10
    s_cselect_b64 vcc, -1, 0
    v_cndmask_b32 v{vEP}, v74, v75, vcc
    s_lshl_b32 s{sTA}, s2, 2
    s_add_u32 s{sTA}, s{sTA}, s{sWAVE}
    v_and_b32 v75, 3, v{vLANE}
    s_sub_u32 s{sT0}, s{sTA}, 720
    s_cmp_lt_u32 s{sT0}, 32
    s_cselect_b32 s{sT1}, 0, {OOB}
    s_and_b32 s{sT0}, s{sT0}, 31
    s_lshl_b32 s{sT0}, s{sT0}, 10
    s_add_u32 s{sT0}, s{sT0}, s{sT1}
    s_add_u32 s{sT0}, s{sT0}, {WS_C}
    v_lshlrev_b32 v{vCW}, 4, v{vLANE}
    v_add_u32 v{vCST}, s{sT0}, v{vCW}
    v_and_b32 v80, 3, v{vLANE}
    v_cmp_eq_u32 vcc, 0, v80
    v_mov_b32 v81, s{sC11}
    s_lshr_b32 s{sT0}, s2, 4
    s_lshl_b32 s{sT0}, s{sT0}, 8
    v_cndmask_b32 v80, 0, v81, vcc
    v_mov_b32 v81, v80
    v_mov_b32 v82, v80
    v_mov_b32 v83, v80
    v_lshrrev_b32 v{vPA}, 2, v{vLANE}
    v_lshlrev_b32 v{vPA}, 8, v{vPA}
    v_lshl_add_u32 v{vPA}, v75, 4, v{vPA}
    v_add_u32 v{vPA}, {F_QKV}, v{vPA}
    s_and_b32 s{sT1}, s2, 15
    s_lshl_b32 s{sT1}, s{sT1}, 2
    s_add_u32 s{sT0}, s{sT0}, s{sT1}
    s_add_u32 s{sFLQ}, s{sT0}, {F_QKV}
    s_lshl_b32 s{sT0}, s{sWAVE}, 2
    s_add_u32 s{sT0}, s{sT0}, {L_X}
    v_and_b32 v{vCR}, 511, v{vCW}
    v_add_u32 v{vCW}, s{sT0}, v{vCW}
    v_add_u32 v{vCR}, {L_X}, v{vCR}
    """)
    k = min(opt("late", 999), len(f))
    while k < len(f) and scc_live_before(f, k): k += 1
    fc = list(fc) + f[:k]; LATE[:] = f[k:]
    k = min(max(opt("mid", 150), len(ta) - PRE), len(fc))
    while k < len(fc) and scc_live_before(fc, k): k += 1
    g += fc[:k]
    if "--xsp" in sys.argv: stamp(g, 29)
    g += first
    if "--xsp" in sys.argv: stamp(g, 31)
    g += fc[k:]
    nn = Seg()
    nn.e(f"""
    s_or_b32 s{sT0}, s2, s{sWAVE}
    s_cmp_lg_u32 s{sT0}, 0
    s_cbranch_scc1 L_non@
    s_memrealtime s[6:7]
    """)
    nn.append(W(lg=0))
    nn.e(f"s_or_b32 s6, s6, 1\nv_mov_b32 v68, s6\nv_mov_b32 v69, 0")
    nn.append(I(f"buffer_store_dword v68, v69, {SDBG}, 0 offen sc1", cond=True))
    nn.e("L_non@:")
    NONCE[:] = nn
    if not LATE: g += nonce("")
    if "--xsp" in sys.argv: stamp(g, 30)
    g.append(W(vm=("x", 0, 3)))
    stamp(g, 1)
    g += x_reads(0)
    g += x_dma(2)
    for k_ in range(len(TCH)):
        if TCH[k_][2] == -1: g += touch(k_)
    g += dots(0)
    g.append(W(vm=dma_tag(0))); g.e("s_barrier")
    stamp(g, 2)
    g2, c2 = grp(dma_stage(2))
    for n in range(DIST):
        g += tr_reads(n)
        if n % 2: g += g2[n//2]
    g += c2
    stamp(g, 3)
    g.e(f"s_cmp_ge_u32 s{sJ}, 10")
    g.append(W(lg=("tr", 3, 1)))
    g.e("s_cbranch_scc1 L_clsV")
    return g
LATE = []; NONCE = []
def clone(lst, sfx=""):
    o = Seg()
    for i in lst: o.append(W(vm=i.wvm, lg=i.wlg) if i.cls == "wait" else I(i.text.replace("@", sfx), tag=i.tag, cond=i.cond))
    mark_scc(o); return o
def nonce(sfx): return clone(NONCE, sfx)

def job_params():
    jp = Seg()
    jp.e(f"""
    s_mul_i32 s{sTB}, s{sTA}, 6554
    s_lshr_b32 s{sTB}, s{sTB}, 16
    s_mul_i32 s{sT0}, s{sTB}, 10
    s_sub_u32 s{sTC}, s{sTA}, s{sT0}
    s_cmp_lt_u32 s{sTB}, 48
    s_cselect_b32 s36, s{sP+12}, s{sP+4}
    s_cselect_b32 s37, s{sP+13}, s{sP+5}
    s_mov_b32 s38, {640*1280}
    s_cselect_b32 s38, {1536*1280}, s38
    s_mov_b32 s39, 0x00020000
    v_lshrrev_b32 v74, 2, v64
    v_and_b32 v75, 3, v64
    v_lshl_add_u32 v75, v74, 3, v75
    v_mul_u32_u24 v75, 1280, v75
    v_add_u32 v75, v75, v66
    v_lshlrev_b32 v74, 30, v74
    v_add_u32 v76, v75, v74
    s_cmp_lt_u32 s{sTA}, 720
    s_cselect_b32 s{sT0}, 0, {OOB}
    v_lshlrev_b32 v{vJST}, 4, v{vLANE}
    v_or_b32 v{vJST}, s{sT0}, v{vJST}
    v_or_b32 v75, s{sT0}, v75
    v_or_b32 v76, s{sT0}, v76
    """)
    for kg in range(4):
        jp.e(f"""
        s_lshl_b32 s{sT0}, s{sTB}, 2
        s_sub_u32 s{sT0}, s{sT0}, {192-kg}
        s_mul_i32 s{sT1}, s{sT0}, 171
        s_lshr_b32 s{sT1}, s{sT1}, 9
        s_mul_i32 s98, s{sT1}, 3
        s_sub_u32 s98, s{sT0}, s98
        s_mul_i32 s{sT1}, s{sT1}, 20
        s_lshl_b32 s99, s98, 2
        s_cmp_eq_u32 s98, 2
        s_cselect_b32 s99, 16, s99
        s_cselect_b64 s[100:101], -1, 0
        s_add_u32 s{sT1}, s{sT1}, s99
        s_lshl_b32 s{sT0}, s{sTB}, 5
        s_add_u32 s{sT0}, s{sT0}, {16*(kg//2)+4*(kg%2)}
        s_cmp_lt_u32 s{sTB}, 48
        s_cselect_b32 s{sT0}, s{sT0}, s{sT1}
        s_cselect_b64 s[100:101], 0, s[100:101]
        s_mul_i32 s{sT0}, s{sT0}, 1280
        s_lshl_b32 s{sT1}, s{sTC}, 7
        s_add_u32 s{sJS+kg}, s{sT0}, s{sT1}
        v_cndmask_b32 v{vJK+kg}, v75, v76, s[100:101]
        """)
    jp.e(f"""
    s_add_u32 s{sSL[9]}, s{sWB}, {L_J}
    v_lshrrev_b32 v74, 4, v{vLANE}
    v_lshlrev_b32 v74, 10, v74
    v_and_b32 v75, 15, v{vLANE}
    v_lshrrev_b32 v76, 2, v75
    v_lshl_add_u32 v74, v76, 7, v74
    v_and_b32 v75, 3, v75
    v_lshl_add_u32 v74, v75, 3, v74
    v_add_u32 v{vJTR}, s{sSL[9]}, v74
    """)
    return jp

def job_dma():
    jobdma = Seg()
    for kg, m_ in ((0, f"s_mov_b32 m0, s{sSL[9]}"), (1, "s_bitset1_b32 m0, 10"), (3, "s_bitset1_b32 m0, 11"), (2, "s_bitset0_b32 m0, 10")):
        jobdma.e(m_)
        jobdma.append(I(f"buffer_load_dwordx4 v{vJK+kg}, {SJ}, s{sJS+kg} offen lds", tag=("job", kg)))
    return mark_m0(jobdma)
def job_par():
    jobdma = Seg()
    for tg in range(4):
        jobdma.e(f"""
        s_lshl_b32 s98, s{sTC}, 2
        s_add_u32 s98, s98, {tg}
        s_mul_i32 s99, s98, 52
        s_lshr_b32 s99, s99, 8
        s_mul_i32 s99, s99, 355
        s_add_u32 s98, s98, s99
        s_mul_i32 s99, s{sTB}, 5
        s_add_u32 s98, s98, s99
        s_lshl_b32 s98, s98, 10
        s_add_u32 s{sJO[tg]}, s98, {WS_W}
        """)
    return jobdma

NTAIL = 4
def p1_order():
    o = []
    for ks in range(40): o += [(0, ks, u) for u in range(4)]
    for ks in range(40): o += [(1, ks, u) for u in range(2)]
    k1 = 40 - 4*NTAIL
    for ks in range(k1): o += [(2, ks, u) for u in (0, 2, 1, 3)]
    for ks in range(k1, 40): o += [(2, ks, 0), (2, ks, 2)]
    for ks in range(k1, 40): o += [(2, ks, 1), (2, ks, 3)]
    return o
ORDER = p1_order()
def stage_of(p, ks): return (ks//4, 10 + ks//8, 15 + ks//4)[p]
DIST = 8
def frag_read(p, ks, u, f, tag):
    slot = WSLOT[stage_of(p, ks)]
    if p != 1: off = (u//2)*2048; reg = vTR[ks % 4][u % 2]; d = 512
    else: off = (ks % 8)//4*8192 + u*2048; reg = vTH[ks % 4]; d = 256
    off += slot % 4*16384
    r = a if f >= aWF else v
    return [I(f"ds_read_b64_tr_b16 {r(f,2)}, v{reg} offset:{off}", tag=tag+(0,)),
            I(f"ds_read_b64_tr_b16 {r(f+2,2)}, v{reg} offset:{off+d}", tag=tag+(1,))]
def tr_reads(n):
    if n >= 400: return []
    return frag_read(*ORDER[n], aWF + 4*(n % NWF), ("tr", n))
POS = {o_: n for n, o_ in enumerate(ORDER)}
FIRST = {}
for n_, (p_, ks_, u_) in enumerate(ORDER): FIRST.setdefault(stage_of(p_, ks_), n_ - DIST)
SINGLE = opt("single", 12)
BAR = {FIRST[s_]: [s_] for s_ in range(1, SINGLE)}
for s_ in range(SINGLE, 25, 2): BAR[FIRST[s_]] = [x for x in (s_, s_+1) if x < 25]
XB1 = opt("xb1", 238); XB2 = opt("xb2", 364 if SINGLE % 2 == 0 else 357)
BLAND = {s_: n_ for n_, l_ in BAR.items() for s_ in l_}
for x_ in (XB1, XB2): BAR.setdefault(x_, [])
XREAD = [(POS[(2, ks_, 0)] - DIST, ks_, (1, 3), 0) for ks_ in range(40 - 4*NTAIL, 36, 4)] + [(BLAND[24], 36, (0, 2), 1), (max(BLAND[24] + 1, POS[(2, 32, 0)] - DIST + 5), 36, (1, 3), 0)]
def read_plan():
    seq = [(max(n - DIST, -1), ORDER[n]) for n in range(400)] + [(g_ + 0.5, (2, ks, u)) for g_, ks, us, _ in XREAD for u in us]
    seq.sort(key=lambda x: x[0])
    lev0 = {}; cur = {}; tog = collections.defaultdict(list); last = {}
    for g_, (p, ks, u) in seq:
        key = ('h', ks % 4) if p == 1 else ('r', ks % 4, u % 2)
        reg = vTH[ks % 4] if p == 1 else vTR[ks % 4][u % 2]
        lv = WSLOT[stage_of(p, ks)] // 4; last[stage_of(p, ks)] = g_
        if key not in cur: lev0[key] = lv
        elif cur[key][0] != lv:
            assert int(cur[key][1]) < int(g_); tog[int(cur[key][1])].append(reg)
        cur[key] = (lv, g_)
    done = {}
    for s_, g_ in last.items():
        m = int(g_) + 4
        while m % 4 != 3: m += 1
        done[s_] = min([b for b in BAR if b > m] + [999])
    return lev0, tog, done
LEVEL0, TOG, FREE = read_plan()
assert all(v_ == 0 for k_, v_ in LEVEL0.items() if k_[0] == 'r')
def p1_mfma(n, cls):
    p, ks, u = ORDER[n]
    acc = (vA, vB, vC)[p] + 16*u
    wf = a(aWF + 4*(n % NWF), 4); x = a(aX + 4*ks, 4)
    c = "0" if ks == 0 else v(acc, 16)
    if cls == 'V' and p == 0: return I(f"v_mfma_f32_32x32x16_bf16 {v(acc,16)}, {x}, {wf}, {c}")
    return I(f"v_mfma_f32_32x32x16_bf16 {v(acc,16)}, {wf}, {x}, {c}")

def cs_out(p, T):
    out = Seg()
    for k, d in enumerate(aD[p]):
        t = T + 2*k
        if p == 2: out.e(f"v_add_f32 v{t}, v{d}, v{d+1}")
        else: out.e(f"v_accvgpr_read_b32 v{t}, a{d}\nv_accvgpr_read_b32 v{t+1}, a{d+1}\nv_add_f32 v{t}, v{t}, v{t+1}")
        out.e(f"""
        v_cvt_pk_bf16_f32 v{t+1}, v{t}, v{t}
        v_and_b32 v{t+1}, 0xffff0000, v{t+1}
        v_sub_f32 v{t}, v{t}, v{t+1}
        v_cvt_pk_bf16_f32 v{t}, v{t+1}, v{t}
        """)
    for k in range(len(aD[p])): out.append(I(f"ds_write_b32 v{vCW}, v{T+2*k} offset:{L_CS[p] - L_X + 1024*k}", tag=("csw", p, k)))
    return out
CS_TILES = [(0, 1, 2, 3), (0, 1), (0, 2, 1, 3)]
def cs_in(p):
    return [I(f"ds_read_b128 {av(p, aCS[p]+4*k,4)}, v{vCR} offset:{L_CS[p] - L_X + 512*k}", tag=("csr", p, k)) for k in range(len(CS_TILES[p]))]
def cs_mfma(p, k, cls):
    acc = v((vA, vB, vC)[p] + 16*CS_TILES[p][k], 16); cs = av(p, aCS[p]+4*k, 4); nm = a(aNM, 4)
    if cls == 'V' and p == 0: cs, nm = nm, cs
    return I(f"v_mfma_f32_32x32x16_bf16 {acc}, {cs}, {nm}, {acc}")
def exchange(gaps, p, cls, g_out, bar, T, at):
    st = Stream(gaps, g_out); st.put(cs_out(p, T), g_out, bar - 2)
    gaps[bar].sec[0].insert(0, W(lg=("csw", p, len(aD[p]) - 1)))
    st = Stream(gaps, bar); st.put(cs_in(p), bar, bar + 1)
    for k, n in enumerate(at): gaps[n].ext += [W(lg=("csr", p, k)), cs_mfma(p, k, cls)]

tmpctr = [0]
def epi_qk(acc, t, sbase, vscale, tag):
    out = Seg()
    for pr in range(2):
        T = vTMP + 12*(tmpctr[0] % 2); tmpctr[0] += 1
        for e in range(8): out.e(f"v_mul_f32 v{T+e}, v{vscale}, v{acc+8*pr+e}")
        for e in (0, 2, 1, 3): out.e(f"v_cvt_pk_bf16_f32 v{T+8+e}, v{T+2*e}, v{T+2*e+1}")
        out.e(f"s_add_u32 s{sT0+pr}, s{sbase}, {(4*t+2*pr)*32768}")
        out.e(f"v_permlane32_swap_b32 v{T+8}, v{T+10}\nv_permlane32_swap_b32 v{T+9}, v{T+11}")
        out.append(I(f"buffer_store_dwordx4 {v(T+8,4)}, v{vEP}, {SWS}, s{sT0+pr} offen sc1", tag=tag))
    return out
def epi_v(acc, t, sbase, voff, tag):
    out = Seg()
    out.e(f"s_add_u32 s{sT0+t}, s{sbase}, {8*t*16384}")
    for m in range(2):
        T = vTMP + 8*(tmpctr[0] % 2); tmpctr[0] += 1
        for e in range(8): out.e(f"v_mul_f32 v{T+e}, v{vR16+8*m+e}, v{acc+8*m+e}")
        for e in range(4): out.e(f"v_cvt_pk_bf16_f32 v{T+e}, v{T+2*e}, v{T+2*e+1}")
        out.append(I(f"buffer_store_dwordx4 {v(T,4)}, v{voff}, {SWS}, s{sT0+t} offen offset:{128*m} sc1", tag=tag))
    return out
def epi_g(acc, t, shb, tag, ud=32):
    out = Seg()
    ag = acc + 16*t; au = acc + ud + 16*t
    for pp in range(2):
        P = vTMP + 24 + 4*(pp)
        for c4 in range(2):
            T = vTMP + 8*(tmpctr[0] % 3); tmpctr[0] += 1
            r0 = 8*pp + 4*c4
            for e in range(4): out.e(f"v_mul_f32 v{T+e}, v{vSG}, v{ag+r0+e}")
            for e in range(4): out.e(f"v_exp_f32 v{T+e}, v{T+e}")
            for e in range(4): out.e(f"v_fma_f32 v{T+e}, v{T+e}, v{vS}, v{vS}")
            for e in range(4): out.e(f"v_rcp_f32 v{T+e}, v{T+e}")
            for e in range(4): out.e(f"v_mul_f32 v{T+4+e}, v{T+e}, v{au+r0+e}")
            out.e(f"v_cvt_pk_bf16_f32 v{P+2*c4}, v{T+4}, v{T+5}\nv_cvt_pk_bf16_f32 v{P+2*c4+1}, v{T+6}, v{T+7}")
        out.append(I(f"buffer_store_dwordx4 {v(P,4)}, v{vH}, {SWS}, s{shb} offen offset:{t*1024+pp*512} sc1", tag=tag))
    return out

def job_process():
    out = Seg()
    out.append(W(vm=("job", 2)))
    for tg in range(4):
        T = vTMP + 4*tg
        out.append(I(f"ds_read_b64_tr_b16 {v(T,2)}, v{vJTR} offset:{tg*32}", tag=("jtr", tg, 0)))
        out.append(I(f"ds_read_b64_tr_b16 {v(T+2,2)}, v{vJTR} offset:{tg*32+512}", tag=("jtr", tg, 1)))
    out2 = Seg()
    out2.append(W(lg=("jtr", 3, 1)))
    for tg in range(4):
        out2.append(I(f"buffer_store_dwordx4 {v(vTMP+4*tg,4)}, v{vJST}, {SWS}, s{sJO[tg]} offen sc1", tag="h1"))
    return out, out2

def spin(seg, name, addr, dst, width, srd_, cmp_lines):
    seg.e(f"s_mov_b32 s{sSPIN}, 0x40000")
    seg.e(f"L_sp{name}:")
    seg.e(cmp_lines)
    seg.e(f"s_cbranch_vccz L_ok{name}")
    seg.e(f"s_sub_u32 s{sSPIN}, s{sSPIN}, 1\ns_cbranch_scc1 L_ok{name}\ns_sleep 1")
    op = {1:"buffer_load_dword",4:"buffer_load_dwordx4"}[width]
    seg.append(I(f"{op} {v(dst,width)}, v{addr}, {srd_}, 0 offen sc1", cond=True))
    seg.e("s_waitcnt vmcnt(0)")
    seg.e(f"s_branch L_sp{name}")
    seg.e(f"L_ok{name}:")
def all4(d, non):
    return f"v_xor_b32 v{d}, {non}, v{d}\nv_xor_b32 v{d+1}, {non}, v{d+1}\nv_xor_b32 v{d+2}, {non}, v{d+2}\nv_xor_b32 v{d+3}, {non}, v{d+3}\nv_or3_b32 v{d}, v{d}, v{d+1}, v{d+2}\nv_or_b32 v{d}, v{d}, v{d+3}\nv_cmp_ne_u32 vcc, 0, v{d}"
def publish(seg, name, soff_reg, t):
    seg.e(f"s_cmp_lg_u32 s{sWAVE}, 0\ns_cbranch_scc1 L_fl{name}")
    seg.e(f"s_mov_b64 exec, 1\nv_mov_b32 v{t}, s{sNON}\nv_mov_b32 v{t+1}, 0")
    seg.append(I(f"buffer_store_dword v{t}, v{t+1}, {SWS}, s{soff_reg} offen sc1", cond=True))
    seg.e(f"s_mov_b64 exec, -1\nL_fl{name}:")

def wsbase(g, p, soff):
    g.e(f"s_add_u32 s{p}, s24, s{soff}\ns_addc_u32 s{p+1}, s25, 0")

def attn_addr_setup():
    g = Seg()
    T0, T1, T2, T3 = 44, 45, 47, vSCL
    sTA, sTB, sTC = 98, 99, 100
    g.e(f"""
    s_lshl_b32 s{sHD}, s{sXCD}, 2
    s_lshr_b32 s{sTA}, s{sLOC}, 3
    s_add_u32 s{sHD}, s{sHD}, s{sTA}
    s_and_b32 s{sQB}, s{sLOC}, 7
    s_and_b32 s{sKH}, s{sWAVE}, 1
    s_lshr_b32 s{sTA}, s{sHD}, 1
    s_mul_i32 s{sTA}, s{sTA}, 5
    s_and_b32 s{sTB}, s{sHD}, 1
    s_mul_i32 s{sTC}, s{sTB}, 3
    s_add_u32 s{sTC}, s{sTC}, s{sTA}
    s_lshl_b32 s{sTC}, s{sTC}, 15
    s_add_u32 s{sTA}, s{sTA}, 2
    s_lshl_b32 s{sTA}, s{sTA}, 15
    s_lshl_b32 s{sTB}, s{sTB}, 3
    s_add_u32 s{sTB}, s{sTB}, s{sTA}
    s_mul_i32 s{sTA}, s{sHD}, {5*16384}
    v_lshrrev_b32 v{T0}, 5, v{vLANE}
    v_and_b32 v{T1}, 31, v{vLANE}
    v_lshlrev_b32 v{T2}, 4, v{T1}
    v_lshl_add_u32 v{vK1}, v{T0}, 15, v{T2}
    v_add_u32 v{vK1}, s{sTC}, v{vK1}
    v_add_u32 v{T2}, s{sTB}, v{T2}
    v_cmp_eq_u32 vcc, 0, v{T0}
    v_mov_b32 v{T3}, {WS_C-WS_K}
    v_mov_b32 v{vQ2}, {WS_C-WS_Q+16}
    v_cndmask_b32 v{vK2}, v{T3}, v{T2}, vcc
    v_cndmask_b32 v{vQ2}, v{vQ2}, v{T2}, vcc
    v_lshrrev_b32 v{T2}, 2, v{T1}
    v_lshlrev_b32 v{T2}, 14, v{T2}
    v_add_u32 v{T2}, s{sTA}, v{T2}
    v_and_b32 v{T3}, 3, v{T1}
    v_lshlrev_b32 v{T3}, 4, v{T3}
    v_lshl_add_u32 v{T3}, v{T0}, 6, v{T3}
    v_add_u32 v{T2}, v{T2}, v{T3}
    v_mov_b32 v{T3}, {WS_C-WS_V+16}
    v_cmp_gt_u32 vcc, 20, v{T1}
    s_lshl_b32 s{sTA}, s{sKH}, 14
    s_add_u32 s{sTB}, s{sTA}, {WS_K+4096}
    s_lshr_b32 s{sTA}, s{sTA}, 1
    v_cndmask_b32 v{T2}, v{T3}, v{T2}, vcc
    v_mov_b32 v{T3}, {WS_C-WS_V}
    v_cmp_eq_u32 vcc, 20, v{T1}
    """)
    wsbase(g, pK, sTB)
    g.e(f"""
    v_cndmask_b32 v{vVL}, v{T2}, v{T3}, vcc
    s_add_u32 s{sTB}, s{sTA}, {WS_V+4096}
    """)
    wsbase(g, pV, sTB)
    g.e(f"""
    s_lshl_b32 s{sTA}, s{sQB}, 1
    s_lshr_b32 s{sTB}, s{sWAVE}, 1
    s_add_u32 s{sTA}, s{sTA}, s{sTB}
    s_lshl_b32 s{sTA}, s{sTA}, 11
    s_lshl_b32 s{sTB}, s{sKH}, 10
    s_add_u32 s{sTC}, s{sTA}, s{sTB}
    """)
    wsbase(g, pQ, sTC)
    g.e(f"""
    s_xor_b32 s{sQHI}, s{sTC}, 1024
    s_mul_i32 s{sTB}, s{sHD}, {3*32768}
    s_add_u32 s{sOST}, s{sTC}, s{sTB}
    s_add_u32 s{sOST}, s{sOST}, {WS_O}
    """)
    wsbase(g, pTW, sQHI)
    g2 = Seg()
    g2.e(f"""
    s_lshr_b32 s{sTA}, s{sXCD}, 1
    s_lshl_b32 s{sTA}, s{sTA}, 3
    s_add_u32 s{sRB}, s{sTA}, s{sQB}
    s_and_b32 s{sTA}, s{sXCD}, 1
    s_lshl_b32 s{sTA}, s{sTA}, 2
    s_lshr_b32 s{sTB}, s{sLOC}, 3
    s_add_u32 s{sCB}, s{sTA}, s{sTB}
    v_lshlrev_b32 v{T2}, 4, v{T1}
    v_lshl_add_u32 v{vOSA}, v{T0}, 15, v{T2}
    v_lshlrev_b32 v{vLIN}, 4, v{vLANE}
    v_lshrrev_b32 v{T2}, 4, v{vLANE}
    v_and_b32 v{T3}, 15, v{vLANE}
    v_lshlrev_b32 v{T3}, 4, v{T3}
    v_lshl_add_u32 v{vO3}, v{T2}, 15, v{T3}
    s_mul_i32 s{sTA}, s{sWAVE}, {LW}
    v_add_u32 v{vRW}, s{sTA}, v{vLIN}
    s_xor_b32 s{sTB}, s{sWAVE}, 1
    s_mul_i32 s{sTA}, s{sTB}, {LW}
    v_add_u32 v{vRR}, s{sTA}, v{vLIN}
    v_add_u32 v{vFH}, {F_H-F_QKV}, v{vPA}
    s_lshl_b32 s{sTA}, s{sRB}, 10
    s_mul_i32 s{sTB}, s{sWAVE}, {24*32768}
    s_add_u32 s{sOP}, s{sTA}, s{sTB}
    s_add_u32 s{sOP}, s{sOP}, {WS_O}
    s_add_u32 s{sOS2}, s{sOST}, 65536
    s_mov_b32 s{sSAFE}, 0
    """)
    for u in range(4):
        g2.e(f"""
        s_add_u32 s{sTA}, s{sWAVE}, {u+1}
        s_and_b32 s{sTA}, s{sTA}, 3
        s_mul_i32 s{sTB}, s{sTA}, 49152
        v_add_u32 v{vH3+u}, s{sTB}, v{vLIN}
        """)
    g3 = Seg()
    g3.e(f"""
    s_mul_i32 s{sLW}, s{sWAVE}, {LW}
    s_mul_i32 s{sTA}, s{sCB}, {72*5*1024}
    s_mul_i32 s{sTB}, s{sWAVE}, {12*5*1024}
    s_add_u32 s{sWP}, s{sTA}, s{sTB}
    s_add_u32 s{sWP}, s{sWP}, {WS_W}
    s_mul_i32 s{sTB}, s{sWAVE}, {6*5*1024}
    s_add_u32 s{sWP2}, s{sTA}, s{sTB}
    s_add_u32 s{sWP2}, s{sWP2}, {WS_W + 48*5*1024}
    s_mul_i32 s{sTA}, s{sRB}, {4*48*1024}
    s_mul_i32 s{sTB}, s{sWAVE}, {12*1024}
    s_add_u32 s{sHP}, s{sTA}, s{sTB}
    s_add_u32 s{sHP}, s{sHP}, {WS_H}
    s_add_u32 s{sFL}, s{sFLQ}, {F_H-F_QKV}
    """)
    for u in range(4):
        g3.e(f"""
        s_add_u32 s{sTA}, s{sWAVE}, {u+1}
        s_and_b32 s{sTA}, s{sTA}, 3
        s_lshl_b32 s{sTA}, s{sTA}, 8
        s_add_u32 s{sOPU+u}, s{sOP}, s{sTA}
        """)
    return g, g2, g3

def kv_set(t): return aKV + 14*(t % 4)
def k_loads(t):
    b = kv_set(t); off = (t % 16)*512 - 4096
    pre = list(Seg().e(f"s_add_u32 s{pK}, s{pK}, 8192\ns_addc_u32 s{pK+1}, s{pK+1}, 0")) if t == 16 else []
    return [pre + [I(f"global_load_dwordx4 {a(b,4)}, v{vK1}, {sp(pK)} offset:{off} sc1", tag=("k",t,1))],
            [I(f"global_load_dwordx2 {a(b+4,2)}, v{vK2}, {sp(pK)} offset:{off} sc1", tag=("k",t,2))]]
def flat(l): return [x for y in l for x in y]
def v_loads(t):
    b = kv_set(t) + 6; off = t*256 - 4096
    return [I(f"global_load_dwordx4 {a(b,4)}, v{vVL}, {sp(pV)} offset:{off} sc1", tag=("v",t,0)),
            I(f"global_load_dwordx4 {a(b+4,4)}, v{vVL}, {sp(pV)} offset:{off+128} sc1", tag=("v",t,1))]
def q_loads():
    out = []
    for u in range(4):
        b = aQ + 6*u; p = pQ if u < 2 else pTW; off = (u % 2)*512
        out.append(I(f"global_load_dwordx4 {a(b,4)}, v{vK1}, {sp(p)} offset:{off} sc1", tag=("q",u,1)))
        out.append(I(f"global_load_dwordx2 {a(b+4,2)}, v{vQ2}, {sp(p)} offset:{off} sc1", tag=("q",u,2)))
    return out

SPLIT = opt("split", 296)
XRD = opt("xrd", 14)
def base_gaps(cls, lo, hi):
    gaps = [Gap(p1_mfma(n, cls)) if lo <= n < hi else None for n in range(400)]
    for n in range(lo, hi):
        if n in BAR: gaps[n].sec[0] += ([W(vm=[dma_tag(BAR[n][-1])])] if BAR[n] else []) + [I("s_barrier")]
        if n % 4 == 3 and n + 1 < 400: gaps[n].sec[0].append(W(lg=("tr", min(n+4, 399), 1)))
        gaps[n].sec[1] += tr_reads(n + DIST)
        for g_, ks, us, b in XREAD:
            if g_ == n:
                for k, u in enumerate(us): gaps[n].sec[1] += frag_read(2, ks, u, aXF[b] + 4*k, ("xtr", ks, u))
            if g_ + opt("xlat", 4) == n: gaps[n].ext += [W(lg=("xtr", ks, us[1], 1)), colsum(v(aD[2][us[0]], 4), v(aXF[b], 8))]
        for r in TOG[n]: gaps[n].sec[2].append(I(f"v_xor_b32 v{r}, 0x10000, v{r}"))
        p, ks, u = ORDER[n]
        if ks % 4 == 0 and n % 2 == 0 and not (p == 2 and (ks == 36 or (ks >= 40 - 4*NTAIL and u == 1))):
            d = aD[p][(u//2, 0, u)[p]]
            at = n + 1 if ks < 36 else (n - 1 if n % 4 == 0 else n - 2)
            if "--x_nocs" not in sys.argv: gaps[at].ext.append(colsum(av(p, d, 4), a(aWF + 4*(n % NWF), 8)))
    if lo == 0:
        for b in range(1, 10):
            n = 16*b - XRD; xr = x_reads(b)
            if not ("--x_nox" in sys.argv and b >= 3): gaps[n].sec[0].append(W(vm=("x", b, 3)))
            XO = opt("xord", 1)
            if XO == 0:
                for k in range(4): gaps[n+k].sec[1] += xr[2*k:2*k+2]
            else:
                gaps[n].sec[1] += xr[4:6]; gaps[n+1].sec[1] += xr[6:8]
                for k in range(4): gaps[n+2+2*k].sec[1].append(xr[k])
            gaps[16*b - opt("dotat", 9)].end += dots(b)[:(1 if "--x_nodots" in sys.argv else 3 if "--x_nodot2" in sys.argv else 99)]
    dm = Stream(gaps, lo)
    EV = opt("dmaev", 3); EVH = opt("dmaevh", 3); LAND = opt("land", 22); EV0 = opt("ev0", 2)
    L0 = opt("l0", 36); L1 = opt("l1", 64)
    for sg in range(3, 25):
        prev = [FREE[x] + 1 for x in range(sg) if WSLOT[x] == WSLOT[sg]] + [16*b for b in range(10) if XSLOT[b] == WSLOT[sg]]
        g0 = max([0, BLAND[sg] - (L0 if sg < 10 else L1)] + prev)
        if sg < 10 and lo == 0 and "--x_nox" not in sys.argv: dm.put(x_dma(sg), max(16*sg - XRD - L0, 16*(sg - 3)), 16*sg - XRD - LAND, every=EV0)
        if not (lo <= g0 < hi): continue
        dm.put(dma_stage(sg), g0, min(BLAND[sg] - LAND, hi - 2), every=(EV0 if sg < 10 else EVH if sg < 15 else EV))
        if "--dmalog" in sys.argv and cls == 'Q': print("stage", sg, "from", g0, "ends", dm.k, "needed", BLAND[sg], file=sys.stderr)
        if sg == opt("jobsg", 19): JD[1] = dm.k; dm.put(job_dma(), 0, hi - 2, every=1); JD[0] = dm.k
        if sg == 9: JD[2] = dm.k
    assert dm.k < hi
    return gaps
JD = [0, 0, 0]

def ren(i): return i
def phase1a(cls):
    g = Seg()
    if cls == 'V': g.e("L_clsV:")
    gaps = base_gaps(cls, 0, SPLIT)
    exchange(gaps, 0, cls, 146, FIRST[10], vTMP + 4, [opt("c0at", 157) + k for k in range(4)])
    exchange(gaps, 1, cls, 233, XB1, 92, [XB1 + 3, XB1 + 4])
    A0, A1, A2, A3 = vNM, vR, vACC + 2, vACC + 3
    post = Seg()
    post.e(f"""
    v_accvgpr_read_b32 v{A0}, a{aRS}
    v_accvgpr_read_b32 v{A1}, a{aRS+1}
    v_add_f32 v{vACC}, v{vACC}, v{vACC+1}
    v_add_f32 v{A2}, v{A2}, v{A3}
    v_add_f32 v{A0}, v{A0}, v{A1}
    v_add_f32 v{A2}, v{A2}, v{vACC}
    v_mov_b32 v{A1}, v{A0}
    v_mov_b32 v{A3}, v{A2}
    v_cmp_gt_u32 vcc, 32, v{vLANE}
    v_permlane32_swap_b32 v{A0}, v{A1}
    v_permlane32_swap_b32 v{A2}, v{A3}
    v_add_f32 v{A0}, v{A0}, v{A1}
    v_add_f32 v{A2}, v{A2}, v{A3}
    v_mul_f32 v{A0}, {f2u(-1.0/640.0)}, v{A0}
    v_mul_f32 v{A2}, {f2u(1.0/640.0)}, v{A2}
    v_fma_f32 v{A2}, -v{A0}, v{A0}, v{A2}
    v_cvt_pk_bf16_f32 v{A0}, v{A0}, v{A0}
    v_max_f32 v{A2}, 0, v{A2}
    v_cndmask_b32 v{A0}, 0, v{A0}, vcc
    v_cvt_pk_bf16_f32 v{A2}, v{A2}, v{A2}
    v_accvgpr_write_b32 a{aNM}, v{A0}
    v_accvgpr_write_b32 a{aNM+1}, v{A0}
    v_accvgpr_write_b32 a{aNM+2}, v{A0}
    v_accvgpr_write_b32 a{aNM+3}, v{A0}
    v_and_b32 v{A2}, 0xffff0000, v{A2}
    v_add_f32 v{A2}, {f2u(1e-5)}, v{A2}
    v_cvt_pk_bf16_f32 v{A2}, v{A2}, v{A2}
    v_lshlrev_b32 v{A2}, 16, v{A2}
    v_sqrt_f32 v{A2}, v{A2}
    v_mov_b32 v{vZERO}, 0
    v_cvt_pk_bf16_f32 v{A2}, v{A2}, v{A2}
    v_lshlrev_b32 v{vS}, 16, v{A2}
    v_rcp_f32 v{vR}, v{vS}
    v_mul_f32 v{vSG}, {f2u(-LOG2E)}, v{vR}
    """)
    if cls != 'V':
        post.e(f"v_mul_f32 v{vSCL}, s{sSC}, v{vR}")
    else:
        post.e(f"""
        v_mov_b32 v{vSCL+2}, {L_X}
        v_add_u32 v{vSCL+2}, s{sWB}, v{vSCL+2}
        v_and_b32 v{vSCL}, 31, v{vLANE}
        v_lshl_add_u32 v{vSCL}, v{vSCL}, 2, v{vSCL+2}
        v_lshrrev_b32 v{vSCL+1}, 5, v{vLANE}
        v_lshl_add_u32 v{vSCL+1}, v{vSCL+1}, 4, v{vSCL+2}
        ds_write_b32 v{vSCL}, v{vR}
        """)
        for k in range(4):
            post.append(I(f"ds_read_b128 {v(vR16+4*k,4)}, v{vSCL+1} offset:{32*k}", tag=("r16", k)))
    post.append(I(f"buffer_load_dword v{vNON}, v{vZERO}, {SDBG}, 0 offen sc1", tag="non"))
    Stream.stores.clear()
    if opt("pf", 12) & 8:
        for k_ in range(5):
            p2 = masked_loads([(3, I(f"global_load_dword a210, v{vTG}, {sp(p_)}", tag="pf")) for p_ in (sP+8, sP+10)])
            if k_ < 4: p2.e(f"v_add_u32 v{vTG}, {128*3072}, v{vTG}")
            Stream(gaps).block(p2, opt("pf2at", 33) + opt("pf2st", 16)*k_)
    for k_ in range(len(TCH)):
        if TCH[k_][2] >= 0: Stream(gaps).block(touch(k_), TCH[k_][2])
    jb = Stream(gaps)
    if LATE:
        lt = clone(LATE)
    if opt("pf", 12) & 4:
        def pick(o, c):
            o.e(f"s_cmp_eq_u32 s{sWAVE}, 1\ns_cselect_b64 s[100:101], {sp(c[1])}, {sp(c[0])}")
            for w_ in (2, 3): o.e(f"s_cmp_eq_u32 s{sWAVE}, {w_}\ns_cselect_b64 s[100:101], {sp(c[w_])}, s[100:101]")
        W0 = opt("warm0", 1); WS_ = opt("warmst", 10)
        steps = []
        o = Seg(); pick(o, [sP+8, sP+10, sP+2, sP]); o.e(f"s_lshr_b32 s99, s{sWAVE}, 1\ns_lshl_b32 s99, s99, 21")
        o.append(I("s_load_dword s58, s[100:101], s99", tag="warm")); steps.append(o)
        o = Seg(); pick(o, [sP+12, sP+4, sP+16, sP+14]); o.append(I("s_load_dword s58, s[100:101], 0", tag="warm")); steps.append(o)
        for k_ in range(3):
            o = Seg(); o.e(f"s_add_u32 s99, s{sWAVE}, {4*k_}\ns_min_u32 s99, s99, 10\ns_lshl_b32 s99, s99, 21")
            o.append(I(f"s_load_dword s58, {sp(sP+18)}, s99", tag="warm")); steps.append(o)
        o = Seg(); o.e("s_mov_b32 s99, 0x200000"); o.append(I(f"s_load_dword s58, {sp(sP+14)}, s99", tag="warm")); steps.append(o)
    else: steps = []; W0 = WS_ = 0
    jp = job_params(); cuts = [0, 23, 44, 65, 86, 107, len(jp)]
    if LATE:
        for k_ in range(min(2, len(steps))): jb.put(steps[k_][:-1], 0, 130); jb.put(steps[k_][-1:], W0 + WS_*k_, 130)
        jb.put(lt, 0, 88)
        jb.block(nonce(cls), jb.k + 1); jb.k += 1; jb.last = 0
        print("late set-up ends", jb.k, file=sys.stderr)
    for k_ in range(6):
        if steps and not (LATE and k_ < 2): jb.put(steps[k_][:-1], 0, 130); jb.put(steps[k_][-1:], W0 + WS_*k_, 130)
        jb.put(jp[cuts[k_]:cuts[k_+1]], 0, 130)
    assert jb.k < JD[1], (jb.k, JD)
    as1, as2, as3 = attn_addr_setup()
    jb.put(as1, TCH[-1][2] + 1, 134); jb.put(as2, 0, 134)
    print("set-up a ends", jb.k, "job dma", JD, file=sys.stderr)
    jb.put(job_par(), opt("pf2at", 33) + 4*opt("pf2st", 16) + 1, 159)
    if JD[0] < 100:
        j1, j2 = job_process()
        jb.put(j1, JD[0] + opt("joblat", 40), 134); k = jb.k
        jb.put(j2, k + 4, 134, stsp=opt("jstsp", 4))
    jb.put(as3, JD[2] + 1, 159, free=True)
    ch = Stream(gaps)
    ch.put([I(f"buffer_store_dwordx4 v[80:83], v{vCST}, {SWS}, 0 offen sc1", tag="cst")], opt("cstat", 100), 130)
    ch.put([I(f"v_accvgpr_write_b32 a{aD[1][0]+k}, 0") for k in range(4)], 0, 150)
    ch.put(post[:24], 144 - opt("dotat", 9) + 2, 154)
    ch.put(post[24:], 0, 161)
    e0 = Seg()
    if cls == 'V':
        e0.append(W(lg=("r16", 3)))
        for u in range(4): e0 += epi_v(vA+16*u, u % 2, sEB + u//2, vEP, "qkv")
    else:
        for u in range(4): e0 += epi_qk(vA+16*u, u % 2, sEB + u//2, vSCL, "qkv")
    bg = opt("pub", 238)
    if bg in BAR: gaps[bg].sec[0][:0] = [W(vm=["qkv", "non", "cst"])]
    else: gaps[bg].sec[0][:0] = [W(vm=["qkv", "non", "cst"]), I("s_barrier")]
    pb = Seg()
    spin(pb, "N" + cls, vZERO, vNON, 1, SDBG, f"v_cmp_eq_u32 vcc, 0, v{vNON}")
    pb.e(f"v_readfirstlane_b32 s{sNON}, v{vNON}")
    publish(pb, "Q" + cls, sFLQ, vLN+2)
    Stream(gaps, bg).block(pb, bg)
    if "--x_plain" in sys.argv:
        e0 = [I(i.text.replace(" sc1", ""), tag=i.tag) if i.cls == "vmem" else i for i in e0]
    if "--x_lin" in sys.argv:
        n_ = [0]
        def lin(i):
            n_[0] += 1
            return I(f"buffer_store_dwordx4 {i.text.split()[1]} v{vCST}, {SWS}, s58 offen offset:{(n_[0]-1)%4*1024} sc1", tag=i.tag)
        e0 = list(Seg().e(f"s_lshl_b32 s58, s2, 2\ns_add_u32 s58, s58, s{sWAVE}\ns_lshl_b32 s58, s58, 12\nv_lshlrev_b32 v{vCST}, 4, v{vLANE}")) + [lin(i) if i.cls == "vmem" else i for i in e0]
    pieces, cur = [], []
    for i in e0:
        cur.append(i)
        if i.cls == "vmem": pieces.append(cur); cur = []
    e1 = epi_g(vB, 0, sHB, "h1", ud=16)
    STSP = opt("stsp", 5); E0END = bg - opt("stlat", 16)
    q1 = list(e1)
    for n, pc in enumerate(pieces):
        at = 161 + n * STSP
        if at > 241:
            while q1 and ch.k < at - 1:
                m = next((x for x in range(len(q1)) if q1[x].op == "v_cvt_pk_bf16_f32"), len(q1) - 2) + 2
                if m < len(q1) and q1[m].cls == "vmem": m += 1
                assert False
        ch.put(pc, at, E0END)
    assert ch.k <= min(E0END + 1, 232)
    ch.put([I(f"v_mov_b32 v{d+k}, 0") for d in aD[2] for k in range(4)], 0, 239)
    ch.put([ren(i) for i in q1], XB1 + 6, SPLIT - 2)
    print("job ends", jb.k, "epilogue ends", ch.k, file=sys.stderr)
    report("pass0 " + cls, gaps, 0, 160); report("pass1 " + cls, gaps, 160, 240); report("pass2a " + cls, gaps, 240, SPLIT)
    for n in range(SPLIT):
        if n in XS: stamp(g, 18 + XS.index(n))
        if n == 160: stamp(g, 4)
        if n == 240: stamp(g, 5)
        g += gaps[n].flat()
    if cls != 'V': g.e("s_branch L_p1c")
    return g

def o_clear(r):
    return [I(f"buffer_store_dwordx4 {v(r,4)}, v{vOSA}, {SWS}, s{sOST} offen sc1", tag="h1"),
            I(f"buffer_store_dwordx4 {v(r,4)}, v{vOSA}, {SWS}, s{sOST} offen offset:512 sc1", tag="h1"),
            I(f"buffer_store_dwordx4 {v(r,4)}, v{vLIN}, {SWS}, s{sOS2} offen sc1", tag="h1")]
def phase1c():
    g = Seg()
    g.e("L_p1c:")
    gaps = base_gaps('Q', SPLIT, 400)
    C2 = opt("c2at", XB2 + 3)
    exchange(gaps, 2, 'Q', XREAD[-1][0] + opt("xlat", 4) + 2, XB2, 92, [C2, C2 + 1, C2 + opt("c2d", 8), C2 + opt("c2d", 8) + 1])
    Stream.stores.clear()
    ch = Stream(gaps, SPLIT)
    POLL = opt("poll", 326); CHK = opt("chk", 342)
    Stream(gaps, POLL).put([I(f"buffer_load_dwordx4 {v(44,4)}, v{vPA}, {SWS}, 0 offen sc1", tag="pollq")], POLL, POLL+1)
    ck = Seg(); ck.append(W(vm="pollq"))
    spin(ck, "Q", vPA, 44, 4, SWS, all4(44, f"s{sNON}"))
    stamp(ck, 7)
    Stream(gaps, CHK).block(ck, CHK)
    first = flat(k_loads(0)) + q_loads() + v_loads(0) + flat(k_loads(1)) + v_loads(1) + flat(k_loads(2)) + v_loads(2)
    Stream(gaps, CHK + 1).put(first, CHK + 1, 399, every=opt("ldev", 2))
    if opt("cpf", 1):
        cp = Seg()
        cp.e(f"""
        s_lshl_b32 s98, s{sLOC}, 2
        s_add_u32 s98, s98, s{sWAVE}
        s_lshl_b32 s98, s98, 10
        s_min_u32 s98, s98, L_codeend-L_p1c-1024
        v_lshlrev_b32 v{vLN}, 4, v{vLANE}
        v_add_u32 v{vLN}, s98, v{vLN}
        """)
        cp.append(I(f"global_load_dwordx4 a[250:253], v{vLN}, s[0:1]", tag="pf"))
        ch.put(cp, 0, CHK - 1)
    if JD[0] >= 100:
        j1, j2 = job_process()
        ch.put(j1, 0, CHK - 1); ch.put(j2, ch.k + 4, 360, stsp=opt("jstsp", 4))
    if opt("oclr", 1):
        ch.put([I(f"v_mov_b32 v{80+k}, -1") for k in range(4)] + o_clear(80), 0, 364, stsp=opt("jstsp", 4))
        print("clears end", ch.k, file=sys.stderr)
    ch.put(epi_g(vC, 0, sHB+1, "h1"), max(400 - 8*NTAIL + 1, C2 + 3), 399)
    report("pass2", gaps, SPLIT, 400)
    for n in range(SPLIT, 400):
        if n in XS: stamp(g, 18 + XS.index(n))
        g += gaps[n].flat()
    stamp(g, 6)
    if STAMPS: g.e(f"v_accvgpr_mov_b32 a{aSTAMP}, a{aST[0]}"); aST[0] = aSTAMP
    return g

def s_mfma(n):
    t, u = n // 4, n % 4
    S = v(16*(n % 2), 16); k = kv_set(t); q = aQ + 6*u
    return (I(f"v_mfma_f32_32x32x16_bf16 {S}, {a(k,4)}, {a(q,4)}, 0"),
            I(f"v_mfma_f32_32x32x8_bf16 {S}, {a(k+4,2)}, {a(q+4,2)}, {S}"))
def pv_mfma(n):
    t, u = n // 4, n % 4
    O = a(aO + 16*u, 16); vv = kv_set(t) + 6; P = 32 + 8*(n % 2)
    return (I(f"v_mfma_f32_32x32x16_bf16 {O}, {a(vv,4)}, {v(P,4)}, {'0' if t == 0 else O}"),
            I(f"v_mfma_f32_32x32x16_bf16 {O}, {a(vv+4,4)}, {v(P+4,4)}, {O}"))
def softmax_valu(n):
    S = 16*(n % 2); P = 32 + 8*(n % 2)
    E = lambda i: I(f"v_exp_f32 v{S+i}, v{S+i}")
    C = lambda k: I(f"v_cvt_pk_bf16_f32 v{P+k}, v{S+2*k}, v{S+2*k+1}")
    return [E(0),E(1),E(2),C(0),E(3),E(4), C(1),E(5),E(6),C(2),E(7),E(8), C(3),E(9),E(10),C(4),E(11),E(12), C(5),E(13),E(14),E(15),C(6),C(7)]

def p3_frags():
    fr = []
    for ks in range(12):
        fr += [("w", ks, t) for t in range(5)] + [("h", ks, u) for u in range(4)]
    for ks in range(12, 18):
        fr += [("w", ks, t) for t in range(5)] + [("o", ks, u) for u in range(4)]
    return fr
FR = p3_frags()
PRE_SLOTS = [a(88+4*i,4) for i in range(27 if STAMPS else 28)] + [v(64+4*i,4) for i in range(48)]
LDS_FR = [f for f in FR if f[0] == "w"][-NLPF:]
class Loader:
    def __init__(self): self.cur = {pTW: None, pTH: None}
    def base(self, p, sreg, hi):
        if self.cur[p] == (sreg, hi): return []
        self.cur[p] = (sreg, hi)
        o = Seg(); o.e(f"s_add_u32 s{p}, s{sreg}, {hi+4096}\ns_add_u32 s{p}, s24, s{p}\ns_addc_u32 s{p+1}, s25, 0"); return list(o)
    def addr(self, f):
        kind, ks, x = f
        if kind == "w":
            off = (ks*5 + x)*1024 if ks < 12 else ((ks-12)*5 + x)*1024
            return pTW, (sWP if ks < 12 else sWP2), off // 8192 * 8192, off % 8192 - 4096, vLIN
        if kind == "h":
            return pTH, sHP, ks // 8 * 8192, ks % 8*1024 - 4096, vH3 + x
        return pTH, sOPU + x, (ks-12)*4*32768, -4096, vO3
    def emit(self, f, reg):
        p, sreg, hi, lo, vr = self.addr(f)
        return self.base(p, sreg, hi) + [I(f"global_load_dwordx4 {reg}, v{vr}, {sp(p)} offset:{lo} sc1", tag=f)]
    def emit_lds(self, f, idx):
        kind, ks, x = f
        off = (ks*5 + x)*1024 if ks < 12 else ((ks-12)*5 + x)*1024
        sreg = sWP if ks < 12 else sWP2
        hi, lo = off // 4096 * 4096, off % 4096
        out = self.base(pTW, sreg, hi - 4096)
        m0 = L_PF + idx*1024 - lo
        if self.cur.get("m0") != m0:
            self.cur["m0"] = m0; out.append(I(f"s_add_u32 m0, s{sLW}, {m0}"))
        return out + [I(f"global_load_lds_dwordx4 v{vLIN}, {sp(pTW)} offset:{lo} sc1", tag=("L",)+f)]
vFT = 64

def attention(regmap, loader):
    g = Seg()
    eg = epi_g(vC, 1, sHB+1, "h1")
    if not opt("oclr", 1):
        g.e("v_mov_b32 v0, -1\nv_mov_b32 v1, -1\nv_mov_b32 v2, -1\nv_mov_b32 v3, -1")
        oc = o_clear(0)
        for k_ in range(3): g += eg[8*k_:8*k_+8]; g.append(oc[k_])
        g += eg[24:]
    else: g += eg
    stamp(g, 8)
    g.e("L_att1:")
    g.append(W(vm=[("q",3,2), ("k",0,2)]))
    m = s_mfma(0); g.append(m[0]); g.append(m[1])
    free = [[] for _ in range(128*4)]
    for t in range(32):
        if t + 3 < 32:
            kl = k_loads(t+3); vl = v_loads(t+3)
            if len(kl[0]) > 1: free[16*t - 2].append(kl[0][0]); free[16*t - 1].append(kl[0][1])
            for i in range(2): free[16*t + i].append(kl[i][-1])
            for i in range(2): free[16*t + 4 + i].append(vl[i])
        if t + 1 < 32: free[16*t + 11].append(W(vm=[("k",t+1,2), ("v",t+1,1)]))
    free[3].append(W(vm=("v",0,1)))
    pub = Seg(); pub.append(W(vm="h1")); pub.e("s_barrier")
    publish(pub, "H", sFL, vFT)
    free[16*1 + 7] += pub
    HP = opt("hpoll", 7)
    free[16*HP + 7].append(I(f"buffer_load_dwordx4 {v(vFT+4,4)}, v{vFH}, {SWS}, 0 offen sc1", tag="pollh"))
    chk = Seg(); chk.append(W(vm="pollh"))
    spin(chk, "H", vFH, vFT+4, 4, SWS, all4(vFT+4, f"s{sNON}"))
    free[16*(HP+2) + 7] += chk
    pos = []
    for t in range(HP+3, 32):
        pos += [16*t + i for i in (2,3,6,7,8,9,10,12,13,14,15) if not (t == 12 and i >= 13)]
    q = []
    for i, f in enumerate(LDS_FR): q.append(loader.emit_lds(f, i))
    for i, reg in enumerate(PRE_SLOTS):
        regmap[FR[i]] = reg
        q.append(loader.emit(FR[i], reg))
    step = len(pos) / len(q)
    assert step >= 1.0
    for i, ins in enumerate(q):
        k = int(i*step)
        sal = ins[:-1]
        if sal and k > 0 and int((i-1)*step) < k - 1 and i > 0:
            free[pos[k-1]].append(sal[0]); sal = sal[1:]
        free[pos[k]] += sal + [ins[-1]]
    for n in range(128):
        va = softmax_valu(n)
        ms = [None]*4
        if n + 1 < 128: ms[0], ms[1] = s_mfma(n+1)
        if n >= 1: ms[2], ms[3] = pv_mfma(n-1)
        for p in range(4):
            if ms[p] is not None: g.append(ms[p])
            g += free[4*n + p]
            g += va[6*p:6*p+6]
    m = pv_mfma(127); g.append(m[0]); g.append(m[1])
    stamp(g, 9)
    return g

ACC3 = [64 + 4*i for i in range(6)] + [200 + 4*i for i in range(14)]
def o_epilogue():
    e1 = Seg(); e2 = Seg(); e3 = Seg(); e4 = Seg(); e5 = Seg()
    for k in range(3): e1.append(I(f"ds_write_b128 v{vRW}, {a(aO+32+4*k,4)} offset:{k*1024}", tag=("ow", k)))
    for u in range(2):
        for k in range(12): e2.e(f"v_accvgpr_read_b32 v{12*u+k}, a{aO+16*u+k}")
    e1b = Seg()
    for k in range(3): e1b.append(I(f"ds_write_b128 v{vRW}, {a(aO+48+4*k,4)} offset:{(3+k)*1024}", tag=("ow", 3+k)))
    e3.append(W(lg=0)); e3.e("s_barrier")
    for k in (2, 5, 0, 1, 3, 4): e3.append(I(f"ds_read_b128 {v(24+4*k,4)}, v{vRR} offset:{k*1024}", tag=("red",k)))
    e4.append(W(lg=("red", 5)))
    for u in range(2):
        for k in range(8, 12): e4.e(f"v_add_f32 v{12*u+k}, v{12*u+k}, v{24+12*u+k}")
    e4.e(f"""
    v_mov_b32 v32, v8
    v_mov_b32 v34, v8
    v_mov_b32 v33, v20
    v_mov_b32 v35, v20
    """)
    e4.append(W(lg=("red", 1)))
    for k in range(4): e4.e(f"v_add_f32 v{k}, v{k}, v{24+k}")
    e4.e("v_permlane32_swap_b32 v34, v32\nv_permlane32_swap_b32 v35, v33")
    for k in range(4, 8): e4.e(f"v_add_f32 v{k}, v{k}, v{24+k}")
    e4.e("v_rcp_f32 v34, v32\nv_rcp_f32 v35, v33")
    e4.e(f"s_mov_b32 s{sTA}, {f2u(2.0**-60)}\ns_mov_b32 s{sTB}, {f2u(2.0**60)}\ns_mov_b32 s{sTC}, 0x7f000000")
    e4.e("v_min_f32 v46, v32, v33\nv_max_f32 v47, v32, v33\nv_add_f32 v44, |v0|, |v1|\nv_add_f32 v45, |v20|, |v21|")
    e4.append(W(lg=("red", 4)))
    for k in range(8): e4.e(f"v_add_f32 v{12+k}, v{12+k}, v{36+k}")
    e4.e(f"v_cmp_nge_f32 vcc, v46, s{sTA}\nv_cmp_nle_f32 s[98:99], v47, s{sTB}")
    for k in range(10): e4.e(f"v_add_f32 v44, v44, |v{2+k}|\nv_add_f32 v45, v45, |v{(22,23,12,13,14,15,16,17,18,19)[k]}|")
    for k in range(8): e4.e(f"v_mul_f32 v{24+k}, v34, v{k}")
    e4.e(f"v_add_f32 v44, v44, v45")
    for k in range(4): e4.e(f"v_cvt_pk_bf16_f32 v{24+k}, v{24+2*k}, v{24+2*k+1}")
    e4.e(f"v_cmp_nlt_f32 s[100:101], v44, s{sTC}")
    for k in range(8): e4.e(f"v_mul_f32 v{36+k}, v35, v{12+k}")
    def masked(st):
        o = Seg(); o.e("s_mov_b64 exec, s[98:99]"); o.append(st); o.e("s_mov_b64 exec, -1"); return o
    blk1 = Seg()
    blk1.e(f"""
    s_or_b64 vcc, vcc, s[98:99]
    s_or_b64 vcc, vcc, s[100:101]
    s_cselect_b32 s{sTA}, 1, 0
    s_andn2_b32 s{sTB}, s{sTA}, s{sSAFE}
    s_cselect_b64 s[98:99], 0, -1
    """)
    blk1 += masked(I(f"buffer_store_dwordx4 v[24:27], v{vOSA}, {SWS}, s{sOST} offen sc1", tag="ost"))
    e4b = Seg()
    for k in range(4): e4b.e(f"v_cvt_pk_bf16_f32 v{36+k}, v{36+2*k}, v{36+2*k+1}")
    blk2 = masked(I(f"buffer_store_dwordx4 v[36:39], v{vOSA}, {SWS}, s{sOST} offen offset:512 sc1", tag="ost"))
    e4c = Seg()
    for u in range(2):
        for k in range(4): e4c.e(f"v_mul_f32 v{(28, 40)[u]+k}, v{34+u}, v{12*u+8+k}")
    e4c.e(f"""
    v_cvt_pk_bf16_f32 v44, v28, v29
    v_cvt_pk_bf16_f32 v46, v40, v41
    v_cvt_pk_bf16_f32 v45, v30, v31
    v_cvt_pk_bf16_f32 v47, v42, v43
    v_mov_b32 v30, s{sTA}
    v_permlane32_swap_b32 v44, v46
    v_permlane32_swap_b32 v45, v47
    """)
    blk3 = masked(I(f"buffer_store_dwordx4 v[44:47], v{vLIN}, {SWS}, s{sOS2} offen sc1", tag="ost"))
    e5.e(f"""
    s_lshl_b32 s{sTB}, s{sWAVE}, 2
    s_add_u32 s{sTB}, s{sTB}, {L_VOTE}
    v_mov_b32 v31, s{sTB}
    ds_write_b32 v31, v30
    v_mov_b32 v31, {L_VOTE}
    """)
    e4 = (e4, blk1, e4b, blk2, e4c, blk3)
    return e1, e2, e1b, e3, e4, e5

vXA = 0; vLP = 2; vRD = 3; vP3T = 6; vXD = 8; vXF = 18; vXL = 41
SLOW = []
def phase3(regmap, loader):
    g = Seg()
    gaps = [Gap(None) for _ in range(360)]
    order = [(ks, u, t) for ks in range(12) for u in range(4) for t in range(5)] + [(ks, u, t) for u in range(4) for t in range(5) for ks in range(12, 18)]
    for gp in gaps: gp.mfma = True
    S3 = lambda k=0, cap=16: Stream(gaps, k, cap=cap)
    e1, e2, e1b, e3, e4, e5 = o_epilogue()
    ECAP = opt("ecap", 16)
    ep = S3(0, ECAP)
    WSP = opt("wsp", 4)
    for i_, w_ in enumerate(list(e1) + list(e1b)): gaps[WSP*i_].sec[1].append(w_)
    k_w0 = 2*WSP; k_w1 = 5*WSP
    ep.put(e2[:12], 0, 359); k_r0 = ep.k
    ep.put(e2[12:], 0, 359); k_r1 = ep.k
    ep.put(e3[:2], k_w1 + opt("wlat", 2), 359)
    for i_ in e3[2:]: ep.put([i_], ep.k + (0 if i_ is e3[2] else 1), 359)
    ep.put(e4[0], ep.k + opt("elat", 6), 359)
    for i_, part in enumerate(e4[1:]):
        if i_ % 2 == 0: ep.block(part, ep.k)
        else: ep.put(part, ep.k + 1, 359)
    k_st = ep.k
    st10 = Seg(); stamp(st10, 10); ep.block(st10, ep.k)
    ep.cap = 16
    ep.put(e5, ep.k + 1, 359)
    v1 = Seg(); v1.append(W(lg=0)); v1.e("s_barrier"); v1.append(I("ds_read_b128 v[28:31], v31", tag="votes"))
    ep.put(v1, ep.k + 4, 359)
    vt = Seg(); vt.append(W(lg="votes"))
    vt.e(f"""
    v_or3_b32 v28, v28, v29, v30
    v_or_b32 v28, v28, v31
    s_nop 0
    v_readfirstlane_b32 s{sTA}, v28
    s_andn2_b32 s{sTA}, s{sTA}, s{sSAFE}
    s_cbranch_scc1 L_fallback
    """)
    stamp(vt, 11)
    ep.block(vt, ep.k + 6); k_pub = ep.k
    print("O stores at", k_st, "vote at", k_pub, file=sys.stderr)
    pool = [(0, a(12,4)), (0, a(28,4)), (4, a(44,4)), (4, a(60,4))]
    pool += [(k_w0+1, a(32+4*i,4)) for i in range(3)] + [(k_r0+1, a(4*i,4)) for i in range(3)]
    pool += [(k_w1+1, a(48+4*i,4)) for i in range(3)] + [(k_r1+1, a(16+4*i,4)) for i in range(3)]
    released = set()
    def take(at, vgpr=False):
        while True:
            c = sorted(x for x in pool if not vgpr or x[1][0] == "v")
            nxt = [k for k in range(12) if k not in released and all(f in regmap for f in FR if f[1] == k)]
            if nxt and 20*nxt[0]+20 <= at: pass
            elif c and (c[0][0] <= at or not nxt or c[0][0] <= 20*nxt[0]+20):
                now = [x for x in c if x[0] <= at and x[1][0] == "a"]
                x = now[0] if now else c[0]
                pool.remove(x); return x
            ks = nxt[0]; released.add(ks)
            for f in FR:
                if f[1] == ks: pool.append((20*ks+20, regmap[f]))
    npre = len(PRE_SLOTS)
    rest = [f for f in FR[npre:] if f[0] != "o" and f not in LDS_FR]
    ld = S3()
    gpos = 1; STEP = opt("p3step", 5)
    for f in rest:
        e, r = take(gpos); gpos = max(gpos, e); regmap[f] = r
        ld.put(loader.emit(f, r), gpos, gpos + 2); gpos = ld.k + STEP
        assert ld.k + 30 < 20*f[1], (f, ld.k)
    OLD = opt("old", 176)
    assert ld.k < OLD and k_pub < OLD
    ofr = [("o", ks, u) for u in range(4) for ks in range(12, 18)]
    gpos = OLD; early = []
    st12 = Seg(); stamp(st12, 12); ld.block(st12, OLD - 1)
    for f in ofr:
        e, r = take(gpos, vgpr=True)
        gpos = max(gpos, e); regmap[f] = r
        ld.put(loader.emit(f, r), gpos, gpos + 1); gpos = ld.k + opt("ostep", 4)
        if ld.k < 239: early.append(f)
        assert ld.k != 239 and ld.k + 24 < 240 + 30*f[2], (f, ld.k)
    assert all(f in early for f in ofr[:6])
    print("O loads end", ld.k, "early", len(early), file=sys.stderr)
    lr = S3(k_pub + 1)
    lr.put([I(f"v_add_u32 v{vLP}, s{sLW}, v{vLIN}"), W(vm=("L",)+LDS_FR[-1])], k_pub + 1, 359)
    for i, f in enumerate(LDS_FR):
        e, r = take(max(lr.k, opt("lrat", 140) + 2*i)); regmap[f] = r
        lr.put([I(f"ds_read_b128 {r}, v{vLP} offset:{L_PF + i*1024}", tag=("R",)+f)], max(e, lr.k + 1, opt("lrat", 140) + 2*i), min(20*f[1], 240) - 8)
    print("parked fragments read by", lr.k, file=sys.stderr)
    r0 = lambda f: int(regmap[f][2:].split(":")[0])
    def ocheck(u):
        q = [r0(f) for f in ofr[6*u:6*u+6]]
        return (f"v_max3_u32 v{vP3T}, v{q[0]}, v{q[1]}, v{q[2]}\nv_max3_u32 v{vP3T+1}, v{q[3]}, v{q[4]}, v{q[5]}\n"
                f"v_max_u32 v{vP3T}, v{vP3T}, v{vP3T+1}\nv_cmp_eq_u32 vcc, -1, v{vP3T}")
    def oreload(seg, fs):
        for f in fs:
            seg.e(f"s_add_u32 s98, s{sOPU+f[2]}, {(f[1]-12)*4*32768}\ns_add_u32 s98, s24, s98\ns_addc_u32 s99, s25, 0")
            seg.e(f"global_load_dwordx4 {regmap[f]}, v{vO3}, s[98:99] sc1")
    slow = Seg()
    for u in range(4):
        ck = Seg(); ck.append(W(vm=ofr[6*u+5])); ck.e(ocheck(u)); ck.e(f"s_cbranch_vccnz L_oretry{u}\nL_oback{u}:")
        gaps[239 + 30*u].sec[2] += ck
        slow.e(f"L_oretry{u}:\ns_mov_b32 s{sSPIN}, 0x8000\nL_osp{u}:")
        oreload(slow, ofr[6*u:6*u+6])
        slow.e("s_waitcnt vmcnt(0)"); slow.e(ocheck(u))
        slow.e(f"s_cbranch_vccz L_ook{u}\ns_sub_u32 s{sSPIN}, s{sSPIN}, 1\ns_cbranch_scc0 L_osp{u}\nL_ook{u}:")
        if u == 0: oreload(slow, early[6:])
        slow.e(f"s_branch L_oback{u}")
    SLOW.append(slow)
    ad = Seg(); T = 38
    ad.e(f"""
    s_lshl_b32 s{sTA}, s{sRB}, 2
    s_add_u32 s{sTA}, s{sTA}, s{sWAVE}
    s_mul_i32 s{sTA}, s{sTA}, {16*1280}
    s_mul_i32 s{sTB}, s{sCB}, 160
    s_add_u32 s{sMBX}, s{sTA}, s{sTB}
    s_mov_b32 m0, s{sLW}
    v_lshrrev_b32 v{T}, 4, v{vLIN}
    """)
    for k in range(3):
        ad.e(f"""
        v_add_u32 v{T+1}, {64*k}, v{T}
        v_mul_u32_u24 v{T+2}, 6554, v{T+1}
        v_lshrrev_b32 v{T+2}, 16, v{T+2}
        v_mul_u32_u24 v{T+2}, {1280-160}, v{T+2}
        v_lshl_add_u32 v{vXL+k}, v{T+1}, 4, v{T+2}
        """)
        if k == 2: ad.e(f"v_cmp_gt_u32 vcc, 32, v{T}\nv_mov_b32 v{T+1}, {OOB}\nv_cndmask_b32 v{vXL+k}, v{T+1}, v{vXL+k}, vcc")
        if k: ad.e(f"s_add_u32 m0, s{sLW}, {1024*k}")
        ad.append(I(f"buffer_load_dwordx4 v{vXL+k}, {SX}, s{sMBX} offen lds", tag=("xres",k)))
    mark_m0(ad)
    ad.e(f"""
    v_and_b32 v{T+1}, 15, v{T}
    v_mul_u32_u24 v{T+1}, 160, v{T+1}
    v_lshrrev_b32 v{T}, 4, v{T}
    v_lshl_add_u32 v{T}, v{T}, 3, v{T+1}
    v_add_u32 v{vXA}, s{sLW}, v{T}
    """)
    for r in range(3):
        ad.e(f"""
        s_add_u32 s{sTA}, s{sWAVE}, {3-r}
        s_and_b32 s{sTA}, s{sTA}, 3
        s_mul_i32 s{sTA}, s{sTA}, {LW}
        v_add_u32 v{vRD+r}, s{sTA}, v{vLIN}
        """)
    ch = S3(k_pub + 1)
    ch.put(ad, opt("xat", k_pub + 1), OLD - 2, every=opt("xev", 4))
    ux = Seg(); ux.append(W(vm=("xres", 2)))
    for t in range(5): ux.append(I(f"ds_read_b64 {v(vXD+2*t,2)}, v{vXA} offset:{32*t}", tag=("xr3", t)))
    ch.put(ux, 200, 320)
    ux = Seg(); ux.append(W(lg=("xr3", 4)))
    for t in range(5):
        for h in range(2): ux.e(f"v_lshlrev_b32 v{vXF+4*t+2*h}, 16, v{vXD+2*t+h}\nv_and_b32 v{vXF+4*t+2*h+1}, 0xffff0000, v{vXD+2*t+h}")
    ch.put(ux, ch.k + 8, 320)
    wr = S3(240, 24)
    pr = {}
    for f in ofr:
        if f[2] < 3: pool.append((270 + 30*f[2], regmap[f]))
    def fin(t):
        o = Seg(); x = vXF + 4*t
        o.append(W(lg=("pr", 2, t)))
        for e in range(4): o.e(f"v_add_f32 v{x+e}, v{x+e}, v{pr[(2,t)]+e}")
        d = vXD + 2*t
        o.e(f"v_cvt_pk_bf16_f32 v{d}, v{x}, v{x+1}\nv_cvt_pk_bf16_f32 v{d+1}, v{x+2}, v{x+3}")
        o.e(f"ds_write_b64 v{vXA}, {v(d,2)} offset:{32*t}")
        return o
    ad_ = S3(240, 16); tailq = Seg()
    own = Seg()
    for t in range(5):
        for e in range(4): own.e(f"v_accvgpr_read_b32 v{vXL+3+e}, a{ACC3[15+t]+e}")
        for e in range(4): own.e(f"v_add_f32 v{vXF+4*t+e}, v{vXF+4*t+e}, v{vXL+3+e}")
    ad_.put(own, max(243, ch.k + 1), 300)
    for u in range(3):
        for t in range(5):
            gaps[240 + 30*u + 6*t + 5 + 3].sec[1].append(I(f"ds_write_b128 v{vLP}, {a(ACC3[5*u+t],4)} offset:{L_PF + (5*u+t)*1024}", tag=("pw",u,t)))
        if u == 0: continue
        k_fb = 240 + 30*u + 32 + opt("fblat", 3)
        gaps[k_fb].sec[0] += [W(lg=("pw", u, 4)), I("s_barrier")]
        rs = (0, 1) if u == 1 else (2,)
        for t in range(5):
            for j_, r in enumerate(rs):
                e, reg = take(k_fb, vgpr=True); assert e <= k_fb; pr[(r,t)] = int(reg[2:].split(":")[0])
                gaps[k_fb + len(rs)*t + j_].sec[1].append(I(f"ds_read_b128 {reg}, v{vRD+r} offset:{L_PF + (5*r+t)*1024}", tag=("pr",r,t)))
        for t in range(5):
            x = vXF + 4*t; ps = Seg()
            if u == 1:
                ps.append(W(lg=("pr", rs[-1], t)))
                for r in rs:
                    for e in range(4): ps.e(f"v_add_f32 v{x+e}, v{x+e}, v{pr[(r,t)]+e}")
                ad_.put(ps, k_fb + len(rs)*(t + 1) - 1 + opt("prlat", 4), 330 + 6*t - 2)
            elif t < 4: ad_.put(fin(t), max(330 + 6*t + 5 + 3, k_fb + t + opt("prlat", 4)), 359)
            else: tailq += fin(t)
        assert ch.k < k_fb
    print("final barrier at", k_fb, file=sys.stderr)
    def tg(f): return ("R",)+f if f in LDS_FR else f
    for m, (ks, u, t) in enumerate(order):
        b = ("h" if ks < 12 else "o", ks, u)
        w = None
        if m < 240 and m % 20 == 0:
            ws_ = [("w", ks, tt) for tt in range(5)]
            vm = [f for f in ws_ if f not in LDS_FR] + [("h", ks, uu) for uu in range(4)]
            lg = [tg(f) for f in ws_ if f in LDS_FR]
            w = W(vm=vm, lg=(lg or None))
        elif m == 240: w = W(lg=tg(LDS_FR[-1]))
        if w is not None:
            if m == 0: g.append(w)
            else: gaps[m-1].sec[2].append(w)
        acc = a(ACC3[5*u+t], 4) if m < 330 else v(vXF + 4*t, 4)
        gaps[m].mfma = I(f"v_mfma_f32_16x16x32_bf16 {acc}, {regmap[('w',ks,t)]}, {regmap[b]}, {'0' if ks == 0 else acc}")
    report("phase3", gaps, 0, 360, cap=16)
    XS3 = [int(x) for x in opt("xs3", "").split(",") if x]
    for m, gp in enumerate(gaps):
        if m in XS3: stamp(g, 18 + XS3.index(m))
        g += gp.flat()
    stamp(g, 13)
    g += tailq
    for k in range(3): g.append(I(f"ds_read_b128 {v(vXF+4*k,4)}, v{vLP} offset:{1024*k}", tag=("fin", k)))
    for k in range(3):
        g.append(W(lg=("fin", k)))
        g.e(f"buffer_store_dwordx4 {v(vXF+4*k,4)}, v{vXL+k}, {SOUT}, s{sMBX} offen" + opt("outm", ""))
    if STAMPS:
        g.e("s_waitcnt vmcnt(0)")
        stamp(g, 14)
        dump_stamps(g)
    g.e("L_end:\ns_endpgm")
    return g

def dump_stamps(g):
    g.e(f"""
    s_lshl_b32 s{sTA}, s2, 2
    s_add_u32 s{sTA}, s{sTA}, s{sWAVE}
    s_lshl_b32 s{sTA}, s{sTA}, 8
    s_add_u32 s{sTA}, s{sTA}, {WS_T}
    v_mbcnt_lo_u32_b32 v0, -1, 0
    v_mbcnt_hi_u32_b32 v0, -1, v0
    v_lshlrev_b32 v0, 2, v0
    v_accvgpr_read_b32 v1, a{aSTAMP}
    s_nop 1
    v_writelane_b32 v1, s0, 40
    v_writelane_b32 v1, s1, 41
    s_nop 1
    buffer_store_dword v1, v0, {SWS}, s{sTA} offen
    s_waitcnt vmcnt(0)
    """)

def fallback():
    g = Seg()
    g.e("L_fallback:")
    g.e(f"s_mov_b32 s{sSAFE}, 1\ns_waitcnt vmcnt(0) lgkmcnt(0)\ns_barrier")
    wsbase(g, pTW, sQHI)
    g += q_loads()
    for u in range(4): g.e(f"v_mov_b32 v{32+u}, 0xff800000")
    g.e(f"s_sub_u32 s{pK}, s{pK}, 8192\ns_subb_u32 s{pK+1}, s{pK+1}, 0")
    g.e(f"s_sub_u32 s{pTH}, s{pK}, 4096\ns_subb_u32 s{pTH+1}, s{pK+1}, 0\ns_mov_b32 s{sTB}, 32")
    g.e("L_fbloop:")
    b = aKV
    g.e(f"""
    global_load_dwordx4 {a(b,4)}, v{vK1}, {sp(pTH)} sc1
    global_load_dwordx2 {a(b+4,2)}, v{vK2}, {sp(pTH)} sc1
    s_waitcnt vmcnt(0)
    """)
    for u in range(4):
        q = aQ + 6*u
        g.e(f"v_mfma_f32_32x32x16_bf16 v[0:15], {a(b,4)}, {a(q,4)}, 0")
        g.e(f"v_mfma_f32_32x32x8_bf16 v[0:15], {a(b+4,2)}, {a(q+4,2)}, v[0:15]")
        for k in range(8): g.e(f"v_max3_f32 v{32+u}, v{2*k}, v{2*k+1}, v{32+u}")
    g.e(f"""
    s_add_u32 s{pTH}, s{pTH}, 512
    s_addc_u32 s{pTH+1}, s{pTH+1}, 0
    s_sub_u32 s{sTB}, s{sTB}, 1
    s_cmp_lg_u32 s{sTB}, 0
    s_cbranch_scc1 L_fbloop
    """)
    for u in range(4): g.e(f"v_mov_b32 v{36+u}, v{32+u}")
    for u in range(4): g.e(f"v_permlane32_swap_b32 v{32+u}, v{36+u}")
    for u in range(4): g.e(f"v_max_f32 v{32+u}, v{32+u}, v{36+u}")
    g.e(f"ds_write_b128 v{vRW}, v[32:35]\ns_waitcnt lgkmcnt(0)\ns_barrier\nds_read_b128 v[36:39], v{vRR}\ns_waitcnt lgkmcnt(0)")
    g.e(f"v_cmp_lt_u32 vcc, 511, v{vLIN}")
    for u in range(4):
        m = 32 + u; q2 = aQ + 6*u + 4
        g.e(f"""
        v_max_f32 v{m}, v{m}, v{36+(u+2)%4}
        v_sub_f32 v{m}, 0, v{m}
        v_cvt_pk_bf16_f32 v0, v{m}, v{m}
        v_lshlrev_b32 v1, 16, v0
        v_sub_f32 v{m}, v{m}, v1
        v_cvt_pk_bf16_f32 v2, v{m}, v{m}
        v_lshlrev_b32 v3, 16, v2
        v_sub_f32 v{m}, v{m}, v3
        v_cvt_pk_bf16_f32 v4, v1, v3
        v_mov_b32 v6, 0
        v_cvt_pk_bf16_f32 v5, v{m}, v6
        v_accvgpr_read_b32 v6, a{q2}
        v_accvgpr_read_b32 v7, a{q2+1}
        v_cndmask_b32 v6, v6, v4, vcc
        v_cndmask_b32 v7, v7, v5, vcc
        v_accvgpr_write_b32 a{q2}, v6
        v_accvgpr_write_b32 a{q2+1}, v7
        """)
    for t in range(3): g += flat(k_loads(t)) + v_loads(t)
    g.e("s_waitcnt vmcnt(0)\ns_barrier\ns_branch L_att1")
    g += SLOW[0]
    g.e("L_codeend:")
    return g

HEADER = open("header.txt").read()

def mark_m0(lst):
    last = None
    for i in lst:
        if ("s","m0") in i.wr: last = i
        if i.cls == "vmem" and ("s","m0") in i.rd and last is not None and not hasattr_keep(i): i.keep = last
    return lst
def check_m0(path):
    last = None
    for i in path:
        if ("s","m0") in i.wr: last = i
        if i.cls == "vmem" and ("s","m0") in i.rd and hasattr_keep(i): assert i.keep is last, ("m0", i.text, i.keep.text, last.text)
def check_x(path):
    done = set()
    for i in path:
        if i.op == "ds_read_b128": done |= set(i.wr)
        if i.cls == "mfma" or i.isdot():
            for r in i.rd:
                if r[0] == "a" and r[1] < 160: assert r in done, ("x not loaded", i.text)

def check_init(path):
    done = {("s", 0), ("s", 1), ("s", 2), ("v", 0), ("s", "exec")}
    for i in path:
        for r in i.rd:
            if r not in done and not (i.op.startswith("v_permlane") or i.op == "v_writelane_b32"): print("UNINIT", r, i.text, file=sys.stderr); done.add(r)
        done |= set(i.wr)

def build():
    pro = prologue()
    cls = {c: phase1a(c) for c in "QV"}
    for c in "QV": check_x(list(pro) + list(cls[c]))
    p1c = phase1c()
    regmap = {}; loader = Loader()
    att = attention(regmap, loader)
    p3 = phase3(regmap, loader)
    fb = fallback()
    tail = Seg(); tail += p1c; tail += att; tail += p3
    log = []
    tot = fix_hazards(pro, log=log)
    for c in "QV":
        ctx = list(pro[-30:]); n0 = len(ctx); path = ctx + list(cls[c]); tot += fix_hazards(path, log=log)
        assert all(x is y for x, y in zip(path[:n0], ctx)); cls[c][:] = path[n0:]
    for c in "QV":
        ctx = list(cls[c][-30:]); n0 = len(ctx); path = ctx + list(tail); tot += fix_hazards(path, log=log)
        assert all(x is y for x, y in zip(path[:n0], ctx)); tail[:] = path[n0:]
    tot += fix_hazards(fb, log=log)
    for c in "QV": resolve_waits(list(pro) + list(cls[c]) + list(tail))
    allins = list(pro) + list(cls['Q']) + list(cls['V']) + list(tail) + list(fb)
    finalize_waits(allins)
    for c in "QV":
        check_init(list(pro) + list(cls[c]) + list(tail))
        check_m0(list(pro) + list(cls[c]) + list(tail))
        errs = check_loads(list(pro) + list(cls[c]) + list(tail))
        for e in errs[:10]: print("LOAD HAZARD", c, e, file=sys.stderr)
        assert not errs
        errs = check_scc(list(pro) + list(cls[c]) + list(tail))
        for e in errs[:10]: print("SCC HAZARD", c, e, file=sys.stderr)
        assert not errs
    print(f"nop states inserted: {tot}", file=sys.stderr)
    if "--log" in sys.argv:
        for l in log: print(l, file=sys.stderr)
    body = "\n".join(("" if i.cls == "label" else "    ") + i.text for i in allins)
    return HEADER.replace("@@BODY@@", body)

if __name__ == "__main__":
    out = build()
    path = [x for x in sys.argv[1:] if not x.startswith("--")]
    open(path[0] if path else "out.s", "w").write(out)
```

```python
import sys, math, struct, collections
from asmlib import *

STAMPS = "--stamps" in sys.argv
def opt(name, default):
    for a_ in sys.argv:
        if a_.startswith(f"--{name}="): return type(default)(a_.split("=")[1])
    return default
STOP = opt("stop", "")
XS = [int(x) for x in opt("xs", "").split(",") if x]

def f2u(x): return struct.unpack("<I", struct.pack("<f", x))[0]

WS_Q = 0x000000; WS_K = 0x280000; WS_V = 0x500000; WS_C = 0x780000
WS_O = 0x800000
WS_H = 0xB00000
WS_W = 0x1100000
WS_F = 0x1400000
WS_T = 0x1410000
WS_SIZE = 0x1480000
F_QKV = WS_F; F_H = WS_F + 0x2000; F_O = WS_F + 0x4000
OOB = 0x40000000
LOG2E = 1.4426950408889634
QSCALE = (20 ** -0.5) * LOG2E

L_RING = 0; NSLOT = 8; L_X = 8*16384; L_J = 9*16384
XSLOT = [8, 7, 6, 8, 7, 6, 8, 7, 6, 8]
WSLOT = [0,1,2,3,4,5,0,1,2,3, 4,5,6,7,0, 1,2,3,4,5,6,0,1,2,3]
L_CS = [L_X + 1024, L_X + 3072, L_X + 4096 + 1024]
LW = 40960; L_PF = 6144; NLPF = 33; L_VOTE = LW - 1024

sWAVE=3; sXCD=4; sLOC=5; sT0=6; sT1=7
SX="s[8:11]"; SWS="s[24:27]"; SOUT="s[28:31]"; SDBG="s[32:35]"; SJ="s[36:39]"
pW=12
sMB=40; sJ=41; sWB=42; pX=44
sSL=[47,48,49,50,51,52,62,63,53,54]
sC11=55
sEB=56
sHB=59
sSC=61
sP=64
sNON=84; sTA=85; sTB=86; sTC=87
sHD=88; sQB=89; sKH=90; sJS=91
sFLQ=95; sJO=[72,73,79,55]
pK=64; pV=66; pQ=68; pTW=70; pTH=72
sOPU=12; sOS2=83
sWP=74; sHP=75; sOP=76; sOST=77; sFL=78; sMBX=79; sWP2=80; sRB=81; sCB=82
sSAFE=43; sSPIN=44; sLW=45; sQHI=46

vLANE=1; vXLD=84; vXR=88; vDH=4; vDQ=8; vDG=10; vEP=16; vH=18; vIDX=17; vCW=0; vCR=39
vTR=[[12,13],[14,15],[6,7],[2,3]]; vTH=[40,41,42,43]
vJK=19; vJST=23; vJTR=24; vCST=25; vNM=26; vR=27; vS=28; vSG=29; vSCL=30; vNON=33; vACC=34; vZERO=37; vPA=38
vLN=40; vR16=80; vTMP=64
vA=96; vB=160; vC=192; vXT=160
vK1=48; vO3=49; vK2=50; vQ2=51; vVL=52; vLIN=53; vH3=54; vOSA=58; vRW=60; vRR=61; vFH=62; vFO=63
aX=0; aWF=160; NWF=10
aSEL=242; aNM=246; aRS=250; aD=[[216,220],[212],[100,108]]; aCS=[224,224,120]; aXF=[136,144]
aO=0; aQ=64; aKV=200; aSTAMP=199; aST=[255]

def v(n, k=1): return f"v{n}" if k == 1 else f"v[{n}:{n+k-1}]"
def a(n, k=1): return f"a{n}" if k == 1 else f"a[{n}:{n+k-1}]"
def sp(n): return f"s[{n}:{n+1}]"

class Seg(list):
    def e(self, text, **kw):
        for t in text.strip().split("\n"):
            t = t.strip()
            if t: self.append(I(t, **kw))
        mark_scc(self)
        return self

def stamp(seg, k):
    if not STAMPS or ("--min" in sys.argv and k not in (0, 14)): return
    seg.e(f"s_memrealtime s[96:97]" if "--rt" in sys.argv else f"s_memtime s[96:97]")
    seg.append(W(lg=0))
    seg.e(f"s_mov_b64 exec, {1<<k}\nv_accvgpr_write_b32 a{aST[0]}, s96\ns_mov_b64 exec, -1")
    if k in (0, 14):
        seg.e(f"s_memrealtime s[96:97]")
        seg.append(W(lg=0))
        seg.e(f"s_mov_b64 exec, {1<<(16 if k == 0 else 17)}\nv_accvgpr_write_b32 a{aST[0]}, s96\ns_mov_b64 exec, -1")

def srd(seg, S, ptr, size):
    b = int(S[2:].split(":")[0])
    seg.e(f"s_mov_b32 s{b}, s{ptr}\ns_mov_b32 s{b+1}, s{ptr+1}\ns_mov_b32 s{b+2}, {size}\ns_mov_b32 s{b+3}, 0x00020000")

class Gap:
    def __init__(self, mfma):
        self.mfma = mfma; self.sec = [[], [], []]; self.ext = []; self.end = []; self.blk = False
    def bonus(self): return sum(4*i.passes - 8 for i in self.ext if i.cls == "mfma")
    def flat(self):
        head = ([self.mfma] if self.mfma is not None else []) + self.sec[0] + self.sec[1]
        k = len(self.sec[2])
        if self.ext and not self.blk:
            s2 = self.sec[2]
            while k > 0:
                self.sec[2] = s2[:k-1]
                if gap_cost(self) < 28: break
                k -= 1
            self.sec[2] = s2
        out = head + self.sec[2][:k] + self.ext + self.sec[2][k:] + self.end
        if "--x_m16" in sys.argv and self.mfma is not None and "32x32x16" in self.mfma.op and not self.blk:
            import re
            m = re.match(r"v_mfma_f32_32x32x16_bf16 a\[(\d+):\d+\], (\S+), (\S+), (\S+)", self.mfma.text)
            b = int(m.group(1)); X16[0] += 1; o8 = 8*((X16[0] // 4) % 2)
            mk = lambda c: I(f"v_mfma_f32_16x16x32_bf16 a[{c}:{c+3}], {m.group(2)}, {m.group(3)}, " + ("0" if m.group(4) == "0" else f"a[{c}:{c+3}]"))
            rest = out[1:]
            j = next((i for i, x in enumerate(rest) if x.cls == "lds"), -1) + 1
            first = rest[:j]; rest = rest[j:]
            va = next((i for i, x in enumerate(rest) if x.cls in ("valu", "trans")), None)
            if va is not None and not any(x.cls in ("wait", "mfma", "salu", "vmem") for x in rest[:va]) and not (set(rest[va].wr) & set(r for x in rest[:va] for r in x.rd)): first.append(rest.pop(va))
            out = [mk(b + o8)] + first + [mk(b + o8 + 4)] + rest
        return out
X16 = [0]
def section(i):
    if i.cls in ("vmem", "lds"): return 1
    if i.cls in ("valu", "trans"): return 2
    return 0
class Chain:
    def __init__(self, gaps): self.gaps = gaps; self.k = 0; self.last = 0
    def put(self, group, g0, g1):
        tot = sum(i.cost() for i in group) or 1
        acc = 0
        for i in group:
            want = g0 + min(g1-g0-1, int(acc * (g1-g0) / tot))
            if want > self.k and not scc_reads(i): self.k = want; self.last = 0
            sec = section(i)
            if sec < self.last: self.k += 1
            self.gaps[self.k].sec[sec].append(i); self.last = sec
            acc += i.cost()
        return self.k
    def block(self, group, k):
        if k > self.k: self.k = k
        self.gaps[self.k].sec[2] += list(group); self.last = 2

def gap_cost(gp, base=8):
    c = base if gp.mfma is not None else 0
    ns = 0
    for i in gp.sec[0]:
        if i.cls == "barrier": c += 33
        else: ns += 1
    c += 4*max(0, ns - 1)
    for i in gp.sec[1]: c += mem_cost(i)
    for i in gp.sec[2]: c += (33 if i.cls == "barrier" else 16 if i.cls == "vmem" else 12 if i.cls == "branch" else i.cost())
    return c
def mem_cost(i):
    if i.cls == "lds": return 16 if "write" in i.op else 4
    if "store" in i.op: return 16
    return 4 if i.op.startswith("global") else 8
class Stream:
    stores = []
    def __init__(self, gaps, k=0, cap=opt("cap", 32), base=8): self.gaps = gaps; self.k = k; self.last = 0; self.cap = cap; self.base = base
    def put(self, group, g0, dead, every=0, stsp=0, free=False):
        for i in group:
            sec = section(i); k = self.k
            if g0 > k: k = g0; self.last = 0
            if sec < self.last: k += 1
            if i.cls == "vmem":
                if every: k = max(k, getattr(self, "lastv", -99) + every)
                if stsp and "store" in i.op and Stream.stores: k = max(k, Stream.stores[-1] + stsp)
            d = dead(i) if callable(dead) else dead
            if sec < self.last and self.k >= d: sec = self.last
            k = max(min(k, d), self.k + (1 if sec < self.last else 0))
            while k < d:
                gp = self.gaps[k]; c0 = gap_cost(gp, self.base); gp.sec[sec].append(i); c = gap_cost(gp, self.base); gp.sec[sec].pop()
                if (c <= self.cap + gp.bonus() or c0 <= self.base) and not (free and sec == 0 and c > c0): break
                k += 1
            if k != self.k: self.last = 0
            self.gaps[k].sec[sec].append(i); self.k = k; self.last = sec
            if i.cls == "vmem":
                self.lastv = k
                if "store" in i.op: Stream.stores.append(k)
        return self.k
    def block(self, group, k):
        if k > self.k: self.k = k
        self.gaps[self.k].sec[2] += list(group); self.last = 2; self.gaps[self.k].blk = True
def report(name, gaps, lo, hi, cap=32, base=8):
    xm = lambda l: sum(4*i.passes if i.cls == "mfma" else 4.75 if i.isdot() else 0 for i in l)
    t = sum(max(cap + xm(gaps[n].ext), gap_cost(gaps[n], base) + 8*sum(i.cls == "mfma" for i in gaps[n].ext)) + xm(gaps[n].end) for n in range(lo, hi))
    u = sum(gap_cost(gaps[n], base) for n in range(lo, hi))
    print(f"model {name}: gaps {lo}..{hi} ideal {cap*(hi-lo)} predicted {t} issue {u}", file=sys.stderr)

def weave(main, fill, per):
    out = Seg(); fill = list(fill)
    for m in main:
        out.append(m); out += fill[:per]; fill = fill[per:]
    out += fill
    return out

def dma_stage(sig):
    if sig >= 25: return []
    p = 0 if sig < 10 else (1 if sig < 15 else 2)
    out = Seg()
    vd = (vDQ, vDH, vDG)[p]
    adv = (64*3840, 128*3072, 64*3072)[p]
    out.e(f"s_mov_b32 m0, s{sSL[WSLOT[sig]]}")
    for src in range(2):
        for r in range(2):
            out.append(I(f"global_load_lds_dwordx4 v{vd+r}, {sp(pW+4*p+2*src)} offset:{src*2048+r*1024}", tag=("dma", sig, src, r)))
    if sig not in (9, 14, 24): out.e(f"v_add_u32 v{vd}, {adv}, v{vd}\nv_add_u32 v{vd+1}, {adv}, v{vd+1}")
    return mark_m0(out)
def dma_tag(sig): return ("dma", sig, 1, 1)

def dots(cb):
    out = Seg()
    out.append(W(lg=("xr", cb, 7)))
    for h in range(2): out.append(colsum(a(aRS,4), v(vXT + 8*h, 8)))
    for r in range(16):
        x = vXT + r
        out.e(f"v_dot2_f32_bf16 v{vACC+(r%4)}, v{x}, v{x}, v{vACC+(r%4)}")
    return out
def colsum(d, src):
    return I(f"v_smfmac_f32_16x16x64_bf16 {d}, {a(aSEL,4)}, {src}, v{vIDX}")
def av(p, n, k=1): return v(n, k) if p == 2 else a(n, k)
def x_dma(cb):
    out = Seg()
    out.e(f"s_mov_b32 m0, s{sSL[XSLOT[cb]]}")
    for rg in range(4): out.append(I(f"global_load_lds_dwordx4 v{vXLD+rg}, {sp(pX)} offset:{rg*1024}", tag=("x", cb, rg)))
    if cb < 9:
        for rg in range(4): out.e(f"v_add_u32 v{vXLD+rg}, 128, v{vXLD+rg}")
    return mark_m0(out)
def x_reads(cb):
    off = (XSLOT[cb] - 2)*16384; hi = off >= 65536
    return [I(f"ds_read_b128 {(a(aX+16*cb+4*jj,4), v(vXT+4*jj,4))[c]}, v{vXR+jj+(4 if hi else 0)} offset:{off % 65536}", tag=("xr", cb, 4*c+jj)) for c in range(2) for jj in range(4)]
def mix(g, loads, fill):
    fill = list(fill); n = len(loads)
    for i, grp in enumerate(loads):
        g += grp[:-1]
        if grp[:-1] and grp[-2].wr == [("s","m0")] and fill and fill[0].cls in ("salu","valu") and not scc_live_before(fill, 0): g.append(fill.pop(0))
        k = len(fill) // (n - i)
        g.append(grp[-1])
        while 0 < k < len(fill) and scc_live_before(fill, k): k += 1
        if i + 1 < n and loads[i+1][:-1]:
            while k < len(fill) and scc_live_before(fill, k): k += 1
        g += fill[:k]; fill = fill[k:]
    g += fill
def groups(seg):
    out = []; cur = []
    for i in seg:
        cur.append(i)
        if i.cls == "vmem": out.append(cur); cur = []
    return out, cur

TCH = [tuple(int(y) for y in x.split(":")) for x in opt("tch", "2:4:-2,6:4:17").split(",") if x]
TXR = 2 if opt("txr", 1) == 1 else 8
vTX = 44; vTW = 45; vTG = 46
def masked_loads(lst):
    o = Seg(); cur = None
    for n, ld in lst:
        if n != cur: o.e(f"s_mov_b64 exec, {(1 << n) - 1}"); cur = n
        o.append(ld)
    o.e("s_mov_b64 exec, -1")
    return o
def touch(k):
    o = masked_loads([(TXR*TCH[k][1], I(f"global_load_dword a210, v{vTX}, {sp(sP)} offset:{TCH[k][0]*128}", tag="pf")),
                      (4*TCH[k][1], I(f"global_load_dword a211, v{vTW}, {sp(sP+2)}", tag="pf"))])
    if k + 1 < len(TCH): o.e(f"v_add_u32 v{vTW}, {(TCH[k+1][0] - TCH[k][0])*64*3840}, v{vTW}")
    assert TCH[k][0] + TCH[k][1] <= 10
    return o
def grp(*segs):
    out = []; carry = []
    for sg_ in segs:
        gr, tl = groups(sg_); gr[0] = carry + gr[0]; out += gr; carry = tl
    return out, carry
def prologue():
    g = Seg()
    g.e(f"""
    s_cmp_ge_u32 s2, 256
    s_cbranch_scc1 L_end
    """)
    if STAMPS: g.e(f"v_accvgpr_write_b32 a{aST[0]}, 0")
    stamp(g, 0)
    g.e(f"""
    s_load_dwordx16 s[64:79], s[0:1], 0
    s_load_dwordx4 s[80:83], s[0:1], 64
    s_getpc_b64 s[36:37]
    L_pc0:
    s_lshr_b32 s{sLOC}, s2, 3
    s_mov_b32 s38, L_codeend-L_pc0
    s_mov_b32 s39, 0x00020000
    s_lshl_b32 s{sT0}, s{sLOC}, 12
    v_lshlrev_b32 v64, 4, v0
    """)
    CP = opt("cp0", 0)
    if CP == 0: g.append(I(f"buffer_load_dwordx4 a[200:203], v64, {SJ}, s{sT0} offen", tag="code"))
    else: g.e(f"v_add_u32 v47, s{sT0}, v64")
    cq = f2u(QSCALE); t32 = 98; tb = 99
    PF = opt("pf", 12)
    g.e(f"""
    v_and_b32 v{vLANE}, 63, v0
    v_lshrrev_b32 v0, 6, v0
    s_and_b32 s{sXCD}, s2, 7
    v_readfirstlane_b32 s{sWAVE}, v0
    s_and_b32 s{sT0}, s{sXCD}, 1
    s_lshl_b32 s{sT0}, s{sT0}, 3
    s_and_b32 s{sT1}, s{sLOC}, 7
    s_add_u32 s{sMB}, s{sT0}, s{sT1}
    v_lshrrev_b32 v64, 3, v{vLANE}
    v_and_b32 v65, 7, v{vLANE}
    v_xor_b32 v66, v64, v65
    v_lshlrev_b32 v66, 4, v66
    v_mul_u32_u24 v{vXLD}, 1280, v64
    v_add_u32 v{vXLD}, v{vXLD}, v66
    v_add_u32 v{vXLD+1}, {10240-1024}, v{vXLD}
    v_xor_b32 v67, 1, v64
    v_xor_b32 v66, 16, v66
    v_mul_u32_u24 v67, 1280, v67
    v_add_u32 v67, v67, v66
    v_add_u32 v{vXLD+2}, {20480-2048}, v67
    v_add_u32 v{vXLD+3}, {30720-3072}, v67
    s_lshl_b32 s{sWB}, s{sWAVE}, 12
    s_lshl_b32 s{t32}, s{sMB}, 2
    s_add_u32 s{t32}, s{t32}, s{sWAVE}
    s_mul_i32 s{pX}, s{t32}, 40960
    s_lshr_b32 s{sT0}, s{sXCD}, 1
    s_lshl_b32 s{sT0}, s{sT0}, 2
    s_lshr_b32 s{sT1}, s{sLOC}, 3
    s_add_u32 s{sJ}, s{sT0}, s{sT1}
    v_lshlrev_b32 v66, 4, v65
    v_lshlrev_b32 v67, 1, v64
    v_and_b32 v67, 4, v67
    v_xor_b32 v67, v65, v67
    v_lshlrev_b32 v67, 4, v67
    v_mul_u32_u24 v{vDQ}, 3840, v64
    v_add_u32 v{vDQ}, v{vDQ}, v67
    v_add_u32 v{vDQ+1}, {8*3840-1024}, v{vDQ}
    s_min_u32 s{sT0}, s{sJ}, 14
    s_lshl_b32 s{sT1}, s{sT0}, 8
    s_mul_i32 s{tb}, s{sWAVE}, {16*3840}
    s_add_u32 s{pW}, s{sT1}, s{tb}
    """)
    for i in (8, 0, 7, 1): g.e(f"s_add_u32 s{sSL[i]}, s{sWB}, {L_RING + i*16384}")
    ta = Seg()
    if TCH:
        R = TXR
        ta.e(f"""
        s_lshl_b32 s{sT0}, s{sLOC}, 2
        s_add_u32 s{sT0}, s{sT0}, s{sWAVE}
        s_lshr_b32 s{sT1}, s{sXCD}, 1
        s_lshl_b32 s100, s{sT1}, 10
        v_lshrrev_b32 v75, 2, v{vLANE}
        v_and_b32 v74, 3, v{vLANE}
        v_mul_u32_u24 v75, {64*3840}, v75
        s_and_b32 s99, s{sT0}, 1
        s_lshl_b32 s99, s99, 9
        s_add_u32 s100, s100, s99
        v_lshl_add_u32 v74, v74, 7, s100
        v_min_u32 v74, 3712, v74
        s_lshr_b32 s99, s{sT0}, 1
        s_mul_i32 s99, s99, 3840
        s_add_u32 s99, s99, {TCH[0][0]*64*3840}
        v_add3_u32 v{vTW}, v74, v75, s99
        s_lshl_b32 s{sT1}, s{sT1}, 7
        {"s_add_u32 s%d, s%d, s%d" % (sT0, sT0, sT1) if R == 2 else ""}
        s_mul_i32 s{sT0}, s{sT0}, {R*1280}
        s_and_b32 s{sT1}, s{sXCD}, 1
        s_mul_i32 s{sT1}, s{sT1}, {1024*1280}
        s_add_u32 s{sT0}, s{sT0}, s{sT1}
        v_and_b32 v75, {R-1}, v{vLANE}
        v_mul_u32_u24 v75, 1280, v75
        v_lshrrev_b32 v74, {R.bit_length() - 1}, v{vLANE}
        v_lshl_add_u32 v74, v74, 7, v75
        v_add_u32 v{vTX}, s{sT0}, v74
        """)
    f = Seg()
    for i in range(2, 7): f.e(f"s_add_u32 s{sSL[i]}, s{sWB}, {L_RING + i*16384}")
    f.e(f"""
    s_mov_b32 s{sC11}, 0x3F803F80
    v_lshrrev_b32 v70, 5, v{vLANE}
    v_and_b32 v71, 31, v{vLANE}
    v_and_b32 v72, 7, v71
    v_lshrrev_b32 v73, 3, v71
    v_lshrrev_b32 v74, 1, v73
    v_xor_b32 v74, v72, v74
    v_lshlrev_b32 v74, 7, v74
    v_lshl_add_u32 v73, v73, 10, v74
    s_add_u32 s{sT0}, s{sWB}, 32768
    v_add_u32 v73, s{sT0}, v73
    v_and_b32 v74, 15, v{vLANE}
    v_lshrrev_b32 v75, 2, v74
    v_lshlrev_b32 v69, 6, v75
    v_lshl_add_u32 v69, v70, 9, v69
    v_lshlrev_b32 v75, 7, v75
    v_lshl_add_u32 v75, v70, 10, v75
    v_and_b32 v76, 3, v74
    v_lshlrev_b32 v76, 3, v76
    v_and_b32 v77, 16, v{vLANE}
    v_lshl_add_u32 v76, v77, 1, v76
    v_add_u32 v69, v69, v76
    v_and_b32 v77, 8, v74
    v_lshlrev_b32 v77, 3, v77
    v_xor_b32 v76, v76, v77
    v_add_u32 v76, v75, v76
    """)
    for jj in range(4):
        f.e(f"""
        s_add_u32 s{sT0}, s{sWAVE}, {jj}
        s_and_b32 s{sT0}, s{sT0}, 3
        s_lshl_b32 s{sT1}, s{sT0}, 12
        v_lshl_add_u32 v74, s{sT0}, 1, v70
        v_add_u32 v{vTR[jj][0]}, s{sT1}, v76
        s_and_b32 s{sT1}, s{sT0}, 1
        s_mul_i32 s{sT1}, s{sT1}, {1024 - 2048}
        v_xor_b32 v75, v72, v74
        s_lshl_b32 s{sT0}, s{sT0}, 11
        s_add_u32 s{sT0}, s{sT0}, s{sT1}
        s_add_u32 s{sT0}, s{sT0}, {65536*LEVEL0[('h', jj)]}
        v_xor_b32 v{vTR[jj][1]}, 64, v{vTR[jj][0]}
        v_lshl_add_u32 v{vXR+jj}, v75, 4, v73
        v_add_u32 v{vTH[jj]}, s{sT0}, v69
        v_add_u32 v{vXR+4+jj}, 65536, v{vXR+jj}
        """)
    f.e(f"""
    v_mov_b32 v{vACC}, 0
    v_mov_b32 v{vACC+1}, 0
    v_mov_b32 v{vACC+2}, 0
    v_mov_b32 v{vACC+3}, 0
    v_lshrrev_b32 v74, 2, v{vLANE}
    v_xor_b32 v74, v74, v{vLANE}
    v_and_b32 v74, 8, v74
    v_and_b32 v75, 6, v{vLANE}
    v_or_b32 v74, v74, v75
    v_mov_b32 v75, s{sC11}
    v_cmp_eq_u32 vcc, 0, v74
    v_and_b32 v{vIDX}, 1, v{vLANE}
    v_mul_u32_u24 v{vIDX}, 0xaaaa, v{vIDX}
    v_cndmask_b32 v77, 0, v75, vcc
    v_cmp_eq_u32 vcc, 4, v74
    v_add_u32 v{vIDX}, 0x4444, v{vIDX}
    v_accvgpr_write_b32 a{aSEL}, v77
    v_cndmask_b32 v75, 0, v75, vcc
    v_accvgpr_write_b32 a{aSEL+1}, v77
    v_accvgpr_write_b32 a{aSEL+2}, v75
    v_accvgpr_write_b32 a{aSEL+3}, v75
    """)
    for d in [aRS] + aD[0]:
        for k in range(4): f.e(f"v_accvgpr_write_b32 a{d+k}, 0")
    PRE = opt("pre", 27)
    fc = Seg(); fc += ta; fc += f
    while PRE < len(fc) and scc_live_before(fc, PRE): PRE += 1
    g += fc[:PRE]; fc = fc[PRE:]
    g.append(W(lg=0))
    if "--xsp" in sys.argv: stamp(g, 28)
    g.e(f"""
    s_add_u32 s{pX}, s{sP}, s{pX}
    s_addc_u32 s{pX+1}, s{sP+1}, 0
    s_add_u32 s{pW}, s{sP+2}, s{pW}
    s_addc_u32 s{pW+1}, s{sP+3}, 0
    """)
    if opt("tw", 1): g += masked_loads([(1, I(f"global_load_dword a211, v{vDQ}, {sp(pW)}", tag="pf"))])
    g += x_dma(0)
    g.e(f"""
    s_sub_u32 s{pW+2}, s{pW}, {2048-128}
    s_subb_u32 s{pW+3}, s{pW+1}, 0
    """)
    first = Seg()
    first += dma_stage(0)[:5]
    first += x_dma(1)[:5]; first += dma_stage(0)[5:]
    first += dma_stage(1)[:5]; first += x_dma(1)[5:]; first += dma_stage(1)[5:]
    if CP == 1: g.append(I(f"buffer_load_dwordx4 a[200:203], v47, {SJ}, 0 offen", tag="code"))
    if CP == 2: first.append(I(f"buffer_load_dwordx4 a[200:203], v47, {SJ}, 0 offen", tag="code"))
    for k_ in range(len(TCH)):
        if TCH[k_][2] == -2: first += touch(k_)
    f = Seg()
    f.e(f"""
    s_lshl_b32 s{sT0}, s2, 2
    s_add_u32 s{sT0}, s{sT0}, s{sWAVE}
    s_mul_i32 s{sT0}, s{sT0}, 384
    v_lshlrev_b32 v{vTG}, 7, v{vLANE}
    v_add_u32 v{vTG}, s{sT0}, v{vTG}
    """)
    srd(f, SX, sP+0, 2621440)
    f.e("s_add_u32 s0, s36, L_p1c-L_pc0\ns_addc_u32 s1, s37, 0")
    srd(f, SWS, sP+18, WS_SIZE); srd(f, SOUT, sP+14, 2621440); srd(f, SDBG, sP+16, 256)
    f.e(f"""
    v_mul_u32_u24 v{vDG}, 3072, v64
    v_add_u32 v{vDG}, v{vDG}, v67
    v_add_u32 v{vDG+1}, {8*3072-1024}, v{vDG}
    v_lshrrev_b32 v67, 2, v{vLANE}
    v_mul_u32_u24 v67, 3072, v67
    v_and_b32 v68, 3, v{vLANE}
    v_lshl_add_u32 v{vDH}, v68, 4, v67
    v_add_u32 v{vDH+1}, {16*3072-1024}, v{vDH}
    v_lshrrev_b32 v74, 4, v71
    v_mul_u32_u24 v74, 49152, v74
    v_and_b32 v75, 15, v71
    v_lshlrev_b32 v75, 4, v75
    v_lshl_add_u32 v75, v70, 8, v75
    v_add_u32 v{vH}, v74, v75
    s_min_u32 s{sT0}, s{sJ}, 14
    s_lshl_b32 s{sT1}, s{sT0}, 19
    s_cmp_lt_u32 s{sJ}, 10
    s_cselect_b32 s{tb}, 9, 8
    s_lshl_b32 s{tb}, s{t32}, s{tb}
    s_add_u32 s{sEB}, s{sT1}, s{tb}
    s_add_u32 s{sEB+1}, s{sEB}, {1<<18}
    s_cmp_lt_u32 s{sJ}, 5
    s_cselect_b32 s{sSC}, {cq}, 1.0
    s_and_b32 s{sT0}, s{sJ}, 3
    s_lshl_b32 s{sT0}, s{sT0}, 2
    s_lshr_b32 s{sT1}, s{sJ}, 2
    s_add_u32 s{sT1}, s{sT0}, s{sT1}
    s_lshr_b32 s{sT0}, s{sT1}, 1
    s_mul_i32 s{sT0}, s{sT0}, 3
    s_and_b32 s{sT1}, s{sT1}, 1
    s_mul_i32 s{t32}, s{t32}, {96*1024}
    s_add_u32 s{t32}, s{t32}, {WS_H}
    s_add_u32 s{sTA}, s{sT0}, s{sT1}
    s_lshl_b32 s{sTB}, s{sTA}, 7
    s_mul_i32 s{tb}, s{sWAVE}, {16*3072}
    s_add_u32 s{sTB}, s{sTB}, s{tb}
    s_add_u32 s{pW+8}, s{sP+8}, s{sTB}
    s_addc_u32 s{pW+9}, s{sP+9}, 0
    s_add_u32 s{pW+10}, s{sP+10}, s{sTB}
    s_addc_u32 s{pW+11}, s{sP+11}, 0
    s_sub_u32 s{pW+10}, s{pW+10}, 2048
    s_subb_u32 s{pW+11}, s{pW+11}, 0
    s_lshl_b32 s{sTB}, s{sTA}, 11
    s_add_u32 s{sHB+1}, s{t32}, s{sTB}
    s_lshl_b32 s{sTA}, s{sT0}, 1
    s_add_u32 s{sTA}, s{sTA}, s{sT1}
    s_add_u32 s{sTA}, s{sTA}, 4
    s_lshl_b32 s{sTB}, s{sTA}, 6
    s_lshl_b32 s{tb}, s{tb}, 1
    s_add_u32 s{sTB}, s{sTB}, s{tb}
    s_add_u32 s{pW+4}, s{sP+8}, s{sTB}
    s_addc_u32 s{pW+5}, s{sP+9}, 0
    s_add_u32 s{pW+6}, s{sP+10}, s{sTB}
    s_addc_u32 s{pW+7}, s{sP+11}, 0
    s_sub_u32 s{pW+6}, s{pW+6}, 2048
    s_subb_u32 s{pW+7}, s{pW+7}, 0
    s_lshl_b32 s{sTB}, s{sTA}, 10
    s_add_u32 s{sHB}, s{t32}, s{sTB}
    v_lshrrev_b32 v74, 2, v71
    v_lshlrev_b32 v74, 14, v74
    v_and_b32 v75, 3, v71
    v_lshlrev_b32 v75, 4, v75
    v_lshl_add_u32 v75, v70, 6, v75
    v_add_u32 v74, v74, v75
    s_cmp_lt_u32 s{sJ}, 15
    s_cselect_b32 s{sT0}, 0, {OOB}
    v_add_u32 v74, s{sT0}, v74
    v_lshlrev_b32 v75, 4, v71
    v_lshl_add_u32 v75, v70, 15, v75
    s_cmp_lt_u32 s{sJ}, 10
    s_cselect_b64 vcc, -1, 0
    v_cndmask_b32 v{vEP}, v74, v75, vcc
    s_lshl_b32 s{sTA}, s2, 2
    s_add_u32 s{sTA}, s{sTA}, s{sWAVE}
    v_and_b32 v75, 3, v{vLANE}
    s_sub_u32 s{sT0}, s{sTA}, 720
    s_cmp_lt_u32 s{sT0}, 32
    s_cselect_b32 s{sT1}, 0, {OOB}
    s_and_b32 s{sT0}, s{sT0}, 31
    s_lshl_b32 s{sT0}, s{sT0}, 10
    s_add_u32 s{sT0}, s{sT0}, s{sT1}
    s_add_u32 s{sT0}, s{sT0}, {WS_C}
    v_lshlrev_b32 v{vCW}, 4, v{vLANE}
    v_add_u32 v{vCST}, s{sT0}, v{vCW}
    v_and_b32 v80, 3, v{vLANE}
    v_cmp_eq_u32 vcc, 0, v80
    v_mov_b32 v81, s{sC11}
    s_lshr_b32 s{sT0}, s2, 4
    s_lshl_b32 s{sT0}, s{sT0}, 8
    v_cndmask_b32 v80, 0, v81, vcc
    v_mov_b32 v81, v80
    v_mov_b32 v82, v80
    v_mov_b32 v83, v80
    v_lshrrev_b32 v{vPA}, 2, v{vLANE}
    v_lshlrev_b32 v{vPA}, 8, v{vPA}
    v_lshl_add_u32 v{vPA}, v75, 4, v{vPA}
    v_add_u32 v{vPA}, {F_QKV}, v{vPA}
    s_and_b32 s{sT1}, s2, 15
    s_lshl_b32 s{sT1}, s{sT1}, 2
    s_add_u32 s{sT0}, s{sT0}, s{sT1}
    s_add_u32 s{sFLQ}, s{sT0}, {F_QKV}
    s_lshl_b32 s{sT0}, s{sWAVE}, 2
    s_add_u32 s{sT0}, s{sT0}, {L_X}
    v_and_b32 v{vCR}, 511, v{vCW}
    v_add_u32 v{vCW}, s{sT0}, v{vCW}
    v_add_u32 v{vCR}, {L_X}, v{vCR}
    """)
    k = min(opt("late", 999), len(f))
    while k < len(f) and scc_live_before(f, k): k += 1
    fc = list(fc) + f[:k]; LATE[:] = f[k:]
    k = min(max(opt("mid", 150), len(ta) - PRE), len(fc))
    while k < len(fc) and scc_live_before(fc, k): k += 1
    g += fc[:k]
    if "--xsp" in sys.argv: stamp(g, 29)
    g += first
    if "--xsp" in sys.argv: stamp(g, 31)
    g += fc[k:]
    nn = Seg()
    nn.e(f"""
    s_or_b32 s{sT0}, s2, s{sWAVE}
    s_cmp_lg_u32 s{sT0}, 0
    s_cbranch_scc1 L_non@
    s_memrealtime s[6:7]
    """)
    nn.append(W(lg=0))
    nn.e(f"s_or_b32 s6, s6, 1\nv_mov_b32 v68, s6\nv_mov_b32 v69, 0")
    nn.append(I(f"buffer_store_dword v68, v69, {SDBG}, 0 offen sc1", cond=True))
    nn.e("L_non@:")
    NONCE[:] = nn
    if not LATE: g += nonce("")
    if "--xsp" in sys.argv: stamp(g, 30)
    g.append(W(vm=("x", 0, 3)))
    stamp(g, 1)
    g += x_reads(0)
    g += x_dma(2)
    for k_ in range(len(TCH)):
        if TCH[k_][2] == -1: g += touch(k_)
    g += dots(0)
    g.append(W(vm=dma_tag(0))); g.e("s_barrier")
    stamp(g, 2)
    g2, c2 = grp(dma_stage(2))
    for n in range(DIST):
        g += tr_reads(n)
        if n % 2: g += g2[n//2]
    g += c2
    stamp(g, 3)
    g.e(f"s_cmp_ge_u32 s{sJ}, 10")
    g.append(W(lg=("tr", 3, 1)))
    g.e("s_cbranch_scc1 L_clsV")
    return g
LATE = []; NONCE = []
def clone(lst, sfx=""):
    o = Seg()
    for i in lst: o.append(W(vm=i.wvm, lg=i.wlg) if i.cls == "wait" else I(i.text.replace("@", sfx), tag=i.tag, cond=i.cond))
    mark_scc(o); return o
def nonce(sfx): return clone(NONCE, sfx)

def job_params():
    jp = Seg()
    jp.e(f"""
    s_mul_i32 s{sTB}, s{sTA}, 6554
    s_lshr_b32 s{sTB}, s{sTB}, 16
    s_mul_i32 s{sT0}, s{sTB}, 10
    s_sub_u32 s{sTC}, s{sTA}, s{sT0}
    s_cmp_lt_u32 s{sTB}, 48
    s_cselect_b32 s36, s{sP+12}, s{sP+4}
    s_cselect_b32 s37, s{sP+13}, s{sP+5}
    s_mov_b32 s38, {640*1280}
    s_cselect_b32 s38, {1536*1280}, s38
    s_mov_b32 s39, 0x00020000
    v_lshrrev_b32 v74, 2, v64
    v_and_b32 v75, 3, v64
    v_lshl_add_u32 v75, v74, 3, v75
    v_mul_u32_u24 v75, 1280, v75
    v_add_u32 v75, v75, v66
    v_lshlrev_b32 v74, 30, v74
    v_add_u32 v76, v75, v74
    s_cmp_lt_u32 s{sTA}, 720
    s_cselect_b32 s{sT0}, 0, {OOB}
    v_lshlrev_b32 v{vJST}, 4, v{vLANE}
    v_or_b32 v{vJST}, s{sT0}, v{vJST}
    v_or_b32 v75, s{sT0}, v75
    v_or_b32 v76, s{sT0}, v76
    """)
    for kg in range(4):
        jp.e(f"""
        s_lshl_b32 s{sT0}, s{sTB}, 2
        s_sub_u32 s{sT0}, s{sT0}, {192-kg}
        s_mul_i32 s{sT1}, s{sT0}, 171
        s_lshr_b32 s{sT1}, s{sT1}, 9
        s_mul_i32 s98, s{sT1}, 3
        s_sub_u32 s98, s{sT0}, s98
        s_mul_i32 s{sT1}, s{sT1}, 20
        s_lshl_b32 s99, s98, 2
        s_cmp_eq_u32 s98, 2
        s_cselect_b32 s99, 16, s99
        s_cselect_b64 s[100:101], -1, 0
        s_add_u32 s{sT1}, s{sT1}, s99
        s_lshl_b32 s{sT0}, s{sTB}, 5
        s_add_u32 s{sT0}, s{sT0}, {16*(kg//2)+4*(kg%2)}
        s_cmp_lt_u32 s{sTB}, 48
        s_cselect_b32 s{sT0}, s{sT0}, s{sT1}
        s_cselect_b64 s[100:101], 0, s[100:101]
        s_mul_i32 s{sT0}, s{sT0}, 1280
        s_lshl_b32 s{sT1}, s{sTC}, 7
        s_add_u32 s{sJS+kg}, s{sT0}, s{sT1}
        v_cndmask_b32 v{vJK+kg}, v75, v76, s[100:101]
        """)
    jp.e(f"""
    s_add_u32 s{sSL[9]}, s{sWB}, {L_J}
    v_lshrrev_b32 v74, 4, v{vLANE}
    v_lshlrev_b32 v74, 10, v74
    v_and_b32 v75, 15, v{vLANE}
    v_lshrrev_b32 v76, 2, v75
    v_lshl_add_u32 v74, v76, 7, v74
    v_and_b32 v75, 3, v75
    v_lshl_add_u32 v74, v75, 3, v74
    v_add_u32 v{vJTR}, s{sSL[9]}, v74
    """)
    return jp

def job_dma():
    jobdma = Seg()
    for kg, m_ in ((0, f"s_mov_b32 m0, s{sSL[9]}"), (1, "s_bitset1_b32 m0, 10"), (3, "s_bitset1_b32 m0, 11"), (2, "s_bitset0_b32 m0, 10")):
        jobdma.e(m_)
        jobdma.append(I(f"buffer_load_dwordx4 v{vJK+kg}, {SJ}, s{sJS+kg} offen lds", tag=("job", kg)))
    return mark_m0(jobdma)
def job_par():
    jobdma = Seg()
    for tg in range(4):
        jobdma.e(f"""
        s_lshl_b32 s98, s{sTC}, 2
        s_add_u32 s98, s98, {tg}
        s_mul_i32 s99, s98, 52
        s_lshr_b32 s99, s99, 8
        s_mul_i32 s99, s99, 355
        s_add_u32 s98, s98, s99
        s_mul_i32 s99, s{sTB}, 5
        s_add_u32 s98, s98, s99
        s_lshl_b32 s98, s98, 10
        s_add_u32 s{sJO[tg]}, s98, {WS_W}
        """)
    return jobdma

NTAIL = 4
def p1_order():
    o = []
    for ks in range(40): o += [(0, ks, u) for u in range(4)]
    for ks in range(40): o += [(1, ks, u) for u in range(2)]
    k1 = 40 - 4*NTAIL
    for ks in range(k1): o += [(2, ks, u) for u in (0, 2, 1, 3)]
    for ks in range(k1, 40): o += [(2, ks, 0), (2, ks, 2)]
    for ks in range(k1, 40): o += [(2, ks, 1), (2, ks, 3)]
    return o
ORDER = p1_order()
def stage_of(p, ks): return (ks//4, 10 + ks//8, 15 + ks//4)[p]
DIST = 8
def frag_read(p, ks, u, f, tag):
    slot = WSLOT[stage_of(p, ks)]
    if p != 1: off = (u//2)*2048; reg = vTR[ks % 4][u % 2]; d = 512
    else: off = (ks % 8)//4*8192 + u*2048; reg = vTH[ks % 4]; d = 256
    off += slot % 4*16384
    r = a if f >= aWF else v
    return [I(f"ds_read_b64_tr_b16 {r(f,2)}, v{reg} offset:{off}", tag=tag+(0,)),
            I(f"ds_read_b64_tr_b16 {r(f+2,2)}, v{reg} offset:{off+d}", tag=tag+(1,))]
def tr_reads(n):
    if n >= 400: return []
    return frag_read(*ORDER[n], aWF + 4*(n % NWF), ("tr", n))
POS = {o_: n for n, o_ in enumerate(ORDER)}
FIRST = {}
for n_, (p_, ks_, u_) in enumerate(ORDER): FIRST.setdefault(stage_of(p_, ks_), n_ - DIST)
SINGLE = opt("single", 12)
BAR = {FIRST[s_]: [s_] for s_ in range(1, SINGLE)}
for s_ in range(SINGLE, 25, 2): BAR[FIRST[s_]] = [x for x in (s_, s_+1) if x < 25]
XB1 = opt("xb1", 238); XB2 = opt("xb2", 364 if SINGLE % 2 == 0 else 357)
BLAND = {s_: n_ for n_, l_ in BAR.items() for s_ in l_}
for x_ in (XB1, XB2): BAR.setdefault(x_, [])
XREAD = [(POS[(2, ks_, 0)] - DIST, ks_, (1, 3), 0) for ks_ in range(40 - 4*NTAIL, 36, 4)] + [(BLAND[24], 36, (0, 2), 1), (max(BLAND[24] + 1, POS[(2, 32, 0)] - DIST + 5), 36, (1, 3), 0)]
def read_plan():
    seq = [(max(n - DIST, -1), ORDER[n]) for n in range(400)] + [(g_ + 0.5, (2, ks, u)) for g_, ks, us, _ in XREAD for u in us]
    seq.sort(key=lambda x: x[0])
    lev0 = {}; cur = {}; tog = collections.defaultdict(list); last = {}
    for g_, (p, ks, u) in seq:
        key = ('h', ks % 4) if p == 1 else ('r', ks % 4, u % 2)
        reg = vTH[ks % 4] if p == 1 else vTR[ks % 4][u % 2]
        lv = WSLOT[stage_of(p, ks)] // 4; last[stage_of(p, ks)] = g_
        if key not in cur: lev0[key] = lv
        elif cur[key][0] != lv:
            assert int(cur[key][1]) < int(g_); tog[int(cur[key][1])].append(reg)
        cur[key] = (lv, g_)
    done = {}
    for s_, g_ in last.items():
        m = int(g_) + 4
        while m % 4 != 3: m += 1
        done[s_] = min([b for b in BAR if b > m] + [999])
    return lev0, tog, done
LEVEL0, TOG, FREE = read_plan()
assert all(v_ == 0 for k_, v_ in LEVEL0.items() if k_[0] == 'r')
def p1_mfma(n, cls):
    p, ks, u = ORDER[n]
    acc = (vA, vB, vC)[p] + 16*u
    wf = a(aWF + 4*(n % NWF), 4); x = a(aX + 4*ks, 4)
    c = "0" if ks == 0 else v(acc, 16)
    if cls == 'V' and p == 0: return I(f"v_mfma_f32_32x32x16_bf16 {v(acc,16)}, {x}, {wf}, {c}")
    return I(f"v_mfma_f32_32x32x16_bf16 {v(acc,16)}, {wf}, {x}, {c}")

def cs_out(p, T):
    out = Seg()
    for k, d in enumerate(aD[p]):
        t = T + 2*k
        if p == 2: out.e(f"v_add_f32 v{t}, v{d}, v{d+1}")
        else: out.e(f"v_accvgpr_read_b32 v{t}, a{d}\nv_accvgpr_read_b32 v{t+1}, a{d+1}\nv_add_f32 v{t}, v{t}, v{t+1}")
        out.e(f"""
        v_cvt_pk_bf16_f32 v{t+1}, v{t}, v{t}
        v_and_b32 v{t+1}, 0xffff0000, v{t+1}
        v_sub_f32 v{t}, v{t}, v{t+1}
        v_cvt_pk_bf16_f32 v{t}, v{t+1}, v{t}
        """)
    for k in range(len(aD[p])): out.append(I(f"ds_write_b32 v{vCW}, v{T+2*k} offset:{L_CS[p] - L_X + 1024*k}", tag=("csw", p, k)))
    return out
CS_TILES = [(0, 1, 2, 3), (0, 1), (0, 2, 1, 3)]
def cs_in(p):
    return [I(f"ds_read_b128 {av(p, aCS[p]+4*k,4)}, v{vCR} offset:{L_CS[p] - L_X + 512*k}", tag=("csr", p, k)) for k in range(len(CS_TILES[p]))]
def cs_mfma(p, k, cls):
    acc = v((vA, vB, vC)[p] + 16*CS_TILES[p][k], 16); cs = av(p, aCS[p]+4*k, 4); nm = a(aNM, 4)
    if cls == 'V' and p == 0: cs, nm = nm, cs
    return I(f"v_mfma_f32_32x32x16_bf16 {acc}, {cs}, {nm}, {acc}")
def exchange(gaps, p, cls, g_out, bar, T, at):
    st = Stream(gaps, g_out); st.put(cs_out(p, T), g_out, bar - 2)
    gaps[bar].sec[0].insert(0, W(lg=("csw", p, len(aD[p]) - 1)))
    st = Stream(gaps, bar); st.put(cs_in(p), bar, bar + 1)
    for k, n in enumerate(at): gaps[n].ext += [W(lg=("csr", p, k)), cs_mfma(p, k, cls)]

tmpctr = [0]
def epi_qk(acc, t, sbase, vscale, tag):
    out = []
    for pr in range(2):
        o = Seg(); D = acc + 8*pr
        T = vTMP + 8*(tmpctr[0] % 2); tmpctr[0] += 1
        for e in range(8): o.e(f"v_mul_f32 v{T+e}, v{vscale}, v{D+e}")
        for e in (0, 2, 1, 3): o.e(f"v_cvt_pk_bf16_f32 v{D+e}, v{T+2*e}, v{T+2*e+1}")
        o.e(f"v_permlane32_swap_b32 v{D}, v{D+2}\nv_permlane32_swap_b32 v{D+1}, v{D+3}")
        st = Seg(); st.e(f"s_add_u32 s{sT0+pr}, s{sbase}, {(4*t+2*pr)*32768}")
        st.append(I(f"buffer_store_dwordx4 {v(D,4)}, v{vEP}, {SWS}, s{sT0+pr} offen sc1", tag=tag))
        out.append((o, st))
    return out
def epi_v(acc, t, sbase, voff, tag):
    out = []
    for m in range(2):
        o = Seg(); D = acc + 8*m
        T = vTMP + 8*(tmpctr[0] % 2); tmpctr[0] += 1
        for e in range(8): o.e(f"v_mul_f32 v{T+e}, v{vR16+8*m+e}, v{D+e}")
        for e in range(4): o.e(f"v_cvt_pk_bf16_f32 v{D+e}, v{T+2*e}, v{T+2*e+1}")
        st = Seg(); st.e(f"s_add_u32 s{sT0+m}, s{sbase}, {8*t*16384}")
        st.append(I(f"buffer_store_dwordx4 {v(D,4)}, v{voff}, {SWS}, s{sT0+m} offen offset:{128*m} sc1", tag=tag))
        out.append((o, st))
    return out
def epi_g(acc, t, shb, tag, ud=32):
    out = Seg()
    ag = acc + 16*t; au = acc + ud + 16*t
    for pp in range(2):
        P = ag + 8*pp if HDEF else vTMP + 24 + 4*pp
        for c4 in range(2):
            T = vTMP + 8*(tmpctr[0] % 3); tmpctr[0] += 1
            r0 = 8*pp + 4*c4
            for e in range(4): out.e(f"v_mul_f32 v{T+e}, v{vSG}, v{ag+r0+e}")
            for e in range(4): out.e(f"v_exp_f32 v{T+e}, v{T+e}")
            for e in range(4): out.e(f"v_fma_f32 v{T+e}, v{T+e}, v{vS}, v{vS}")
            for e in range(4): out.e(f"v_rcp_f32 v{T+e}, v{T+e}")
            for e in range(4): out.e(f"v_mul_f32 v{T+4+e}, v{T+e}, v{au+r0+e}")
            out.e(f"v_cvt_pk_bf16_f32 v{P+2*c4}, v{T+4}, v{T+5}\nv_cvt_pk_bf16_f32 v{P+2*c4+1}, v{T+6}, v{T+7}")
        st = I(f"buffer_store_dwordx4 {v(P,4)}, v{vJA+2 if HDEF else vH}, {SWS}, s{shb} offen offset:{t*1024+pp*512} sc1", tag=tag)
        if HDEF: HST.append(st) if len(HST) < 6 and st.text not in [x.text for x in HST] else None
        else: out.append(st)
    return out
HDEF = opt("hdef", 1); HST = []

vJA = 156
def job_process(vTMP=vTMP, vJST=vJST, vJTR=vJTR):
    out = Seg()
    out.append(W(vm=("job", 2)))
    for tg in range(4):
        T = vTMP + 4*tg
        out.append(I(f"ds_read_b64_tr_b16 {v(T,2)}, v{vJTR} offset:{tg*32}", tag=("jtr", tg, 0)))
        out.append(I(f"ds_read_b64_tr_b16 {v(T+2,2)}, v{vJTR} offset:{tg*32+512}", tag=("jtr", tg, 1)))
    out2 = Seg()
    out2.append(W(lg=("jtr", 3, 1)))
    for tg in range(4):
        out2.append(I(f"buffer_store_dwordx4 {v(vTMP+4*tg,4)}, v{vJST}, {SWS}, s{sJO[tg]} offen sc1", tag="h1"))
    return out, out2

def spin(seg, name, addr, dst, width, srd_, cmp_lines):
    seg.e(f"s_mov_b32 s{sSPIN}, 0x40000")
    seg.e(f"L_sp{name}:")
    seg.e(cmp_lines)
    seg.e(f"s_cbranch_vccz L_ok{name}")
    seg.e(f"s_sub_u32 s{sSPIN}, s{sSPIN}, 1\ns_cbranch_scc1 L_ok{name}\ns_sleep 1")
    op = {1:"buffer_load_dword",4:"buffer_load_dwordx4"}[width]
    seg.append(I(f"{op} {v(dst,width)}, v{addr}, {srd_}, 0 offen sc1", cond=True))
    seg.e("s_waitcnt vmcnt(0)")
    seg.e(f"s_branch L_sp{name}")
    seg.e(f"L_ok{name}:")
def all4(d, non):
    return f"v_xor_b32 v{d}, {non}, v{d}\nv_xor_b32 v{d+1}, {non}, v{d+1}\nv_xor_b32 v{d+2}, {non}, v{d+2}\nv_xor_b32 v{d+3}, {non}, v{d+3}\nv_or3_b32 v{d}, v{d}, v{d+1}, v{d+2}\nv_or_b32 v{d}, v{d}, v{d+3}\nv_cmp_ne_u32 vcc, 0, v{d}"
def publish(seg, name, soff_reg, t):
    seg.e(f"s_cmp_lg_u32 s{sWAVE}, 0\ns_cbranch_scc1 L_fl{name}")
    seg.e(f"s_mov_b64 exec, 1\nv_mov_b32 v{t}, s{sNON}\nv_mov_b32 v{t+1}, 0")
    seg.append(I(f"buffer_store_dword v{t}, v{t+1}, {SWS}, s{soff_reg} offen sc1", cond=True))
    seg.e(f"s_mov_b64 exec, -1\nL_fl{name}:")

def wsbase(g, p, soff):
    g.e(f"s_add_u32 s{p}, s24, s{soff}\ns_addc_u32 s{p+1}, s25, 0")

def attn_addr_setup():
    g = Seg()
    T0, T1, T2, T3 = 44, 45, 47, vSCL
    sTA, sTB, sTC = 98, 99, 100
    g.e(f"""
    s_lshl_b32 s{sHD}, s{sXCD}, 2
    s_lshr_b32 s{sTA}, s{sLOC}, 3
    s_add_u32 s{sHD}, s{sHD}, s{sTA}
    s_and_b32 s{sQB}, s{sLOC}, 7
    s_and_b32 s{sKH}, s{sWAVE}, 1
    s_lshr_b32 s{sTA}, s{sHD}, 1
    s_mul_i32 s{sTA}, s{sTA}, 5
    s_and_b32 s{sTB}, s{sHD}, 1
    s_mul_i32 s{sTC}, s{sTB}, 3
    s_add_u32 s{sTC}, s{sTC}, s{sTA}
    s_lshl_b32 s{sTC}, s{sTC}, 15
    s_add_u32 s{sTA}, s{sTA}, 2
    s_lshl_b32 s{sTA}, s{sTA}, 15
    s_lshl_b32 s{sTB}, s{sTB}, 3
    s_add_u32 s{sTB}, s{sTB}, s{sTA}
    s_mul_i32 s{sTA}, s{sHD}, {5*16384}
    v_lshrrev_b32 v{T0}, 5, v{vLANE}
    v_and_b32 v{T1}, 31, v{vLANE}
    v_lshlrev_b32 v{T2}, 4, v{T1}
    v_lshl_add_u32 v{vK1}, v{T0}, 15, v{T2}
    v_add_u32 v{vK1}, s{sTC}, v{vK1}
    v_add_u32 v{T2}, s{sTB}, v{T2}
    v_cmp_eq_u32 vcc, 0, v{T0}
    v_mov_b32 v{T3}, {WS_C-WS_K}
    v_mov_b32 v{vQ2}, {WS_C-WS_Q+16}
    v_cndmask_b32 v{vK2}, v{T3}, v{T2}, vcc
    v_cndmask_b32 v{vQ2}, v{vQ2}, v{T2}, vcc
    v_lshrrev_b32 v{T2}, 2, v{T1}
    v_lshlrev_b32 v{T2}, 14, v{T2}
    v_add_u32 v{T2}, s{sTA}, v{T2}
    v_and_b32 v{T3}, 3, v{T1}
    v_lshlrev_b32 v{T3}, 4, v{T3}
    v_lshl_add_u32 v{T3}, v{T0}, 6, v{T3}
    v_add_u32 v{T2}, v{T2}, v{T3}
    v_mov_b32 v{T3}, {WS_C-WS_V+16}
    v_cmp_gt_u32 vcc, 20, v{T1}
    s_lshl_b32 s{sTA}, s{sKH}, 14
    s_add_u32 s{sTB}, s{sTA}, {WS_K+4096}
    s_lshr_b32 s{sTA}, s{sTA}, 1
    v_cndmask_b32 v{T2}, v{T3}, v{T2}, vcc
    v_mov_b32 v{T3}, {WS_C-WS_V}
    v_cmp_eq_u32 vcc, 20, v{T1}
    """)
    wsbase(g, pK, sTB)
    g.e(f"""
    v_cndmask_b32 v{vVL}, v{T2}, v{T3}, vcc
    s_add_u32 s{sTB}, s{sTA}, {WS_V+4096}
    """)
    wsbase(g, pV, sTB)
    g.e(f"""
    s_lshl_b32 s{sTA}, s{sQB}, 1
    s_lshr_b32 s{sTB}, s{sWAVE}, 1
    s_add_u32 s{sTA}, s{sTA}, s{sTB}
    s_lshl_b32 s{sTA}, s{sTA}, 11
    s_lshl_b32 s{sTB}, s{sKH}, 10
    s_add_u32 s{sTC}, s{sTA}, s{sTB}
    """)
    wsbase(g, pQ, sTC)
    g.e(f"""
    s_xor_b32 s{sQHI}, s{sTC}, 1024
    s_mul_i32 s{sTB}, s{sHD}, {3*32768}
    s_add_u32 s{sOST}, s{sTC}, s{sTB}
    s_add_u32 s{sOST}, s{sOST}, {WS_O}
    """)
    wsbase(g, pTW, sQHI)
    g2 = Seg()
    g2.e(f"""
    s_lshr_b32 s{sTA}, s{sXCD}, 1
    s_lshl_b32 s{sTA}, s{sTA}, 3
    s_add_u32 s{sRB}, s{sTA}, s{sQB}
    s_and_b32 s{sTA}, s{sXCD}, 1
    s_lshl_b32 s{sTA}, s{sTA}, 2
    s_lshr_b32 s{sTB}, s{sLOC}, 3
    s_add_u32 s{sCB}, s{sTA}, s{sTB}
    v_lshlrev_b32 v{T2}, 4, v{T1}
    v_lshl_add_u32 v{vOSA}, v{T0}, 15, v{T2}
    v_lshlrev_b32 v{vLIN}, 4, v{vLANE}
    v_lshrrev_b32 v{T2}, 4, v{vLANE}
    v_and_b32 v{T3}, 15, v{vLANE}
    v_lshlrev_b32 v{T3}, 4, v{T3}
    v_lshl_add_u32 v{vO3}, v{T2}, 15, v{T3}
    s_mul_i32 s{sTA}, s{sWAVE}, {LW}
    v_add_u32 v{vRW}, s{sTA}, v{vLIN}
    s_xor_b32 s{sTB}, s{sWAVE}, 1
    s_mul_i32 s{sTA}, s{sTB}, {LW}
    v_add_u32 v{vRR}, s{sTA}, v{vLIN}
    v_add_u32 v{vFH}, {F_H-F_QKV}, v{vPA}
    s_lshl_b32 s{sTA}, s{sRB}, 10
    s_mul_i32 s{sTB}, s{sWAVE}, {24*32768}
    s_add_u32 s{sOP}, s{sTA}, s{sTB}
    s_add_u32 s{sOP}, s{sOP}, {WS_O}
    s_add_u32 s{sOS2}, s{sOST}, 65536
    s_mov_b32 s{sSAFE}, 0
    """)
    for u in range(4):
        g2.e(f"""
        s_add_u32 s{sTA}, s{sWAVE}, {u+1}
        s_and_b32 s{sTA}, s{sTA}, 3
        s_mul_i32 s{sTB}, s{sTA}, 49152
        v_add_u32 v{vH3+u}, s{sTB}, v{vLIN}
        """)
    g3 = Seg()
    g3.e(f"""
    s_mul_i32 s{sLW}, s{sWAVE}, {LW}
    s_mul_i32 s{sTA}, s{sCB}, {72*5*1024}
    s_mul_i32 s{sTB}, s{sWAVE}, {12*5*1024}
    s_add_u32 s{sWP}, s{sTA}, s{sTB}
    s_add_u32 s{sWP}, s{sWP}, {WS_W}
    s_mul_i32 s{sTB}, s{sWAVE}, {6*5*1024}
    s_add_u32 s{sWP2}, s{sTA}, s{sTB}
    s_add_u32 s{sWP2}, s{sWP2}, {WS_W + 48*5*1024}
    s_mul_i32 s{sTA}, s{sRB}, {4*48*1024}
    s_mul_i32 s{sTB}, s{sWAVE}, {12*1024}
    s_add_u32 s{sHP}, s{sTA}, s{sTB}
    s_add_u32 s{sHP}, s{sHP}, {WS_H}
    s_add_u32 s{sFL}, s{sFLQ}, {F_H-F_QKV}
    """)
    for u in range(4):
        g3.e(f"""
        s_add_u32 s{sTA}, s{sWAVE}, {u+1}
        s_and_b32 s{sTA}, s{sTA}, 3
        s_lshl_b32 s{sTA}, s{sTA}, 8
        s_add_u32 s{sOPU+u}, s{sOP}, s{sTA}
        """)
    return g, g2, g3

def kv_set(t): return aKV + 14*(t % 4)
def k_loads(t):
    b = kv_set(t); off = (t % 16)*512 - 4096
    pre = list(Seg().e(f"s_add_u32 s{pK}, s{pK}, 8192\ns_addc_u32 s{pK+1}, s{pK+1}, 0")) if t == 16 else []
    return [pre + [I(f"global_load_dwordx4 {a(b,4)}, v{vK1}, {sp(pK)} offset:{off} sc1", tag=("k",t,1))],
            [I(f"global_load_dwordx2 {a(b+4,2)}, v{vK2}, {sp(pK)} offset:{off} sc1", tag=("k",t,2))]]
def flat(l): return [x for y in l for x in y]
def v_loads(t):
    b = kv_set(t) + 6; off = t*256 - 4096
    return [I(f"global_load_dwordx4 {a(b,4)}, v{vVL}, {sp(pV)} offset:{off} sc1", tag=("v",t,0)),
            I(f"global_load_dwordx4 {a(b+4,4)}, v{vVL}, {sp(pV)} offset:{off+128} sc1", tag=("v",t,1))]
def q_loads():
    out = []
    for u in range(4):
        b = aQ + 6*u; p = pQ if u < 2 else pTW; off = (u % 2)*512
        out.append(I(f"global_load_dwordx4 {a(b,4)}, v{vK1}, {sp(p)} offset:{off} sc1", tag=("q",u,1)))
        out.append(I(f"global_load_dwordx2 {a(b+4,2)}, v{vQ2}, {sp(p)} offset:{off} sc1", tag=("q",u,2)))
    return out

SPLIT = opt("split", 296)
XRD = opt("xrd", 14)
def base_gaps(cls, lo, hi):
    gaps = [Gap(p1_mfma(n, cls)) if lo <= n < hi else None for n in range(400)]
    for n in range(lo, hi):
        if n in BAR: gaps[n].sec[0] += ([W(vm=[dma_tag(BAR[n][-1])])] if BAR[n] else []) + [I("s_barrier")]
        if n % 4 == 3 and n + 1 < 400: gaps[n].sec[0].append(W(lg=("tr", min(n+4, 399), 1)))
        gaps[n].sec[1] += tr_reads(n + DIST)
        for g_, ks, us, b in XREAD:
            if g_ == n:
                for k, u in enumerate(us): gaps[n].sec[1] += frag_read(2, ks, u, aXF[b] + 4*k, ("xtr", ks, u))
            if g_ + opt("xlat", 4) == n: gaps[n].ext += [W(lg=("xtr", ks, us[1], 1)), colsum(v(aD[2][us[0]], 4), v(aXF[b], 8))]
        for r in TOG[n]: gaps[n].sec[2].append(I(f"v_xor_b32 v{r}, 0x10000, v{r}"))
        p, ks, u = ORDER[n]
        if ks % 4 == 0 and n % 2 == 0 and not (p == 2 and (ks == 36 or (ks >= 40 - 4*NTAIL and u == 1))):
            d = aD[p][(u//2, 0, u)[p]]
            at = n + 1 if ks < 36 else (n - 1 if n % 4 == 0 else n - 2)
            if "--x_nocs" not in sys.argv: gaps[at].ext.append(colsum(av(p, d, 4), a(aWF + 4*(n % NWF), 8)))
    if lo == 0:
        for b in range(1, 10):
            n = 16*b - XRD; xr = x_reads(b)
            if not ("--x_nox" in sys.argv and b >= 3): gaps[n].sec[0].append(W(vm=("x", b, 3)))
            XO = opt("xord", 1)
            if XO == 0:
                for k in range(4): gaps[n+k].sec[1] += xr[2*k:2*k+2]
            else:
                gaps[n].sec[1] += xr[4:6]; gaps[n+1].sec[1] += xr[6:8]
                for k in range(4): gaps[n+2+2*k].sec[1].append(xr[k])
            gaps[16*b - opt("dotat", 9)].end += dots(b)[:(1 if "--x_nodots" in sys.argv else 3 if "--x_nodot2" in sys.argv else 99)]
    dm = Stream(gaps, lo)
    EV = opt("dmaev", 3); EVH = opt("dmaevh", 3); LAND = opt("land", 22); EV0 = opt("ev0", 2)
    L0 = opt("l0", 36); L1 = opt("l1", 64)
    for sg in range(3, 25):
        prev = [FREE[x] + 1 for x in range(sg) if WSLOT[x] == WSLOT[sg]] + [16*b for b in range(10) if XSLOT[b] == WSLOT[sg]]
        g0 = max([0, BLAND[sg] - (L0 if sg < 10 else opt("l1a", L1) if sg < opt("holds", 18) else L1)] + prev + ([opt("hold", 0)] if sg >= opt("holds", 18) else []))
        if sg < 10 and lo == 0 and "--x_nox" not in sys.argv: dm.put(x_dma(sg), max(16*sg - XRD - L0, 16*(sg - 3)), 16*sg - XRD - LAND, every=EV0)
        if not (lo <= g0 < hi): continue
        dm.put(dma_stage(sg), g0, min(BLAND[sg] - LAND, hi - 2), every=(EV0 if sg < 10 else EVH if sg < 15 else opt("evc", EV) if opt("holds", 18) <= sg < opt("holds", 18) + 4 else EV))
        if "--dmalog" in sys.argv and cls == 'Q': print("stage", sg, "from", g0, "ends", dm.k, "needed", BLAND[sg], file=sys.stderr)
        if sg == opt("jobsg", 19): JD[1] = dm.k; dm.put(job_dma(), 0, hi - 2, every=1); JD[0] = dm.k
        if sg == 9: JD[2] = dm.k
    assert dm.k < hi
    return gaps
JD = [0, 0, 0]

def ren(i): return i
def phase1a(cls):
    g = Seg()
    if cls == 'V': g.e("L_clsV:")
    gaps = base_gaps(cls, 0, SPLIT)
    exchange(gaps, 0, cls, 146, FIRST[10], vTMP + 4, [opt("c0at", 157) + k for k in range(4)])
    exchange(gaps, 1, cls, 233, XB1, 92, [XB1 + 3, XB1 + 4])
    A0, A1, A2, A3 = vNM, vR, vACC + 2, vACC + 3
    post = Seg()
    post.e(f"""
    v_accvgpr_read_b32 v{A0}, a{aRS}
    v_accvgpr_read_b32 v{A1}, a{aRS+1}
    v_add_f32 v{vACC}, v{vACC}, v{vACC+1}
    v_add_f32 v{A2}, v{A2}, v{A3}
    v_add_f32 v{A0}, v{A0}, v{A1}
    v_add_f32 v{A2}, v{A2}, v{vACC}
    v_mov_b32 v{A1}, v{A0}
    v_mov_b32 v{A3}, v{A2}
    v_cmp_gt_u32 vcc, 32, v{vLANE}
    v_permlane32_swap_b32 v{A0}, v{A1}
    v_permlane32_swap_b32 v{A2}, v{A3}
    v_add_f32 v{A0}, v{A0}, v{A1}
    v_add_f32 v{A2}, v{A2}, v{A3}
    v_mul_f32 v{A0}, {f2u(-1.0/640.0)}, v{A0}
    v_mul_f32 v{A2}, {f2u(1.0/640.0)}, v{A2}
    v_fma_f32 v{A2}, -v{A0}, v{A0}, v{A2}
    v_cvt_pk_bf16_f32 v{A0}, v{A0}, v{A0}
    v_max_f32 v{A2}, 0, v{A2}
    v_cndmask_b32 v{A0}, 0, v{A0}, vcc
    v_cvt_pk_bf16_f32 v{A2}, v{A2}, v{A2}
    v_accvgpr_write_b32 a{aNM}, v{A0}
    v_accvgpr_write_b32 a{aNM+1}, v{A0}
    v_accvgpr_write_b32 a{aNM+2}, v{A0}
    v_accvgpr_write_b32 a{aNM+3}, v{A0}
    v_and_b32 v{A2}, 0xffff0000, v{A2}
    v_add_f32 v{A2}, {f2u(1e-5)}, v{A2}
    v_cvt_pk_bf16_f32 v{A2}, v{A2}, v{A2}
    v_lshlrev_b32 v{A2}, 16, v{A2}
    v_sqrt_f32 v{A2}, v{A2}
    v_mov_b32 v{vZERO}, 0
    v_cvt_pk_bf16_f32 v{A2}, v{A2}, v{A2}
    v_lshlrev_b32 v{vS}, 16, v{A2}
    v_rcp_f32 v{vR}, v{vS}
    v_mul_f32 v{vSG}, {f2u(-LOG2E)}, v{vR}
    """)
    if cls != 'V':
        post.e(f"v_mul_f32 v{vSCL}, s{sSC}, v{vR}")
    else:
        post.e(f"""
        v_mov_b32 v{vSCL+2}, {L_X}
        v_add_u32 v{vSCL+2}, s{sWB}, v{vSCL+2}
        v_and_b32 v{vSCL}, 31, v{vLANE}
        v_lshl_add_u32 v{vSCL}, v{vSCL}, 2, v{vSCL+2}
        v_lshrrev_b32 v{vSCL+1}, 5, v{vLANE}
        v_lshl_add_u32 v{vSCL+1}, v{vSCL+1}, 4, v{vSCL+2}
        ds_write_b32 v{vSCL}, v{vR}
        """)
        for k in range(4):
            post.append(I(f"ds_read_b128 {v(vR16+4*k,4)}, v{vSCL+1} offset:{32*k}", tag=("r16", k)))
    post.append(I(f"buffer_load_dword v{vNON}, v{vZERO}, {SDBG}, 0 offen sc1", tag="non"))
    Stream.stores.clear()
    if opt("pf", 12) & 8:
        for k_ in range(5):
            p2 = masked_loads([(3, I(f"global_load_dword a210, v{vTG}, {sp(p_)}", tag="pf")) for p_ in (sP+8, sP+10)])
            if k_ < 4: p2.e(f"v_add_u32 v{vTG}, {128*3072}, v{vTG}")
            Stream(gaps).block(p2, opt("pf2at", 33) + opt("pf2st", 16)*k_)
    for k_ in range(len(TCH)):
        if TCH[k_][2] >= 0: Stream(gaps).block(touch(k_), TCH[k_][2])
    jb = Stream(gaps)
    if LATE:
        lt = clone(LATE)
    if opt("pf", 12) & 4:
        def pick(o, c):
            o.e(f"s_cmp_eq_u32 s{sWAVE}, 1\ns_cselect_b64 s[100:101], {sp(c[1])}, {sp(c[0])}")
            for w_ in (2, 3): o.e(f"s_cmp_eq_u32 s{sWAVE}, {w_}\ns_cselect_b64 s[100:101], {sp(c[w_])}, s[100:101]")
        W0 = opt("warm0", 1); WS_ = opt("warmst", 10)
        steps = []
        o = Seg(); pick(o, [sP+8, sP+10, sP+2, sP]); o.e(f"s_lshr_b32 s99, s{sWAVE}, 1\ns_lshl_b32 s99, s99, 21")
        o.append(I("s_load_dword s58, s[100:101], s99", tag="warm")); steps.append(o)
        o = Seg(); pick(o, [sP+12, sP+4, sP+16, sP+14]); o.append(I("s_load_dword s58, s[100:101], 0", tag="warm")); steps.append(o)
        for k_ in range(3):
            o = Seg(); o.e(f"s_add_u32 s99, s{sWAVE}, {4*k_}\ns_min_u32 s99, s99, 10\ns_lshl_b32 s99, s99, 21")
            o.append(I(f"s_load_dword s58, {sp(sP+18)}, s99", tag="warm")); steps.append(o)
        o = Seg(); o.e("s_mov_b32 s99, 0x200000"); o.append(I(f"s_load_dword s58, {sp(sP+14)}, s99", tag="warm")); steps.append(o)
    else: steps = []; W0 = WS_ = 0
    jp = job_params(); cuts = [0, 23, 44, 65, 86, 107, len(jp)]
    if LATE:
        for k_ in range(min(2, len(steps))): jb.put(steps[k_][:-1], 0, 130); jb.put(steps[k_][-1:], W0 + WS_*k_, 130)
        jb.put(lt, 0, 88)
        jb.block(nonce(cls), jb.k + 1); jb.k += 1; jb.last = 0
        print("late set-up ends", jb.k, file=sys.stderr)
    for k_ in range(6):
        if steps and not (LATE and k_ < 2): jb.put(steps[k_][:-1], 0, 130); jb.put(steps[k_][-1:], W0 + WS_*k_, 130)
        jb.put(jp[cuts[k_]:cuts[k_+1]], 0, 130)
    assert jb.k < JD[1], (jb.k, JD)
    as1, as2, as3 = attn_addr_setup()
    jb.put(as1, TCH[-1][2] + 1, 134); jb.put(as2, 0, 134)
    print("set-up a ends", jb.k, "job dma", JD, file=sys.stderr)
    jb.put(job_par(), opt("pf2at", 33) + 4*opt("pf2st", 16) + 1, 159)
    if JD[0] < 100:
        j1, j2 = job_process()
        jb.put(j1, JD[0] + opt("joblat", 40), 134); k = jb.k
        jb.put(j2, k + 4, 134, stsp=opt("jstsp", 4))
    jb.put(as3, JD[2] + 1, 159, free=True)
    ch = Stream(gaps)
    ch.put([I(f"buffer_store_dwordx4 v[80:83], v{vCST}, {SWS}, 0 offen sc1", tag="cst")], opt("cstat", 100), 130)
    ch.put([I(f"v_accvgpr_write_b32 a{aD[1][0]+k}, 0") for k in range(4)], 0, 150)
    ch.put(post[:24], 144 - opt("dotat", 9) + 2, 154)
    ch.put(post[24:], 0, 161)
    e0 = []
    if cls == 'V':
        ch.put([W(lg=("r16", 3))], 161, 200)
        for u in range(4): e0 += epi_v(vA+16*u, u % 2, sEB + u//2, vEP, "qkv")
    else:
        for u in range(4): e0 += epi_qk(vA+16*u, u % 2, sEB + u//2, vSCL, "qkv")
    bg = opt("pub", 256)
    if bg in BAR: gaps[bg].sec[0][:0] = [W(vm=["qkv", "non", "cst"])]
    else: gaps[bg].sec[0][:0] = [W(vm=["qkv", "non", "cst"]), I("s_barrier")]
    pb = Seg()
    spin(pb, "N" + cls, vZERO, vNON, 1, SDBG, f"v_cmp_eq_u32 vcc, 0, v{vNON}")
    pb.e(f"v_readfirstlane_b32 s{sNON}, v{vNON}")
    publish(pb, "Q" + cls, sFLQ, vLN+2)
    Stream(gaps, bg).block(pb, bg)
    e1 = epi_g(vB, 0, sHB, "h1", ud=16)
    STSP = opt("stsp", 10); E0END = bg - opt("stlat", 16)
    q1 = list(e1)
    st = Stream(gaps, 161)
    for n, (ar, so) in enumerate(e0):
        ch.put(ar, 161, 228)
        if "--x_nost" in sys.argv and n < 7: continue
        if "--x_half" in sys.argv and n % 2 == 0: continue
        if "--x_same" in sys.argv: so[0] = I(f"s_add_u32 {so[0].text.split()[1]} s{sEB}, 0")
        if "--x_plain" in sys.argv: so[1] = I(so[1].text.replace(" sc1", ""), tag=so[1].tag)
        st.put(so, max(ch.k + 1, opt("st0", 164) + n*STSP), E0END)
    print("q/k/v stores end", st.k, file=sys.stderr)
    ch.put([I(f"v_mov_b32 v{d+k}, 0") for d in aD[2] for k in range(4)], 0, 239)
    ch.put([ren(i) for i in q1], XB1 + 6, SPLIT - 2)
    print("job ends", jb.k, "epilogue ends", ch.k, file=sys.stderr)
    report("pass0 " + cls, gaps, 0, 160); report("pass1 " + cls, gaps, 160, 240); report("pass2a " + cls, gaps, 240, SPLIT)
    for n in range(SPLIT):
        if n in XS: stamp(g, 18 + XS.index(n))
        if n == 160: stamp(g, 4)
        if n == 240: stamp(g, 5)
        g += gaps[n].flat()
    if cls != 'V': g.e("s_branch L_p1c")
    return g

def o_clear(r):
    return [I(f"buffer_store_dwordx4 {v(r,4)}, v{vOSA}, {SWS}, s{sOST} offen sc1", tag="h1"),
            I(f"buffer_store_dwordx4 {v(r,4)}, v{vOSA}, {SWS}, s{sOST} offen offset:512 sc1", tag="h1"),
            I(f"buffer_store_dwordx4 {v(r,4)}, v{vLIN}, {SWS}, s{sOS2} offen sc1", tag="h1")]
def phase1c():
    g = Seg()
    g.e("L_p1c:")
    gaps = base_gaps('Q', SPLIT, 400)
    C2 = opt("c2at", XB2 + 3)
    exchange(gaps, 2, 'Q', XREAD[-1][0] + opt("xlat", 4) + 2, XB2, 92, [C2, C2 + 1, C2 + opt("c2d", 8), C2 + opt("c2d", 8) + 1])
    Stream.stores.clear()
    ch = Stream(gaps, SPLIT)
    POLL = opt("poll", 326); CHK = opt("chk", 342)
    Stream(gaps, POLL).put([I(f"buffer_load_dwordx4 {v(44,4)}, v{vPA}, {SWS}, 0 offen sc1", tag="pollq")], POLL, POLL+1)
    ck = Seg(); ck.append(W(vm="pollq"))
    spin(ck, "Q", vPA, 44, 4, SWS, all4(44, f"s{sNON}"))
    stamp(ck, 7)
    Stream(gaps, CHK).block(ck, CHK)
    first = flat(k_loads(0)) + q_loads() + v_loads(0) + flat(k_loads(1)) + v_loads(1) + flat(k_loads(2)) + v_loads(2)
    Stream(gaps, CHK + 1).put(first, CHK + 1, 399, every=opt("ldev", 2))
    if opt("cpf", 1):
        cp = Seg()
        cp.e(f"""
        s_lshl_b32 s98, s{sLOC}, 2
        s_add_u32 s98, s98, s{sWAVE}
        s_lshl_b32 s98, s98, 10
        s_min_u32 s98, s98, L_codeend-L_p1c-1024
        v_lshlrev_b32 v{vLN}, 4, v{vLANE}
        v_add_u32 v{vLN}, s98, v{vLN}
        """)
        cp.append(I(f"global_load_dwordx4 a[250:253], v{vLN}, s[0:1]", tag="pf"))
        ch.put(cp, 0, CHK - 1)
    JATT = opt("jatt", 1)
    if JATT: ch.put([I(f"v_mov_b32 v{vJA}, v{vJST}"), I(f"v_mov_b32 v{vJA+1}, v{vJTR}"), I(f"v_mov_b32 v{vJA+2}, v{vH}")], 345, 364)
    if JD[0] >= 100 and not JATT:
        j1, j2 = job_process()
        ch.put(j1, 0, CHK - 1); ch.put(j2, ch.k + 4, 360, stsp=opt("jstsp", 4))
    if opt("oclr", 1) and not JATT:
        ch.put([I(f"v_mov_b32 v{80+k}, -1") for k in range(4)] + o_clear(80), 0, 364, stsp=opt("jstsp", 4))
        print("clears end", ch.k, file=sys.stderr)
    ch.put(epi_g(vC, 0, sHB+1, "h1"), max(400 - 8*NTAIL + 1, C2 + 3), 399)
    report("pass2", gaps, SPLIT, 400)
    for n in range(SPLIT, 400):
        if n in XS: stamp(g, 18 + XS.index(n))
        g += gaps[n].flat()
    stamp(g, 6)
    if STAMPS: g.e(f"v_accvgpr_mov_b32 a{aSTAMP}, a{aST[0]}"); aST[0] = aSTAMP
    return g

def s_mfma(n):
    t, u = n // 4, n % 4
    S = v(16*(n % 2), 16); k = kv_set(t); q = aQ + 6*u
    return (I(f"v_mfma_f32_32x32x16_bf16 {S}, {a(k,4)}, {a(q,4)}, 0"),
            I(f"v_mfma_f32_32x32x8_bf16 {S}, {a(k+4,2)}, {a(q+4,2)}, {S}"))
def pv_mfma(n):
    t, u = n // 4, n % 4
    O = a(aO + 16*u, 16); vv = kv_set(t) + 6; P = 32 + 8*(n % 2)
    return (I(f"v_mfma_f32_32x32x16_bf16 {O}, {a(vv,4)}, {v(P,4)}, {'0' if t == 0 else O}"),
            I(f"v_mfma_f32_32x32x16_bf16 {O}, {a(vv+4,4)}, {v(P+4,4)}, {O}"))
def softmax_valu(n):
    S = 16*(n % 2); P = 32 + 8*(n % 2)
    E = lambda i: I(f"v_exp_f32 v{S+i}, v{S+i}")
    C = lambda k: I(f"v_cvt_pk_bf16_f32 v{P+k}, v{S+2*k}, v{S+2*k+1}")
    return [E(0),E(1),E(2),C(0),E(3),E(4), C(1),E(5),E(6),C(2),E(7),E(8), C(3),E(9),E(10),C(4),E(11),E(12), C(5),E(13),E(14),E(15),C(6),C(7)]

def p3_frags():
    fr = []
    for ks in range(12):
        fr += [("w", ks, t) for t in range(5)] + [("h", ks, u) for u in range(4)]
    for ks in range(12, 18):
        fr += [("w", ks, t) for t in range(5)] + [("o", ks, u) for u in range(4)]
    return fr
FR = p3_frags()
PRE_SLOTS = [a(88+4*i,4) for i in range(27 if STAMPS else 28)] + [v(64+4*i,4) for i in range(48)]
LDS_FR = [f for f in FR if f[0] == "w"][-NLPF:]
vO6 = [vO3, vK1, vK2, vQ2, vVL, vOSA]
class Loader:
    def __init__(self): self.cur = {pTW: None, pTH: None}
    def base(self, p, sreg, hi):
        if self.cur[p] == (sreg, hi): return []
        self.cur[p] = (sreg, hi)
        o = Seg(); o.e(f"s_add_u32 s{p}, s{sreg}, {hi+4096}\ns_add_u32 s{p}, s24, s{p}\ns_addc_u32 s{p+1}, s25, 0"); return list(o)
    def addr(self, f):
        kind, ks, x = f
        if kind == "w":
            off = (ks*5 + x)*1024 if ks < 12 else ((ks-12)*5 + x)*1024
            return pTW, (sWP if ks < 12 else sWP2), off // 8192 * 8192, off % 8192 - 4096, vLIN
        if kind == "h":
            return pTH, sHP, ks // 8 * 8192, ks % 8*1024 - 4096, vH3 + x
        return pTH, sOPU + x, 0, -4096, vO6[ks-12]
    def emit(self, f, reg):
        p, sreg, hi, lo, vr = self.addr(f)
        return self.base(p, sreg, hi) + [I(f"global_load_dwordx4 {reg}, v{vr}, {sp(p)} offset:{lo} sc1", tag=f)]
    def emit_lds(self, f, idx):
        kind, ks, x = f
        off = (ks*5 + x)*1024 if ks < 12 else ((ks-12)*5 + x)*1024
        sreg = sWP if ks < 12 else sWP2
        hi, lo = off // 4096 * 4096, off % 4096
        out = self.base(pTW, sreg, hi - 4096)
        m0 = L_PF + idx*1024 - lo
        if self.cur.get("m0") != m0:
            self.cur["m0"] = m0; out.append(I(f"s_add_u32 m0, s{sLW}, {m0}"))
        return out + [I(f"global_load_lds_dwordx4 v{vLIN}, {sp(pTW)} offset:{lo} sc1", tag=("L",)+f)]
vFT = 64

def attention(regmap, loader):
    g = Seg()
    eg = epi_g(vC, 1, sHB+1, "h1")
    if not opt("oclr", 1):
        g.e("v_mov_b32 v0, -1\nv_mov_b32 v1, -1\nv_mov_b32 v2, -1\nv_mov_b32 v3, -1")
        oc = o_clear(0)
        for k_ in range(3): g += eg[8*k_:8*k_+8]; g.append(oc[k_])
        g += eg[24:]
    else: g += eg
    stamp(g, 8)
    g.e("L_att1:")
    g.append(W(vm=[("q",3,2), ("k",0,2)]))
    m = s_mfma(0); g.append(m[0]); g.append(m[1])
    free = [[] for _ in range(128*4)]
    for t in range(32):
        if t + 3 < 32:
            kl = k_loads(t+3); vl = v_loads(t+3)
            if len(kl[0]) > 1: free[16*t - 2].append(kl[0][0]); free[16*t - 1].append(kl[0][1])
            for i in range(2): free[16*t + i].append(kl[i][-1])
            for i in range(2): free[16*t + 4 + i].append(vl[i])
        if t + 1 < 32: free[16*t + 11].append(W(vm=[("k",t+1,2), ("v",t+1,1)]))
    free[3].append(W(vm=("v",0,1)))
    pub = Seg(); pub.append(W(vm="h1")); pub.e("s_barrier")
    publish(pub, "H", sFL, vFT)
    HPUB = 1
    if opt("jatt", 1):
        j1, j2 = job_process(96, vJA, vJA+1)
        slots = [16*t + i for t in range(8) for i in (2,3,6,7,8,9,10,12,13,14,15)]
        for k_ in range(4): free[slots[k_]].append(I(f"v_mov_b32 v{112+k_}, -1"))
        free[slots[0]].append(j1[0])
        for k_, i_ in enumerate(j1[1:]): free[slots[k_]].append(i_)
        sts = HST + o_clear(112) + list(j2[1:]); at = opt("jat0", 6); JS = opt("jats", 5)
        for k_, i_ in enumerate(sts):
            sl = next(x for x in slots if x >= at)
            if i_ is j2[1]: free[sl].append(j2[0])
            free[sl].append(i_); at = sl + JS
        HPUB = opt("hpub", at // 16 + 2)
        print("job stores end at slot", sl, "H flag at tile", HPUB, file=sys.stderr)
    free[16*HPUB + 7] += pub
    HP = opt("hpoll", HPUB + 5)
    free[16*HP + 7].append(I(f"buffer_load_dwordx4 {v(vFT+4,4)}, v{vFH}, {SWS}, 0 offen sc1", tag="pollh"))
    chk = Seg(); chk.append(W(vm="pollh"))
    spin(chk, "H", vFH, vFT+4, 4, SWS, all4(vFT+4, f"s{sNON}"))
    free[16*(HP+2) + 7] += chk
    pos = []
    for t in range(HP+3, 32):
        pos += [16*t + i for i in (2,3,6,7,8,9,10,12,13,14,15) if not (t == 12 and i >= 13)]
    q = []
    for i, f in enumerate(LDS_FR): q.append(loader.emit_lds(f, i))
    for i, reg in enumerate(PRE_SLOTS):
        regmap[FR[i]] = reg
        q.append(loader.emit(FR[i], reg))
    step = len(pos) / len(q)
    assert step >= 1.0
    for i, ins in enumerate(q):
        k = int(i*step)
        sal = ins[:-1]
        if sal and k > 0 and int((i-1)*step) < k - 1 and i > 0:
            free[pos[k-1]].append(sal[0]); sal = sal[1:]
        free[pos[k]] += sal + [ins[-1]]
    for n in range(128):
        va = softmax_valu(n)
        ms = [None]*4
        if n + 1 < 128: ms[0], ms[1] = s_mfma(n+1)
        if n >= 1: ms[2], ms[3] = pv_mfma(n-1)
        for p in range(4):
            if ms[p] is not None: g.append(ms[p])
            g += free[4*n + p]
            g += va[6*p:6*p+6]
    m = pv_mfma(127); g.append(m[0]); g.append(m[1])
    stamp(g, 9)
    if STAMPS: g.e("s_mov_b32 s47, 0")
    return g

ACC3 = [64 + 4*i for i in range(6)] + [200 + 4*i for i in range(14)]
def o_epilogue():
    e1 = Seg(); e2 = Seg(); e3 = Seg(); e4 = Seg(); e5 = Seg()
    for k in range(3): e1.append(I(f"ds_write_b128 v{vRW}, {a(aO+32+4*k,4)} offset:{k*1024}", tag=("ow", k)))
    for u in range(2):
        for k in range(12): e2.e(f"v_accvgpr_read_b32 v{12*u+k}, a{aO+16*u+k}")
    e1b = Seg()
    for k in range(3): e1b.append(I(f"ds_write_b128 v{vRW}, {a(aO+48+4*k,4)} offset:{(3+k)*1024}", tag=("ow", 3+k)))
    e3.append(W(lg=0)); e3.e("s_barrier")
    for k in (2, 5, 0, 1, 3, 4): e3.append(I(f"ds_read_b128 {v(24+4*k,4)}, v{vRR} offset:{k*1024}", tag=("red",k)))
    e4.append(W(lg=("red", 5)))
    for u in range(2):
        for k in range(8, 12): e4.e(f"v_add_f32 v{12*u+k}, v{12*u+k}, v{24+12*u+k}")
    e4.e(f"""
    v_mov_b32 v32, v8
    v_mov_b32 v34, v8
    v_mov_b32 v33, v20
    v_mov_b32 v35, v20
    """)
    e4.append(W(lg=("red", 1)))
    for k in range(4): e4.e(f"v_add_f32 v{k}, v{k}, v{24+k}")
    e4.e("v_permlane32_swap_b32 v34, v32\nv_permlane32_swap_b32 v35, v33")
    for k in range(4, 8): e4.e(f"v_add_f32 v{k}, v{k}, v{24+k}")
    e4.e("v_rcp_f32 v34, v32\nv_rcp_f32 v35, v33")
    e4.e(f"s_mov_b32 s{sTA}, {f2u(2.0**-60)}\ns_mov_b32 s{sTB}, {f2u(2.0**60)}\ns_mov_b32 s{sTC}, 0x7f000000")
    e4.e("v_min_f32 v46, v32, v33\nv_max_f32 v47, v32, v33\nv_add_f32 v44, |v0|, |v1|\nv_add_f32 v45, |v20|, |v21|")
    e4.append(W(lg=("red", 4)))
    for k in range(8): e4.e(f"v_add_f32 v{12+k}, v{12+k}, v{36+k}")
    e4.e(f"v_cmp_nge_f32 vcc, v46, s{sTA}\nv_cmp_nle_f32 s[98:99], v47, s{sTB}")
    for k in range(10): e4.e(f"v_add_f32 v44, v44, |v{2+k}|\nv_add_f32 v45, v45, |v{(22,23,12,13,14,15,16,17,18,19)[k]}|")
    for k in range(8): e4.e(f"v_mul_f32 v{24+k}, v34, v{k}")
    e4.e(f"v_add_f32 v44, v44, v45")
    for k in range(4): e4.e(f"v_cvt_pk_bf16_f32 v{24+k}, v{24+2*k}, v{24+2*k+1}")
    e4.e(f"v_cmp_nlt_f32 s[100:101], v44, s{sTC}")
    for k in range(8): e4.e(f"v_mul_f32 v{36+k}, v35, v{12+k}")
    blk1 = Seg()
    blk1.e(f"""
    s_or_b64 vcc, vcc, s[98:99]
    s_or_b64 vcc, vcc, s[100:101]
    s_cselect_b32 s{sTA}, 1, 0
    s_andn2_b32 s{sTB}, s{sTA}, s{sSAFE}
    s_lshl_b32 s{sTB}, s{sTB}, 30
    v_or_b32 v32, s{sTB}, v{vOSA}
    v_or_b32 v33, s{sTB}, v{vLIN}
    """)
    blk1.append(I(f"buffer_store_dwordx4 v[24:27], v32, {SWS}, s{sOST} offen sc1", tag="ost"))
    e4b = Seg()
    for k in range(4): e4b.e(f"v_cvt_pk_bf16_f32 v{36+k}, v{36+2*k}, v{36+2*k+1}")
    blk2 = [I(f"buffer_store_dwordx4 v[36:39], v32, {SWS}, s{sOST} offen offset:512 sc1", tag="ost")]
    e4c = Seg()
    for u in range(2):
        for k in range(4): e4c.e(f"v_mul_f32 v{(28, 40)[u]+k}, v{34+u}, v{12*u+8+k}")
    e4c.e(f"""
    v_cvt_pk_bf16_f32 v44, v28, v29
    v_cvt_pk_bf16_f32 v46, v40, v41
    v_cvt_pk_bf16_f32 v45, v30, v31
    v_cvt_pk_bf16_f32 v47, v42, v43
    v_mov_b32 v30, s{sTA}
    v_permlane32_swap_b32 v44, v46
    v_permlane32_swap_b32 v45, v47
    """)
    blk3 = [I(f"buffer_store_dwordx4 v[44:47], v33, {SWS}, s{sOS2} offen sc1", tag="ost")]
    e5.e(f"""
    s_lshl_b32 s{sTB}, s{sWAVE}, 2
    s_add_u32 s{sTB}, s{sTB}, {L_VOTE}
    v_mov_b32 v31, s{sTB}
    ds_write_b32 v31, v30
    v_mov_b32 v31, {L_VOTE}
    """)
    e4 = (e4, blk1, e4b, blk2, e4c, blk3)
    return e1, e2, e1b, e3, e4, e5

vXA = 0; vLP = 2; vRD = 3; vP3T = 6; vXD = 8; vXF = 18; vXL = 41
SLOW = []
def phase3(regmap, loader):
    g = Seg()
    gaps = [Gap(None) for _ in range(360)]
    order = [(ks, u, t) for ks in range(12) for u in range(4) for t in range(5)] + [(ks, u, t) for u in range(4) for t in range(5) for ks in range(12, 18)]
    for gp in gaps: gp.mfma = True
    S3 = lambda k=0, cap=16: Stream(gaps, k, cap=cap)
    e1, e2, e1b, e3, e4, e5 = o_epilogue()
    ECAP = opt("ecap", 16)
    ep = S3(0, ECAP)
    WSP = opt("wsp", 4)
    for i_, w_ in enumerate(list(e1) + list(e1b)): gaps[WSP*i_].sec[1].append(w_)
    k_w0 = 2*WSP; k_w1 = 5*WSP
    ep.put(e2[:12], 0, 359); k_r0 = ep.k
    ep.put(e2[12:], 0, 359); k_r1 = ep.k
    ep.put(e3[:2], k_w1 + opt("wlat", 2), 359)
    for i_ in e3[2:]: ep.put([i_], ep.k + (0 if i_ is e3[2] else 1), 359)
    ep.put(e4[0], ep.k + opt("elat", 6), 359)
    for part in e4[1:]: ep.put(part, 0, 359)
    k_st = ep.k
    st10 = Seg(); stamp(st10, 10); ep.block(st10, ep.k)
    ep.cap = 16
    ep.put(e5, ep.k + 1, 359)
    v1 = Seg(); v1.append(W(lg=0)); v1.e("s_barrier"); v1.append(I("ds_read_b128 v[28:31], v31", tag="votes"))
    ep.put(v1, ep.k + 4, 359)
    vt = Seg(); vt.append(W(lg="votes"))
    vt.e(f"""
    v_or3_b32 v28, v28, v29, v30
    v_or_b32 v28, v28, v31
    s_nop 0
    v_readfirstlane_b32 s{sTA}, v28
    s_andn2_b32 s{sTA}, s{sTA}, s{sSAFE}
    s_cbranch_scc1 L_fallback
    """)
    stamp(vt, 11)
    ep.block(vt, ep.k + 6); k_pub = ep.k
    print("O stores at", k_st, "vote at", k_pub, file=sys.stderr)
    pool = [(0, a(12,4)), (0, a(28,4)), (4, a(44,4)), (4, a(60,4))]
    pool += [(k_w0+1, a(32+4*i,4)) for i in range(3)] + [(k_r0+1, a(4*i,4)) for i in range(3)]
    pool += [(k_w1+1, a(48+4*i,4)) for i in range(3)] + [(k_r1+1, a(16+4*i,4)) for i in range(3)]
    released = set()
    def take(at, vgpr=False):
        while True:
            c = sorted(x for x in pool if not vgpr or x[1][0] == "v")
            nxt = [k for k in range(12) if k not in released and all(f in regmap for f in FR if f[1] == k)]
            if nxt and 20*nxt[0]+20 <= at: pass
            elif c and (c[0][0] <= at or not nxt or c[0][0] <= 20*nxt[0]+20):
                now = [x for x in c if x[0] <= at and x[1][0] == "a"]
                x = now[0] if now else c[0]
                pool.remove(x); return x
            ks = nxt[0]; released.add(ks)
            for f in FR:
                if f[1] == ks: pool.append((20*ks+20, regmap[f]))
    npre = len(PRE_SLOTS)
    rest = [f for f in FR[npre:] if f[0] != "o" and f not in LDS_FR]
    ld = S3()
    gpos = 1; STEP = opt("p3step", 5)
    for f in rest:
        e, r = take(gpos); gpos = max(gpos, e); regmap[f] = r
        ld.put(loader.emit(f, r), gpos, gpos + 2); gpos = ld.k + STEP
        assert ld.k + 30 < 20*f[1], (f, ld.k)
    OLEAD = opt("olead", 30); OST = opt("ostep", 4)
    OLD = 239 - OLEAD - 5*OST
    assert ld.k < OLD - 3 and k_pub < OLD - 12
    S3(k_pub + 1).put([I(f"v_add_u32 v{vO6[k]}, {k*4*32768}, v{vO3}") for k in range(1, 6)], k_pub + 1, OLD - 4)
    ofr = [("o", ks, u) for u in range(4) for ks in range(12, 18)]
    early = []
    st12 = Seg(); stamp(st12, 12); ld.block(st12, OLD - 4)
    for f in ofr:
        gpos = OLD + 30*f[2] + OST*(f[1] - 12)
        if 237 <= gpos <= 239: gpos = 240
        e, r = take(gpos, vgpr=True)
        assert e <= gpos; regmap[f] = r
        em = loader.emit(f, r)
        for k_, i_ in enumerate(em[:-1]): ld.put([i_], gpos - 3 + k_, gpos - 1)
        ld.put(em[-1:], gpos, gpos + (1 if gpos != 236 else 0))
        if ld.k < 240: early.append(f)
        assert ld.k + 20 < 240 + 30*f[2], (f, ld.k)
    assert all(f in early for f in ofr[:6])
    print("O loads end", ld.k, "early", len(early), file=sys.stderr)
    lr = S3(k_pub + 1)
    lr.put([I(f"v_add_u32 v{vLP}, s{sLW}, v{vLIN}"), W(vm=("L",)+LDS_FR[-1])], k_pub + 1, 359)
    for i, f in enumerate(LDS_FR):
        e, r = take(max(lr.k, opt("lrat", 140) + 2*i)); regmap[f] = r
        lr.put([I(f"ds_read_b128 {r}, v{vLP} offset:{L_PF + i*1024}", tag=("R",)+f)], max(e, lr.k + 1, opt("lrat", 140) + 2*i), min(20*f[1], 240) - 8)
    print("parked fragments read by", lr.k, file=sys.stderr)
    r0 = lambda f: int(regmap[f][2:].split(":")[0])
    def ocheck(u):
        q = [r0(f) for f in ofr[6*u:6*u+6]]
        return (f"v_max3_u32 v{vP3T}, v{q[0]}, v{q[1]}, v{q[2]}\nv_max3_u32 v{vP3T+1}, v{q[3]}, v{q[4]}, v{q[5]}\n"
                f"v_max_u32 v{vP3T}, v{vP3T}, v{vP3T+1}\nv_cmp_eq_u32 vcc, -1, v{vP3T}")
    def oreload(seg, fs):
        for f in fs:
            seg.e(f"s_add_u32 s98, s{sOPU+f[2]}, {(f[1]-12)*4*32768}\ns_add_u32 s98, s24, s98\ns_addc_u32 s99, s25, 0")
            seg.e(f"global_load_dwordx4 {regmap[f]}, v{vO3}, s[98:99] sc1")
    slow = Seg()
    for u in range(4):
        ck = Seg(); ck.append(W(vm=ofr[6*u+5])); ck.e(ocheck(u)); ck.e(f"s_cbranch_vccnz L_oretry{u}\nL_oback{u}:")
        n_ = 239 + 30*u
        gaps[n_-2].sec[0].append(ck[0]); gaps[n_-2].sec[2] += ck[1:3]; gaps[n_-1].sec[2] += ck[3:5]; gaps[n_].sec[2] += ck[5:]
        slow.e(f"L_oretry{u}:\ns_mov_b32 s{sSPIN}, 0x8000\nL_osp{u}:")
        if STAMPS: slow.e("s_add_u32 s47, s47, 1")
        oreload(slow, ofr[6*u:6*u+6])
        slow.e("s_waitcnt vmcnt(0)"); slow.e(ocheck(u))
        slow.e(f"s_cbranch_vccz L_ook{u}\ns_sub_u32 s{sSPIN}, s{sSPIN}, 1\ns_cbranch_scc0 L_osp{u}\nL_ook{u}:")
        if u == 0: oreload(slow, early[6:])
        slow.e(f"s_branch L_oback{u}")
    SLOW.append(slow)
    ad = Seg(); T = 38
    ad.e(f"""
    s_lshl_b32 s{sTA}, s{sRB}, 2
    s_add_u32 s{sTA}, s{sTA}, s{sWAVE}
    s_mul_i32 s{sTA}, s{sTA}, {16*1280}
    s_mul_i32 s{sTB}, s{sCB}, 160
    s_add_u32 s{sMBX}, s{sTA}, s{sTB}
    s_mov_b32 m0, s{sLW}
    v_lshrrev_b32 v{T}, 4, v{vLIN}
    """)
    for k in range(3):
        ad.e(f"""
        v_add_u32 v{T+1}, {64*k}, v{T}
        v_mul_u32_u24 v{T+2}, 6554, v{T+1}
        v_lshrrev_b32 v{T+2}, 16, v{T+2}
        v_mul_u32_u24 v{T+2}, {1280-160}, v{T+2}
        v_lshl_add_u32 v{vXL+k}, v{T+1}, 4, v{T+2}
        """)
        if k == 2: ad.e(f"v_cmp_gt_u32 vcc, 32, v{T}\nv_mov_b32 v{T+1}, {OOB}\nv_cndmask_b32 v{vXL+k}, v{T+1}, v{vXL+k}, vcc")
        if k: ad.e(f"s_add_u32 m0, s{sLW}, {1024*k}")
        ad.append(I(f"buffer_load_dwordx4 v{vXL+k}, {SX}, s{sMBX} offen lds", tag=("xres",k)))
    mark_m0(ad)
    ad.e(f"""
    v_and_b32 v{T+1}, 15, v{T}
    v_mul_u32_u24 v{T+1}, 160, v{T+1}
    v_lshrrev_b32 v{T}, 4, v{T}
    v_lshl_add_u32 v{T}, v{T}, 3, v{T+1}
    v_add_u32 v{vXA}, s{sLW}, v{T}
    """)
    for r in range(3):
        ad.e(f"""
        s_add_u32 s{sTA}, s{sWAVE}, {3-r}
        s_and_b32 s{sTA}, s{sTA}, 3
        s_mul_i32 s{sTA}, s{sTA}, {LW}
        v_add_u32 v{vRD+r}, s{sTA}, v{vLIN}
        """)
    ch = S3(k_pub + 1, opt("adcap", 16))
    ch.put(ad, opt("xat", k_pub + 1), OLD - 2, every=opt("xev", 4))
    ux = Seg(); ux.append(W(vm=("xres", 2)))
    for t in range(5): ux.append(I(f"ds_read_b64 {v(vXD+2*t,2)}, v{vXA} offset:{32*t}", tag=("xr3", t)))
    ch.put(ux, 200, 320)
    ux = Seg(); ux.append(W(lg=("xr3", 4)))
    for t in range(5):
        for h in range(2): ux.e(f"v_lshlrev_b32 v{vXF+4*t+2*h}, 16, v{vXD+2*t+h}\nv_and_b32 v{vXF+4*t+2*h+1}, 0xffff0000, v{vXD+2*t+h}")
    ch.put(ux, ch.k + 8, 320)
    wr = S3(240, 24)
    pr = {}
    for f in ofr:
        if f[2] < 3: pool.append((270 + 30*f[2], regmap[f]))
    def fin(t):
        o = Seg(); x = vXF + 4*t
        o.append(W(lg=("pr", 2, t)))
        for e in range(4): o.e(f"v_add_f32 v{x+e}, v{x+e}, v{pr[(2,t)]+e}")
        d = vXD + 2*t
        o.e(f"v_cvt_pk_bf16_f32 v{d}, v{x}, v{x+1}\nv_cvt_pk_bf16_f32 v{d+1}, v{x+2}, v{x+3}")
        o.e(f"ds_write_b64 v{vXA}, {v(d,2)} offset:{32*t}")
        return o
    ad_ = S3(240, 16); tailq = Seg()
    own = Seg()
    for t in range(5):
        for e in range(4): own.e(f"v_accvgpr_read_b32 v{vXL+3+e}, a{ACC3[15+t]+e}")
        for e in range(4): own.e(f"v_add_f32 v{vXF+4*t+e}, v{vXF+4*t+e}, v{vXL+3+e}")
    ad_.put(own, max(243, ch.k + 1), 300)
    for u in range(3):
        for t in range(5):
            gaps[240 + 30*u + 6*t + 5 + 3].sec[1].append(I(f"ds_write_b128 v{vLP}, {a(ACC3[5*u+t],4)} offset:{L_PF + (5*u+t)*1024}", tag=("pw",u,t)))
        if u == 0: continue
        k_fb = 240 + 30*u + 32 + opt("fblat", 3)
        gaps[k_fb].sec[0] += [W(lg=("pw", u, 4)), I("s_barrier")]
        rs = (0, 1) if u == 1 else (2,)
        for t in range(5):
            for j_, r in enumerate(rs):
                e, reg = take(k_fb, vgpr=True); assert e <= k_fb; pr[(r,t)] = int(reg[2:].split(":")[0])
                gaps[k_fb + len(rs)*t + j_].sec[1].append(I(f"ds_read_b128 {reg}, v{vRD+r} offset:{L_PF + (5*r+t)*1024}", tag=("pr",r,t)))
        for t in range(5):
            x = vXF + 4*t; ps = Seg()
            if u == 1:
                ps.append(W(lg=("pr", rs[-1], t)))
                for r in rs:
                    for e in range(4): ps.e(f"v_add_f32 v{x+e}, v{x+e}, v{pr[(r,t)]+e}")
                ad_.put(ps, k_fb + len(rs)*(t + 1) - 1 + opt("prlat", 4), 330 + 6*t - 2)
            elif t < 4: ad_.put(fin(t), max(330 + 6*t + 5 + 3, k_fb + t + opt("prlat", 4)), 359)
            else: tailq += fin(t)
        assert ch.k < k_fb
    print("final barrier at", k_fb, file=sys.stderr)
    def tg(f): return ("R",)+f if f in LDS_FR else f
    for m, (ks, u, t) in enumerate(order):
        b = ("h" if ks < 12 else "o", ks, u)
        w = None
        if m < 240 and m % 20 == 0:
            ws_ = [("w", ks, tt) for tt in range(5)]
            vm = [f for f in ws_ if f not in LDS_FR] + [("h", ks, uu) for uu in range(4)]
            lg = [tg(f) for f in ws_ if f in LDS_FR]
            w = W(vm=vm, lg=(lg or None))
        elif m == 240: w = W(lg=tg(LDS_FR[-1]))
        if w is not None:
            if m == 0: g.append(w)
            else: gaps[m-1].sec[2].append(w)
        acc = a(ACC3[5*u+t], 4) if m < 330 else v(vXF + 4*t, 4)
        gaps[m].mfma = I(f"v_mfma_f32_16x16x32_bf16 {acc}, {regmap[('w',ks,t)]}, {regmap[b]}, {'0' if ks == 0 else acc}")
    report("phase3", gaps, 0, 360, cap=16)
    XS3 = [int(x) for x in opt("xs3", "").split(",") if x]
    for m, gp in enumerate(gaps):
        if m in XS3: stamp(g, 18 + XS3.index(m))
        g += gp.flat()
    stamp(g, 13)
    g += tailq
    for k in range(3): g.append(I(f"ds_read_b128 {v(vXF+4*k,4)}, v{vLP} offset:{1024*k}", tag=("fin", k)))
    for k in range(3):
        g.append(W(lg=("fin", k)))
        g.e(f"buffer_store_dwordx4 {v(vXF+4*k,4)}, v{vXL+k}, {SOUT}, s{sMBX} offen" + opt("outm", " nt"))
    if STAMPS:
        g.e("s_waitcnt vmcnt(0)")
        stamp(g, 14)
        dump_stamps(g)
    g.e("L_end:\ns_endpgm")
    return g

def dump_stamps(g):
    g.e(f"""
    s_lshl_b32 s{sTA}, s2, 2
    s_add_u32 s{sTA}, s{sTA}, s{sWAVE}
    s_lshl_b32 s{sTA}, s{sTA}, 8
    s_add_u32 s{sTA}, s{sTA}, {WS_T}
    v_mbcnt_lo_u32_b32 v0, -1, 0
    v_mbcnt_hi_u32_b32 v0, -1, v0
    v_lshlrev_b32 v0, 2, v0
    v_accvgpr_read_b32 v1, a{aSTAMP}
    s_nop 1
    v_writelane_b32 v1, s0, 40
    v_writelane_b32 v1, s1, 41
    v_writelane_b32 v1, s47, 42
    s_nop 1
    buffer_store_dword v1, v0, {SWS}, s{sTA} offen
    s_waitcnt vmcnt(0)
    """)

def fallback():
    g = Seg()
    g.e("L_fallback:")
    g.e(f"s_mov_b32 s{sSAFE}, 1\ns_waitcnt vmcnt(0) lgkmcnt(0)\ns_barrier")
    wsbase(g, pTW, sQHI)
    g += q_loads()
    for u in range(4): g.e(f"v_mov_b32 v{32+u}, 0xff800000")
    g.e(f"s_sub_u32 s{pK}, s{pK}, 8192\ns_subb_u32 s{pK+1}, s{pK+1}, 0")
    g.e(f"s_sub_u32 s{pTH}, s{pK}, 4096\ns_subb_u32 s{pTH+1}, s{pK+1}, 0\ns_mov_b32 s{sTB}, 32")
    g.e("L_fbloop:")
    b = aKV
    g.e(f"""
    global_load_dwordx4 {a(b,4)}, v{vK1}, {sp(pTH)} sc1
    global_load_dwordx2 {a(b+4,2)}, v{vK2}, {sp(pTH)} sc1
    s_waitcnt vmcnt(0)
    """)
    for u in range(4):
        q = aQ + 6*u
        g.e(f"v_mfma_f32_32x32x16_bf16 v[0:15], {a(b,4)}, {a(q,4)}, 0")
        g.e(f"v_mfma_f32_32x32x8_bf16 v[0:15], {a(b+4,2)}, {a(q+4,2)}, v[0:15]")
        for k in range(8): g.e(f"v_max3_f32 v{32+u}, v{2*k}, v{2*k+1}, v{32+u}")
    g.e(f"""
    s_add_u32 s{pTH}, s{pTH}, 512
    s_addc_u32 s{pTH+1}, s{pTH+1}, 0
    s_sub_u32 s{sTB}, s{sTB}, 1
    s_cmp_lg_u32 s{sTB}, 0
    s_cbranch_scc1 L_fbloop
    """)
    for u in range(4): g.e(f"v_mov_b32 v{36+u}, v{32+u}")
    for u in range(4): g.e(f"v_permlane32_swap_b32 v{32+u}, v{36+u}")
    for u in range(4): g.e(f"v_max_f32 v{32+u}, v{32+u}, v{36+u}")
    g.e(f"ds_write_b128 v{vRW}, v[32:35]\ns_waitcnt lgkmcnt(0)\ns_barrier\nds_read_b128 v[36:39], v{vRR}\ns_waitcnt lgkmcnt(0)")
    g.e(f"v_cmp_lt_u32 vcc, 511, v{vLIN}")
    for u in range(4):
        m = 32 + u; q2 = aQ + 6*u + 4
        g.e(f"""
        v_max_f32 v{m}, v{m}, v{36+(u+2)%4}
        v_sub_f32 v{m}, 0, v{m}
        v_cvt_pk_bf16_f32 v0, v{m}, v{m}
        v_lshlrev_b32 v1, 16, v0
        v_sub_f32 v{m}, v{m}, v1
        v_cvt_pk_bf16_f32 v2, v{m}, v{m}
        v_lshlrev_b32 v3, 16, v2
        v_sub_f32 v{m}, v{m}, v3
        v_cvt_pk_bf16_f32 v4, v1, v3
        v_mov_b32 v6, 0
        v_cvt_pk_bf16_f32 v5, v{m}, v6
        v_accvgpr_read_b32 v6, a{q2}
        v_accvgpr_read_b32 v7, a{q2+1}
        v_cndmask_b32 v6, v6, v4, vcc
        v_cndmask_b32 v7, v7, v5, vcc
        v_accvgpr_write_b32 a{q2}, v6
        v_accvgpr_write_b32 a{q2+1}, v7
        """)
    for t in range(3): g += flat(k_loads(t)) + v_loads(t)
    g.e(f"v_mov_b32 v{vJA}, {OOB}\nv_mov_b32 v{vJA+1}, 0\nv_mov_b32 v{vJA+2}, {OOB}")
    for r_ in sJO: g.e(f"s_mov_b32 s{r_}, 0")
    g.e("s_waitcnt vmcnt(0)\ns_barrier\ns_branch L_att1")
    g += SLOW[0]
    g.e("L_codeend:")
    return g

HEADER = open("header.txt").read()

def mark_m0(lst):
    last = None
    for i in lst:
        if ("s","m0") in i.wr: last = i
        if i.cls == "vmem" and ("s","m0") in i.rd and last is not None and not hasattr_keep(i): i.keep = last
    return lst
def check_m0(path):
    last = None
    for i in path:
        if ("s","m0") in i.wr: last = i
        if i.cls == "vmem" and ("s","m0") in i.rd and hasattr_keep(i): assert i.keep is last, ("m0", i.text, i.keep.text, last.text)
def check_x(path):
    done = set()
    for i in path:
        if i.op == "ds_read_b128": done |= set(i.wr)
        if i.cls == "mfma" or i.isdot():
            for r in i.rd:
                if r[0] == "a" and r[1] < 160: assert r in done, ("x not loaded", i.text)

def check_init(path):
    done = {("s", 0), ("s", 1), ("s", 2), ("v", 0), ("s", "exec")}
    for i in path:
        for r in i.rd:
            if r not in done and not (i.op.startswith("v_permlane") or i.op == "v_writelane_b32"): print("UNINIT", r, i.text, file=sys.stderr); done.add(r)
        done |= set(i.wr)

def build():
    pro = prologue()
    cls = {c: phase1a(c) for c in "QV"}
    for c in "QV": check_x(list(pro) + list(cls[c]))
    p1c = phase1c()
    regmap = {}; loader = Loader()
    att = attention(regmap, loader)
    p3 = phase3(regmap, loader)
    fb = fallback()
    tail = Seg(); tail += p1c; tail += att; tail += p3
    log = []
    tot = fix_hazards(pro, log=log)
    for c in "QV":
        ctx = list(pro[-30:]); n0 = len(ctx); path = ctx + list(cls[c]); tot += fix_hazards(path, log=log)
        assert all(x is y for x, y in zip(path[:n0], ctx)); cls[c][:] = path[n0:]
    for c in "QV":
        ctx = list(cls[c][-30:]); n0 = len(ctx); path = ctx + list(tail); tot += fix_hazards(path, log=log)
        assert all(x is y for x, y in zip(path[:n0], ctx)); tail[:] = path[n0:]
    tot += fix_hazards(fb, log=log)
    for c in "QV": resolve_waits(list(pro) + list(cls[c]) + list(tail))
    allins = list(pro) + list(cls['Q']) + list(cls['V']) + list(tail) + list(fb)
    finalize_waits(allins)
    for c in "QV":
        check_init(list(pro) + list(cls[c]) + list(tail))
        check_m0(list(pro) + list(cls[c]) + list(tail))
        errs = check_loads(list(pro) + list(cls[c]) + list(tail))
        for e in errs[:10]: print("LOAD HAZARD", c, e, file=sys.stderr)
        assert not errs
        errs = check_scc(list(pro) + list(cls[c]) + list(tail))
        for e in errs[:10]: print("SCC HAZARD", c, e, file=sys.stderr)
        assert not errs
    print(f"nop states inserted: {tot}", file=sys.stderr)
    if "--log" in sys.argv:
        for l in log: print(l, file=sys.stderr)
    body = "\n".join(("" if i.cls == "label" else "    ") + i.text for i in allins)
    return HEADER.replace("@@BODY@@", body)

if __name__ == "__main__":
    out = build()
    path = [x for x in sys.argv[1:] if not x.startswith("--")]
    open(path[0] if path else "out.s", "w").write(out)
```
